```python
import torch

def _softmax(x, axis=-1):
    return torch.softmax(x, dim=axis)
def _gelu(x):
    return torch.nn.functional.gelu(x, approximate="tanh")
def _silu(x):
    return torch.nn.functional.silu(x)
def _sigmoid(x):
    return torch.sigmoid(x)
def _layernorm(x, axis=-1, eps=1e-5):
    m = x.mean(dim=axis, keepdim=True)
    v = x.var(dim=axis, keepdim=True, unbiased=False)
    return (x - m) / torch.sqrt(v + eps)
def _scatter_add(tgt, idx, src, axis=0):
    return tgt.clone().index_add_(axis, idx, src)
def _segment_sum(src, seg, n):
    out = torch.zeros((n,) + src.shape[1:], dtype=src.dtype)
    return out.index_add_(0, seg, src)
def _pad(x, pw):
    flat = tuple(v for pair in reversed(pw) for v in pair)
    return torch.nn.functional.pad(x, flat)

kernel_name = 'parallel_sum__compressed_kv_cla__mixer_token_mlp__prompt'

def setup_inputs():

    _w = (lambda a: (lambda t: t.to(torch.bfloat16) if t.is_floating_point() else t)(torch.as_tensor(a)))
    def _A_setup():
        B, H, Sq, Sk, D, M = 1, 32, 2048, 2048, 128, 640
        Dc = 4 * D
        return {
            "x": _w((lambda *s: torch.randn(*s, dtype=torch.bfloat16) * 0.05)(B, Sq, M)),
            "c_kv": _w((lambda *s: torch.randn(*s, dtype=torch.bfloat16) * 0.2)(B, Sk, Dc)),
            "w_q": _w((lambda *s: torch.randn(*s, dtype=torch.bfloat16) * 6.4)(M, H, D) * (M ** -0.5)),
            "w_uk": _w((lambda *s: torch.randn(*s, dtype=torch.bfloat16) * 6.4)(Dc, H, D) * (Dc ** -0.5)),
            "w_uv": _w((lambda *s: torch.randn(*s, dtype=torch.bfloat16) * 0.2)(Dc, H, D) * (Dc ** -0.5)),
            "w_o": _w((lambda *s: torch.randn(*s, dtype=torch.bfloat16) * 0.2)(H, D, M) * ((H * D) ** -0.5)),
        }
    _A_in = _A_setup()

    def _B_setup():
        B, S, D, F = 1, 2048, 640, 1728
        return {
            "x": _w((lambda *s: torch.randn(*s, dtype=torch.bfloat16) * 0.05)(B, S, D)),
            "w1": _w((lambda *s: torch.randn(*s, dtype=torch.bfloat16) * 0.4)(S, F) * (S ** -0.5)),
            "b1": _w((lambda *s: torch.randn(*s, dtype=torch.bfloat16) * 3.2)(F) * 0.02),
            "w2": _w((lambda *s: torch.randn(*s, dtype=torch.bfloat16) * 0.2)(F, S) * (F ** -0.5)),
            "b2": _w((lambda *s: torch.randn(*s, dtype=torch.bfloat16) * 0.8)(S) * 0.02),
        }
    _B_in = _B_setup()

    return {
        "A_x": _A_in["x"],
        "A_c_kv": _A_in["c_kv"],
        "A_w_q": _A_in["w_q"],
        "A_w_uk": _A_in["w_uk"],
        "A_w_uv": _A_in["w_uv"],
        "A_w_o": _A_in["w_o"],
        "B_x": _B_in["x"],
        "B_w1": _B_in["w1"],
        "B_b1": _B_in["b1"],
        "B_w2": _B_in["w2"],
        "B_b2": _B_in["b2"],
    }

def reference(A_x, A_c_kv, A_w_q, A_w_uk, A_w_uv, A_w_o, B_x, B_w1, B_b1, B_w2, B_b2):
    def _A_ref(x, c_kv, w_q, w_uk, w_uv, w_o):
        B, Sq, M = x.shape[0], x.shape[1], x.shape[2]
        Sk = c_kv.shape[1]
        H, D = w_q.shape[1], w_q.shape[2]
        q = torch.einsum("bqm,mhd->bhqd", x, w_q)
        k = torch.einsum("bkc,chd->bhkd", c_kv, w_uk)
        v = torch.einsum("bkc,chd->bhkd", c_kv, w_uv)
        scores = torch.einsum("bhqd,bhkd->bhqk", q, k) * (D ** -0.5)
        off = Sk - Sq
        qi = torch.arange(Sq)[:, None]
        kj = torch.arange(Sk)[None, :]
        cmask = kj <= (qi + off)
        scores = torch.where(cmask[None, None], scores, -1e9)
        p = _softmax(scores, axis=-1)
        ctx = torch.einsum("bhqk,bhkd->bhqd", p, v)
        return torch.einsum("bhqd,hdm->bqm", ctx, w_o)

    def _B_ref(x, w1, b1, w2, b2):
        B, S, D = x.shape
        h = _layernorm(x, axis=-1)
        u = torch.einsum("bsd,sf->bdf", h, w1) + b1
        u = _gelu(u)
        y = torch.einsum("bdf,fs->bds", u, w2) + b2
        return (lambda x, *d: x.permute(*d))(y, 0, 2, 1)

    x = A_x
    xn = _layernorm(x, axis=-1)
    return x + _A_ref(xn, A_c_kv, A_w_q, A_w_uk, A_w_uv, A_w_o) + _B_ref(xn, B_w1, B_b1, B_w2, B_b2)
```

```python
import sys
import math

KN = "parallel_sum__compressed_kv_cla__mixer_token_mlp__prompt"

WS_XN = 0x0000000
WS_H = 0x0280000
WS_Q = 0x1000000
WS_K = 0x2000000
WS_VT = 0x3000000
WS_U = 0x4000000
WS_CTX = 0x5000000

KA = dict(x=0, ckv=8, wq=16, wuk=24, wuv=32, wo=40, bx=48, w1=56, b1=64, w2=72, b2=80, out=88, dbg=96, ws=104)


class E:
    def __init__(self):
        self.lines = []

    def __call__(self, s):
        self.lines.append("    " + s)

    def label(self, l):
        self.lines.append(l + ":")

    def raw(self, s):
        self.lines.append(s)

    def text(self):
        return "\n".join(self.lines) + "\n"


def vr(a, n=1):
    return f"v{a}" if n == 1 else f"v[{a}:{a + n - 1}]"


def sr(a, n=1):
    return f"s{a}" if n == 1 else f"s[{a}:{a + n - 1}]"


def kernel_header(e, name):
    e.raw(".text")
    e.raw(f".globl {name}")
    e.raw(".p2align 8")
    e.raw(f".type {name},@function")
    e.label(name)


def kernel_desc(e, name, vgpr, sgpr=96):
    acc = (vgpr + 3) // 4 * 4
    e.raw('.section .rodata,"a"')
    e.raw(".p2align 6")
    e.raw(f".amdhsa_kernel {name}")
    e.raw(f"  .amdhsa_next_free_vgpr {vgpr}")
    e.raw(f"  .amdhsa_next_free_sgpr {sgpr}")
    e.raw(f"  .amdhsa_accum_offset {acc}")
    e.raw("  .amdhsa_group_segment_fixed_size 0")
    e.raw("  .amdhsa_kernarg_size 112")
    e.raw("  .amdhsa_user_sgpr_count 2")
    e.raw("  .amdhsa_user_sgpr_kernarg_segment_ptr 1")
    e.raw("  .amdhsa_system_sgpr_workgroup_id_x 1")
    e.raw(".end_amdhsa_kernel")


def make_srd(e, d, ptr, nbytes, off=0):
    if off:
        e(f"s_add_u32 s{d}, s{ptr}, 0x{off:x}")
        e(f"s_addc_u32 s{d + 1}, s{ptr + 1}, 0")
    else:
        e(f"s_mov_b32 s{d}, s{ptr}")
        e(f"s_mov_b32 s{d + 1}, s{ptr + 1}")
    e(f"s_mov_b32 s{d + 2}, 0x{nbytes:x}")
    e(f"s_mov_b32 s{d + 3}, 0x00020000")


def wave_sum(e, v, t):
    for off in (0x041F, 0x081F, 0x101F, 0x201F, 0x401F):
        e(f"ds_swizzle_b32 v{t}, v{v} offset:0x{off:04X}")
        e("s_waitcnt lgkmcnt(0)")
        e(f"v_add_f32 v{v}, v{v}, v{t}")
    e(f"v_mov_b32 v{t}, v{v}")
    e("s_nop 1")
    e(f"v_permlane32_swap_b32 v{t}, v{v}")
    e("s_nop 1")
    e(f"v_add_f32 v{v}, v{v}, v{t}")


def gen_ln(e):
    name = "ln_kernel"
    kernel_header(e, name)
    e("s_cmp_ge_u32 s2, 512")
    e("s_cbranch_scc1 ln_end")
    e(f"s_load_dwordx2 s[4:5], s[0:1], {KA['x']}")
    e(f"s_load_dwordx2 s[6:7], s[0:1], {KA['ws']}")
    e("v_lshrrev_b32 v1, 6, v0")
    e("v_and_b32 v2, 63, v0")
    e("s_lshl_b32 s3, s2, 2")
    e("v_add_u32 v1, s3, v1")
    e("s_movk_i32 s16, 1280")
    e("v_mul_lo_u32 v1, v1, s16")
    e("v_lshl_add_u32 v1, v2, 2, v1")
    e("s_waitcnt lgkmcnt(0)")
    make_srd(e, 8, 4, 2048 * 1280)
    make_srd(e, 12, 6, 2 * 2048 * 1280)
    for i in range(5):
        e(f"buffer_load_dword v{4 + i}, v1, s[8:11], 0 offen offset:{i * 256}")
    e("s_waitcnt vmcnt(0)")
    e("s_mov_b32 s17, 0x3acccccd")
    e("s_mov_b32 s18, 0x3727c5ac")
    e("s_mov_b32 s19, 0xffff0000")

    def ln_pass(dst_off):
        for i in range(5):
            e(f"v_lshlrev_b32 v{10 + 2 * i}, 16, v{4 + i}")
            e(f"v_and_b32 v{11 + 2 * i}, s19, v{4 + i}")
        e("v_add_f32 v20, v10, v11")
        for i in range(2, 10):
            e(f"v_add_f32 v20, v20, v{10 + i}")
        wave_sum(e, 20, 21)
        e("v_mul_f32 v20, s17, v20")
        for i in range(10):
            e(f"v_sub_f32 v{10 + i}, v{10 + i}, v20")
        e("v_mul_f32 v22, v10, v10")
        for i in range(1, 10):
            e(f"v_fmac_f32 v22, v{10 + i}, v{10 + i}")
        wave_sum(e, 22, 21)
        e("v_mov_b32 v23, s18")
        e("v_fmac_f32 v23, s17, v22")
        e("v_rsq_f32 v23, v23")
        e("s_nop 1")
        for i in range(10):
            e(f"v_mul_f32 v{10 + i}, v{10 + i}, v23")
        for i in range(5):
            e(f"v_cvt_pk_bf16_f32 v{4 + i}, v{10 + 2 * i}, v{11 + 2 * i}")
        e("s_mov_b32 s20, 0x%x" % dst_off)
        for i in range(5):
            e(f"buffer_store_dword v{4 + i}, v1, s[12:15], s20 offen offset:{i * 256}")

    ln_pass(WS_XN)
    e("s_nop 4")
    ln_pass(WS_H)
    e.label("ln_end")
    e("s_endpgm")
    return name, 32


class Op:
    def __init__(self, mode, srd, ld, base, perm=False):
        self.mode = mode
        self.srd = srd
        self.ld = ld
        self.base = base
        self.perm = perm


class Gemm:
    def __init__(self, e, tag, BA, BB, WA, WB, vbase=2):
        self.e = e
        self.tag = tag
        self.BA, self.BB, self.WA, self.WB = BA, BB, WA, WB
        self.NW = WA * WB
        self.TA = BA // WA // 32
        self.TB = BB // WB // 32
        self.SA = BA * 128
        self.SB = BB * 128
        st = self.SA + self.SB
        self.stage = 1 << (st - 1).bit_length()
        self.lds = self.stage + st
        self.nA = self.SA // 1024 // self.NW
        self.nB = self.SB // 1024 // self.NW
        assert self.nA * 1024 * self.NW == self.SA and self.nB * 1024 * self.NW == self.SB
        v = vbase
        self.v_lane = v; v += 1
        self.v_t0 = v; v += 1
        self.v_t1 = v; v += 1
        self.v_t2 = v; v += 1
        self.v_dmaA = v; v += self.nA
        self.v_dmaB = v; v += self.nB
        self.v_adrA = v; v += 4
        self.v_adrB = v; v += 4
        v = (v + 3) // 4 * 4
        self.v_fA = v; v += 2 * 4 * self.TA
        self.v_fB = v; v += 2 * 4 * self.TB
        self.v_acc = v; v += 16 * self.TA * self.TB
        self.v_end = v
        self.s_wave = 20
        self.s_cnt = 21
        self.s_offA = 22
        self.s_offB = 23
        self.s_t = 24
        self.s_wa = 28
        self.s_wb = 29
        self.s_stage = 30

    def setup_common(self):
        e = self.e
        e(f"v_and_b32 v{self.v_lane}, 63, v0")
        e(f"v_lshrrev_b32 v{self.v_t0}, 6, v0")
        e("s_nop 0")
        e(f"v_readfirstlane_b32 s{self.s_wave}, v{self.v_t0}")
        e("s_nop 3")
        lw = int(math.log2(self.WA))
        e(f"s_and_b32 s{self.s_wa}, s{self.s_wave}, {self.WA - 1}")
        e(f"s_lshr_b32 s{self.s_wb}, s{self.s_wave}, {lw}")

    def setup_op(self, op, R, n, v_dma, v_adr, s_wcoord, T, lds_base):
        e = self.e
        L, t0, t1, t2 = self.v_lane, self.v_t0, self.v_t1, self.v_t2
        st = self.s_t
        if op.mode == 'k':
            for jj in range(n):
                e(f"s_mul_i32 s{st}, s{self.s_wave}, {n * 8}")
                e(f"s_add_u32 s{st}, s{st}, {jj * 8}")
                e(f"v_lshrrev_b32 v{t0}, 3, v{L}")
                e(f"v_add_u32 v{t0}, s{st}, v{t0}")
                e(f"v_bfe_u32 v{t1}, v{t0}, 1, 3")
                e(f"v_and_b32 v{t2}, 7, v{L}")
                e(f"v_xor_b32 v{t1}, v{t1}, v{t2}")
                e(f"s_mov_b32 s{st + 1}, {op.ld}")
                e(f"v_mul_lo_u32 v{t0}, v{t0}, s{st + 1}")
                e(f"v_lshl_add_u32 v{v_dma + jj}, v{t1}, 4, v{t0}")
            e(f"s_mul_i32 s{st}, s{s_wcoord}, {T * 32}")
            e(f"v_and_b32 v{t0}, 31, v{L}")
            e(f"v_add_u32 v{t0}, s{st}, v{t0}")
            e(f"v_bfe_u32 v{t1}, v{t0}, 1, 3")
            e(f"v_lshrrev_b32 v{t2}, 5, v{L}")
            e(f"v_lshlrev_b32 v{t0}, 7, v{t0}")
            for kk in range(4):
                e(f"v_add_u32 v{v_adr + kk}, {2 * kk}, v{t2}")
                e(f"v_xor_b32 v{v_adr + kk}, v{v_adr + kk}, v{t1}")
                e(f"v_lshl_add_u32 v{v_adr + kk}, v{v_adr + kk}, 4, v{t0}")
                if lds_base:
                    e(f"v_add_u32 v{v_adr + kk}, {lds_base}, v{v_adr + kk}")
        else:
            rb = 2 * R
            lrb = int(math.log2(rb))
            for jj in range(n):
                e(f"s_mul_i32 s{st}, s{self.s_wave}, {n * 1024}")
                e(f"s_add_u32 s{st}, s{st}, {jj * 1024}")
                e(f"v_lshlrev_b32 v{t0}, 4, v{L}")
                e(f"v_add_u32 v{t0}, s{st}, v{t0}")
                e(f"v_lshrrev_b32 v{t1}, {lrb}, v{t0}")
                e(f"v_and_b32 v{t0}, {rb - 1}, v{t0}")
                if rb >= 256:
                    e(f"v_and_b32 v{t2}, 3, v{t1}")
                else:
                    e(f"v_bfe_u32 v{t2}, v{t1}, 1, 1")
                e(f"v_lshlrev_b32 v{t2}, 6, v{t2}")
                e(f"v_xor_b32 v{t0}, v{t0}, v{t2}")
                e(f"s_mov_b32 s{st + 1}, {op.ld}")
                e(f"v_mul_lo_u32 v{t1}, v{t1}, s{st + 1}")
                e(f"v_add_u32 v{v_dma + jj}, v{t0}, v{t1}")
            e(f"v_lshrrev_b32 v{t0}, 5, v{L}")
            e(f"v_lshlrev_b32 v{t0}, {2 if op.perm else 3}, v{t0}")
            e(f"v_bfe_u32 v{t1}, v{L}, 2, 2")
            e(f"v_add_u32 v{t0}, v{t0}, v{t1}")
            e(f"v_lshlrev_b32 v{t0}, {lrb}, v{t0}")
            e(f"v_bfe_u32 v{t2}, v{L}, 4, 1")
            e(f"v_lshlrev_b32 v{t2}, 5, v{t2}")
            e(f"v_add_u32 v{t0}, v{t0}, v{t2}")
            e(f"v_and_b32 v{t2}, 3, v{L}")
            e(f"v_lshl_add_u32 v{t0}, v{t2}, 3, v{t0}")
            if rb < 256:
                e(f"v_bfe_u32 v{t1}, v{L}, 3, 1")
            for t in range(T):
                e(f"s_mul_i32 s{st}, s{s_wcoord}, {T}")
                e(f"s_add_u32 s{st}, s{st}, {t}")
                e(f"v_xor_b32 v{t2}, s{st}, v{t1}")
                e(f"v_lshl_add_u32 v{v_adr + t}, v{t2}, 6, v{t0}")
                if lds_base:
                    e(f"v_add_u32 v{v_adr + t}, {lds_base}, v{v_adr + t}")

    def n_adr(self, op, T):
        return 4 if op.mode == 'k' else T

    def issue_dma(self, op, n, v_dma, lds_base, s_off):
        e = self.e
        st = self.s_t
        for jj in range(n):
            e(f"s_mul_i32 s{st}, s{self.s_wave}, {n * 1024}")
            e(f"s_add_u32 s{st}, s{st}, s{self.s_stage}")
            e(f"s_add_u32 m0, s{st}, {lds_base + jj * 1024}")
            e("s_nop 0")
            e(f"buffer_load_dwordx4 v{v_dma + jj}, s[{op.srd}:{op.srd + 3}], s{s_off} offen lds")

    def read_frags(self, op, R, T, v_adr, v_f, kk):
        e = self.e
        cnt = 0
        if op.mode == 'k':
            for t in range(T):
                e(f"ds_read_b128 v[{v_f + 4 * t}:{v_f + 4 * t + 3}], v{v_adr + kk} offset:{t * 4096}")
                cnt += 1
        else:
            rb = 2 * R
            hstep = 8 if op.perm else 4
            for t in range(T):
                for half in range(2):
                    off = (kk * 16 + half * hstep) * rb
                    e(f"ds_read_b64_tr_b16 v[{v_f + 4 * t + 2 * half}:{v_f + 4 * t + 2 * half + 1}], v{v_adr + t} offset:{off}")
                    cnt += 1
        return cnt

    def zero_acc(self):
        for i in range(16 * self.TA * self.TB):
            self.e(f"v_mov_b32 v{self.v_acc + i}, 0")

    def run_seg(self, A, B, nk, first):
        e = self.e
        tag = self.tag
        self.seg = getattr(self, "seg", 0) + 1
        lab = f"{tag}_s{self.seg}"
        self.setup_op(A, self.BA, self.nA, self.v_dmaA, self.v_adrA, self.s_wa, self.TA, 0)
        self.setup_op(B, self.BB, self.nB, self.v_dmaB, self.v_adrB, self.s_wb, self.TB, self.SA)
        stepA = 128 if A.mode == 'k' else 64 * A.ld
        stepB = 128 if B.mode == 'k' else 64 * B.ld
        e(f"s_mov_b32 s{self.s_offA}, s{A.base}")
        e(f"s_mov_b32 s{self.s_offB}, s{B.base}")
        e(f"s_mov_b32 s{self.s_stage}, 0")
        if not first:
            e("s_barrier")
        self.issue_dma(A, self.nA, self.v_dmaA, 0, self.s_offA)
        self.issue_dma(B, self.nB, self.v_dmaB, self.SA, self.s_offB)
        e(f"s_mov_b32 s{self.s_cnt}, {nk}")
        e.label(f"{lab}_loop")
        e("s_waitcnt vmcnt(0)")
        e("s_barrier")
        e(f"s_cmp_eq_u32 s{self.s_cnt}, 1")
        e(f"s_cbranch_scc1 {lab}_nodma")
        e(f"s_add_u32 s{self.s_offA}, s{self.s_offA}, {stepA}")
        e(f"s_add_u32 s{self.s_offB}, s{self.s_offB}, {stepB}")
        e(f"s_xor_b32 s{self.s_stage}, s{self.s_stage}, {self.stage}")
        self.issue_dma(A, self.nA, self.v_dmaA, 0, self.s_offA)
        self.issue_dma(B, self.nB, self.v_dmaB, self.SA, self.s_offB)
        e.label(f"{lab}_nodma")
        szA = 4 * self.TA
        szB = 4 * self.TB

        def reads(kk):
            buf = kk & 1
            c = self.read_frags(A, self.BA, self.TA, self.v_adrA, self.v_fA + buf * szA, kk)
            c += self.read_frags(B, self.BB, self.TB, self.v_adrB, self.v_fB + buf * szB, kk)
            return c

        reads(0)
        for kk in range(4):
            nxt = reads(kk + 1) if kk < 3 else 0
            e(f"s_waitcnt lgkmcnt({nxt})")
            buf = kk & 1
            for ta in range(self.TA):
                for tb in range(self.TB):
                    d = self.v_acc + 16 * (ta * self.TB + tb)
                    a = self.v_fA + buf * szA + 4 * ta
                    b = self.v_fB + buf * szB + 4 * tb
                    e(f"v_mfma_f32_32x32x16_bf16 v[{d}:{d + 15}], v[{a}:{a + 3}], v[{b}:{b + 3}], v[{d}:{d + 15}]")
        for i in range(self.n_adr(A, self.TA)):
            e(f"v_xor_b32 v{self.v_adrA + i}, {self.stage}, v{self.v_adrA + i}")
        for i in range(self.n_adr(B, self.TB)):
            e(f"v_xor_b32 v{self.v_adrB + i}, {self.stage}, v{self.v_adrB + i}")
        e(f"s_sub_u32 s{self.s_cnt}, s{self.s_cnt}, 1")
        e(f"s_cmp_lg_u32 s{self.s_cnt}, 0")
        e(f"s_cbranch_scc1 {lab}_loop")

    def out_addr(self, v_dst, s_rowA0, s_colB0, ld_out):
        e = self.e
        L, t0, st = self.v_lane, self.v_t0, self.s_t
        e(f"s_mul_i32 s{st}, s{self.s_wb}, {self.TB * 32}")
        e(f"s_add_u32 s{st}, s{st}, s{s_colB0}")
        e(f"v_and_b32 v{t0}, 31, v{L}")
        e(f"v_add_u32 v{t0}, s{st}, v{t0}")
        e(f"s_mov_b32 s{st + 1}, {ld_out}")
        e(f"v_mul_lo_u32 v{t0}, v{t0}, s{st + 1}")
        e(f"s_mul_i32 s{st}, s{self.s_wa}, {self.TA * 32}")
        e(f"s_add_u32 s{st}, s{st}, s{s_rowA0}")
        e(f"s_lshl_b32 s{st}, s{st}, 1")
        e(f"v_add_u32 v{t0}, s{st}, v{t0}")
        e(f"v_lshrrev_b32 v{v_dst}, 5, v{L}")
        return t0

    def epi_perm(self, srd_out, s_rowA0, s_colB0, ld_out):
        e = self.e
        va = self.v_t1
        t0 = self.out_addr(va, s_rowA0, s_colB0, ld_out)
        e(f"v_lshl_add_u32 v{va}, v{va}, 4, v{t0}")
        e("s_nop 15")
        e("s_nop 7")
        pk = self.v_fA
        nb = 0
        for ta in range(self.TA):
            for tb in range(self.TB):
                d = self.v_acc + 16 * (ta * self.TB + tb)
                p = pk + 8 * (nb & 1)
                nb += 1
                for i in range(8):
                    e(f"v_cvt_pk_bf16_f32 v{p + i}, v{d + 2 * i}, v{d + 2 * i + 1}")
                off = tb * 32 * ld_out + ta * 64
                assert off + 32 < 4096 or True
                if off + 32 < 4096:
                    e(f"buffer_store_dwordx4 v[{p}:{p + 3}], v{va}, s[{srd_out}:{srd_out + 3}], 0 offen offset:{off}")
                    e(f"buffer_store_dwordx4 v[{p + 4}:{p + 7}], v{va}, s[{srd_out}:{srd_out + 3}], 0 offen offset:{off + 32}")
                else:
                    e(f"s_mov_b32 s{self.s_t}, {tb * 32 * ld_out}")
                    e(f"buffer_store_dwordx4 v[{p}:{p + 3}], v{va}, s[{srd_out}:{srd_out + 3}], s{self.s_t} offen offset:{ta * 64}")
                    e(f"buffer_store_dwordx4 v[{p + 4}:{p + 7}], v{va}, s[{srd_out}:{srd_out + 3}], s{self.s_t} offen offset:{ta * 64 + 32}")
                e("s_nop 1")


P1_NU = 35
P1_NQ = 128


def gen_p1(e):
    name = "proj_kernel"
    kernel_header(e, name)
    ntot = P1_NU + 3 * P1_NQ
    e(f"s_cmp_ge_u32 s2, {ntot}")
    e("s_cbranch_scc1 p1_end")
    e(f"s_load_dwordx2 s[32:33], s[0:1], {KA['ckv']}")
    e(f"s_load_dwordx2 s[34:35], s[0:1], {KA['wq']}")
    e(f"s_load_dwordx2 s[36:37], s[0:1], {KA['wuk']}")
    e(f"s_load_dwordx2 s[38:39], s[0:1], {KA['wuv']}")
    e(f"s_load_dwordx2 s[40:41], s[0:1], {KA['w1']}")
    e(f"s_load_dwordx2 s[42:43], s[0:1], {KA['b1']}")
    e(f"s_load_dwordx2 s[44:45], s[0:1], {KA['ws']}")
    e("s_waitcnt lgkmcnt(0)")
    e(f"s_cmp_lt_u32 s2, {P1_NU}")
    e("s_cbranch_scc1 p1_u")
    e(f"s_cmp_lt_u32 s2, {P1_NU + P1_NQ}")
    e("s_cbranch_scc1 p1_q")
    e(f"s_cmp_lt_u32 s2, {P1_NU + 2 * P1_NQ}")
    e("s_cbranch_scc1 p1_k")
    e("s_branch p1_v")
    vmax = 0

    for tag, wptr, K, xsrc, xld, wsoff, id0 in (("p1_q", 34, 640, 'xn', 1280, WS_Q, P1_NU),
                                                 ("p1_k", 36, 512, 'ckv', 1024, WS_K, P1_NU + P1_NQ)):
        e.label(tag)
        g = Gemm(e, tag, 256, 256, 2, 4)
        vmax = max(vmax, g.v_end)
        make_srd(e, 4, wptr, K * 8192)
        if xsrc == 'xn':
            make_srd(e, 8, 44, 2048 * 1280, WS_XN)
        else:
            make_srd(e, 8, 32, 2048 * 1024)
        make_srd(e, 12, 44, 2048 * 8192, wsoff)
        e(f"s_sub_u32 s3, s2, {id0}")
        e("s_and_b32 s46, s3, 15")
        e("s_lshr_b32 s47, s3, 4")
        e("s_lshl_b32 s46, s46, 8")
        e("s_lshl_b32 s47, s47, 8")
        e("s_lshl_b32 s48, s46, 1")
        e(f"s_mul_i32 s49, s47, {xld}")
        g.setup_common()
        g.zero_acc()
        g.run_seg(Op('t', 4, 8192, 48), Op('k', 8, xld, 49), K // 64, True)
        g.epi_perm(12, 46, 47, 8192)
        e("s_endpgm")

    e.label("p1_v")
    g = Gemm(e, "p1_v", 256, 256, 2, 4)
    vmax = max(vmax, g.v_end)
    make_srd(e, 4, 32, 2048 * 1024)
    make_srd(e, 8, 38, 512 * 8192)
    make_srd(e, 12, 44, 4096 * 4096, WS_VT)
    e(f"s_sub_u32 s3, s2, {P1_NU + 2 * P1_NQ}")
    e("s_and_b32 s46, s3, 7")
    e("s_lshr_b32 s47, s3, 3")
    e("s_lshl_b32 s46, s46, 8")
    e("s_lshl_b32 s47, s47, 8")
    e("s_mul_i32 s48, s46, 1024")
    e("s_lshl_b32 s49, s47, 1")
    g.setup_common()
    g.zero_acc()
    g.run_seg(Op('k', 4, 1024, 48), Op('t', 8, 8192, 49), 8, True)
    g.epi_perm(12, 46, 47, 4096)
    e("s_endpgm")

    e.label("p1_u")
    g = Gemm(e, "p1_u", 256, 128, 4, 2)
    vmax = max(vmax, g.v_end)
    make_srd(e, 4, 40, 2048 * 3456)
    make_srd(e, 8, 44, 2048 * 1280, WS_H)
    make_srd(e, 12, 44, 640 * 3456, WS_U)
    make_srd(e, 16, 42, 3456)
    e("s_mul_i32 s46, s2, 37")
    e("s_lshr_b32 s47, s46, 8")
    e("s_mul_i32 s46, s47, 7")
    e("s_sub_u32 s46, s2, s46")
    e("s_lshl_b32 s46, s46, 8")
    e("s_lshl_b32 s47, s47, 7")
    e("s_lshl_b32 s48, s46, 1")
    e("s_lshl_b32 s49, s47, 1")
    g.setup_common()
    g.zero_acc()
    g.run_seg(Op('t', 4, 3456, 48), Op('t', 8, 1280, 49), 32, True)
    va = g.v_t1
    t0 = g.out_addr(va, 46, 47, 3456)
    e(f"v_lshl_add_u32 v{va}, v{va}, 4, v{t0}")
    vb = g.v_t2
    e(f"s_mul_i32 s24, s{g.s_wa}, {g.TA * 32}")
    e("s_add_u32 s50, s24, s46")
    e("s_lshl_b32 s24, s50, 1")
    e(f"v_lshrrev_b32 v{vb}, 5, v{g.v_lane}")
    e(f"v_lshlrev_b32 v{vb}, 3, v{vb}")
    e(f"v_add_u32 v{vb}, s24, v{vb}")
    e("s_nop 15")
    e("s_nop 7")
    e("s_mov_b32 s51, 0xffff0000")
    e("s_mov_b32 s52, 0x3d372713")
    e("s_mov_b32 s53, 0xc0135761")
    bias = g.v_fA
    bf = g.v_fA + 8
    tmp = g.v_fA + 24
    for ta in range(g.TA):
        e(f"s_add_u32 s24, s50, {ta * 32}")
        e("s_cmp_ge_u32 s24, 1728")
        e(f"s_cbranch_scc1 p1_u_skip{ta}")
        for q in range(4):
            e(f"buffer_load_dwordx2 v[{bias + 2 * q}:{bias + 2 * q + 1}], v{vb}, s[16:19], 0 offen offset:{ta * 64 + q * 16}")
        e("s_waitcnt vmcnt(0)")
        for i in range(8):
            e(f"v_lshlrev_b32 v{bf + 2 * i}, 16, v{bias + i}")
            e(f"v_and_b32 v{bf + 2 * i + 1}, s51, v{bias + i}")
        for tb in range(g.TB):
            d = g.v_acc + 16 * (ta * g.TB + tb)
            for i in range(16):
                x = d + i
                e(f"v_add_f32 v{x}, v{x}, v{bf + i}")
                e(f"v_mul_f32 v{tmp}, v{x}, v{x}")
                e(f"v_fma_f32 v{tmp}, v{tmp}, s52, 1.0")
                e(f"v_mul_f32 v{tmp}, v{tmp}, v{x}")
                e(f"v_mul_f32 v{tmp}, s53, v{tmp}")
                e(f"v_exp_f32 v{tmp}, v{tmp}")
                e("s_nop 0")
                e(f"v_add_f32 v{tmp}, 1.0, v{tmp}")
                e(f"v_rcp_f32 v{tmp}, v{tmp}")
                e("s_nop 0")
                e(f"v_mul_f32 v{x}, v{x}, v{tmp}")
            p = bias
            for i in range(8):
                e(f"v_cvt_pk_bf16_f32 v{p + i}, v{d + 2 * i}, v{d + 2 * i + 1}")
            e(f"s_mov_b32 s24, {tb * 32 * 3456}")
            e(f"buffer_store_dwordx4 v[{p}:{p + 3}], v{va}, s[12:15], s24 offen offset:{ta * 64}")
            e(f"buffer_store_dwordx4 v[{p + 4}:{p + 7}], v{va}, s[12:15], s24 offen offset:{ta * 64 + 32}")
            e("s_nop 1")
        e.label(f"p1_u_skip{ta}")
    e.label("p1_end")
    e("s_endpgm")
    return name, vmax, ntot, 131072


def gen_attn(e):
    name = "attn_kernel"
    kernel_header(e, name)
    e("s_cmp_ge_u32 s2, 256")
    e("s_cbranch_scc1 at_end")
    e(f"s_load_dwordx2 s[44:45], s[0:1], {KA['ws']}")
    vL, vt0, vt1, vt2 = 1, 2, 3, 4
    vdK, vdV = 6, 10
    vaK, vaV = 14, 22
    vm, vl, vmask, vst = 26, 27, 28, 29
    valpha, vmc, vx0, vx1 = 30, 31, 32, 33
    vQ = 36
    vS = 68
    vP = 100
    vF0 = 116
    vF1 = 148
    vO = 180
    VEND = 244
    sW, sG, sQS, sH, sJ, sQB, sIT, sKoff, sVoff, sStage, sT, sC, sPass, sQ0 = 20, 21, 22, 23, 24, 25, 26, 27, 28, 29, 30, 34, 35, 36
    e(f"v_and_b32 v{vL}, 63, v0")
    e(f"v_lshrrev_b32 v{vt0}, 6, v0")
    e("s_nop 0")
    e(f"v_readfirstlane_b32 s{sW}, v{vt0}")
    e("s_nop 3")
    e(f"s_lshr_b32 s{sG}, s{sW}, 2")
    e(f"s_and_b32 s{sQS}, s{sW}, 3")
    e("s_and_b32 s3, s2, 7")
    e(f"s_lshr_b32 s{sT}, s2, 3")
    e(f"s_lshr_b32 s{sH}, s{sT}, 3")
    e(f"s_lshl_b32 s3, s3, 2")
    e(f"s_add_u32 s{sH}, s{sH}, s3")
    e(f"s_and_b32 s{sJ}, s{sT}, 7")
    e("s_waitcnt lgkmcnt(0)")
    make_srd(e, 4, 44, 2048 * 8192, WS_Q)
    make_srd(e, 8, 44, 2048 * 8192, WS_K)
    make_srd(e, 12, 44, 4096 * 4096, WS_VT)
    make_srd(e, 16, 44, 2048 * 8192, WS_CTX)
    e(f"s_mov_b32 s{sC}, 0x3e0293ee")
    for jj in range(4):
        e(f"s_lshl_b32 s{sT}, s{sW}, 4")
        e(f"s_add_u32 s{sT}, s{sT}, {jj * 4}")
        e(f"v_lshrrev_b32 v{vt0}, 4, v{vL}")
        e(f"v_add_u32 v{vt0}, s{sT}, v{vt0}")
        e(f"v_xor_b32 v{vt1}, v{vt0}, v{vL}")
        e(f"v_and_b32 v{vt1}, 15, v{vt1}")
        e(f"v_lshlrev_b32 v{vt1}, 4, v{vt1}")
        e(f"v_lshl_add_u32 v{vdK + jj}, v{vt0}, 13, v{vt1}")
        e(f"v_lshl_add_u32 v{vdV + jj}, v{vt0}, 12, v{vt1}")
    e(f"v_and_b32 v{vt0}, 31, v{vL}")
    e(f"v_lshrrev_b32 v{vt1}, 5, v{vL}")
    e(f"v_and_b32 v{vt2}, 15, v{vL}")
    e(f"v_xor_b32 v{vt2}, v{vt2}, v{vt1}")
    e(f"v_lshlrev_b32 v{vt2}, 4, v{vt2}")
    e(f"s_lshl_b32 s{sT}, s{sG}, 6")
    e(f"v_add_u32 v{vx0}, s{sT}, v{vt0}")
    e(f"v_lshl_add_u32 v{vx0}, v{vx0}, 8, v{vt2}")
    for kk in range(8):
        e(f"v_xor_b32 v{vaK + kk}, {kk * 32}, v{vx0}")
    e(f"v_lshl_add_u32 v{vx0}, v{vt0}, 8, v{vt2}")
    e(f"v_add_u32 v{vx0}, 32768, v{vx0}")
    e(f"s_lshl_b32 s{sT}, s{sG}, 7")
    e(f"v_xor_b32 v{vx0}, s{sT}, v{vx0}")
    for kk in range(4):
        e(f"v_xor_b32 v{vaV + kk}, {kk * 32}, v{vx0}")
    e(f"s_lshl_b32 s{sT}, s{sQS}, 5")
    e(f"s_lshl_b32 s{sT + 1}, s{sG}, 6")
    e(f"s_sub_u32 s{sT}, s{sT}, s{sT + 1}")
    e(f"v_add_u32 v{vmask}, s{sT}, v{vt0}")
    e(f"v_lshlrev_b32 v{vt1}, 2, v{vt1}")
    e(f"v_sub_u32 v{vmask}, v{vmask}, v{vt1}")
    e(f"s_mov_b32 s{sPass}, 0")
    e(f"s_sub_u32 s{sQB}, 15, s{sJ}")
    e.label("at_qblock")
    e(f"s_lshl_b32 s{sQ0}, s{sQB}, 7")
    e(f"s_lshl_b32 s{sT}, s{sQS}, 5")
    e(f"s_add_u32 s{sT}, s{sT}, s{sQ0}")
    e(f"v_and_b32 v{vt0}, 31, v{vL}")
    e(f"v_add_u32 v{vt0}, s{sT}, v{vt0}")
    e(f"v_lshlrev_b32 v{vt0}, 13, v{vt0}")
    e(f"v_lshrrev_b32 v{vt1}, 5, v{vL}")
    e(f"v_lshl_add_u32 v{vt0}, v{vt1}, 4, v{vt0}")
    e(f"s_lshl_b32 s{sT}, s{sH}, 8")
    e(f"v_add_u32 v{vst}, s{sT}, v{vt0}")
    for kk in range(8):
        e(f"buffer_load_dwordx4 v[{vQ + 4 * kk}:{vQ + 4 * kk + 3}], v{vst}, s[4:7], 0 offen offset:{kk * 32}")
    e(f"v_mov_b32 v{vm}, 0xf149f2ca")
    e(f"v_mov_b32 v{vl}, 0")
    for i in range(64):
        e(f"v_mov_b32 v{vO + i}, 0")
    e(f"s_lshl_b32 s{sKoff}, s{sH}, 8")
    e(f"s_lshl_b32 s{sVoff}, s{sH}, 19")
    e(f"s_mov_b32 s{sStage}, 0")
    e(f"s_mov_b32 s{sIT}, 0")

    def dma():
        for jj in range(4):
            e(f"s_lshl_b32 s{sT}, s{sW}, 12")
            e(f"s_add_u32 s{sT}, s{sT}, s{sStage}")
            e(f"s_add_u32 m0, s{sT}, {jj * 1024}")
            e("s_nop 0")
            e(f"buffer_load_dwordx4 v{vdK + jj}, s[8:11], s{sKoff} offen lds")
            e(f"s_add_u32 m0, s{sT}, {32768 + jj * 1024}")
            e("s_nop 0")
            e(f"buffer_load_dwordx4 v{vdV + jj}, s[12:15], s{sVoff} offen lds")

    dma()
    e.label("at_loop")
    e("s_waitcnt vmcnt(0)")
    e("s_barrier")
    e(f"s_cmp_eq_u32 s{sIT}, s{sQB}")
    e("s_cbranch_scc1 at_nodma")
    e(f"s_add_u32 s{sKoff}, s{sKoff}, {128 * 8192}")
    e(f"s_add_u32 s{sVoff}, s{sVoff}, 256")
    e(f"s_xor_b32 s{sStage}, s{sStage}, 65536")
    dma()
    e("s_branch at_compute")
    e.label("at_nodma")
    e(f"s_cmp_eq_u32 s{sG}, 0")
    e("s_cbranch_scc1 at_compute")
    e(f"s_cmp_lt_u32 s{sQS}, 2")
    e("s_cbranch_scc1 at_skip")
    e.label("at_compute")
    for t in range(2):
        F = vF0 if t == 0 else vF1
        for kk in range(8):
            e(f"ds_read_b128 v[{F + 4 * kk}:{F + 4 * kk + 3}], v{vaK + kk} offset:{t * 8192}")
    for t in range(2):
        F = vF0 if t == 0 else vF1
        e(f"s_waitcnt lgkmcnt({8 if t == 0 else 0})")
        d = vS + 16 * t
        for kk in range(8):
            c = "0" if kk == 0 else f"v[{d}:{d + 15}]"
            e(f"v_mfma_f32_32x32x16_bf16 v[{d}:{d + 15}], v[{F + 4 * kk}:{F + 4 * kk + 3}], v[{vQ + 4 * kk}:{vQ + 4 * kk + 3}], {c}")
    for dt in range(4):
        F = (vF0 if dt < 2 else vF1) + 16 * (dt & 1)
        for kk in range(4):
            e(f"ds_read_b128 v[{F + 4 * kk}:{F + 4 * kk + 3}], v{vaV + kk} offset:{dt * 8192}")
    e("s_nop 15")
    e(f"s_cmp_lg_u32 s{sIT}, s{sQB}")
    e("s_cbranch_scc1 at_nomask")
    e(f"v_mov_b32 v{vx0}, 0xf149f2ca")
    for t in range(2):
        for r in range(16):
            cst = t * 32 + (r & 3) + 8 * (r >> 2)
            e(f"v_cmp_gt_i32 vcc, {cst}, v{vmask}")
            e("s_nop 1")
            e(f"v_cndmask_b32 v{vS + 16 * t + r}, v{vS + 16 * t + r}, v{vx0}, vcc")
    e.label("at_nomask")
    e(f"v_max3_f32 v{vx0}, v{vS}, v{vS + 1}, v{vS + 2}")
    for i in range(3, 31, 2):
        e(f"v_max3_f32 v{vx0}, v{vx0}, v{vS + i}, v{vS + i + 1}")
    e(f"v_max_f32 v{vx0}, v{vx0}, v{vS + 31}")
    e(f"v_mov_b32 v{vx1}, v{vx0}")
    e("s_nop 1")
    e(f"v_permlane32_swap_b32 v{vx0}, v{vx1}")
    e("s_nop 1")
    e(f"v_max3_f32 v{vx0}, v{vx0}, v{vx1}, v{vm}")
    e(f"v_sub_f32 v{valpha}, v{vm}, v{vx0}")
    e(f"v_mul_f32 v{valpha}, s{sC}, v{valpha}")
    e(f"v_exp_f32 v{valpha}, v{valpha}")
    e(f"v_mov_b32 v{vm}, v{vx0}")
    e(f"v_mul_f32 v{vmc}, s{sC}, v{vx0}")
    e(f"v_mul_f32 v{vl}, v{vl}, v{valpha}")
    for i in range(32):
        e(f"v_fma_f32 v{vS + i}, v{vS + i}, s{sC}, -v{vmc}")
        e(f"v_exp_f32 v{vS + i}, v{vS + i}")
    for i in range(64):
        e(f"v_mul_f32 v{vO + i}, v{vO + i}, v{valpha}")
    for i in range(32):
        e(f"v_add_f32 v{vl}, v{vl}, v{vS + i}")
    for i in range(16):
        e(f"v_cvt_pk_bf16_f32 v{vP + i}, v{vS + 2 * i}, v{vS + 2 * i + 1}")
    e("s_waitcnt lgkmcnt(0)")
    e("s_nop 1")
    for dt in range(4):
        F = (vF0 if dt < 2 else vF1) + 16 * (dt & 1)
        d = vO + 16 * dt
        for kk in range(4):
            e(f"v_mfma_f32_32x32x16_bf16 v[{d}:{d + 15}], v[{F + 4 * kk}:{F + 4 * kk + 3}], v[{vP + 4 * kk}:{vP + 4 * kk + 3}], v[{d}:{d + 15}]")
    e.label("at_skip")
    for i in range(12):
        e(f"v_xor_b32 v{vaK + i}, 0x10000, v{vaK + i}")
    e(f"s_add_u32 s{sIT}, s{sIT}, 1")
    e(f"s_cmp_le_u32 s{sIT}, s{sQB}")
    e("s_cbranch_scc1 at_loop")
    e(f"s_and_b32 s{sT}, s{sIT}, 1")
    e(f"s_lshl_b32 s{sT}, s{sT}, 16")
    for i in range(12):
        e(f"v_xor_b32 v{vaK + i}, s{sT}, v{vaK + i}")
    e("s_nop 15")
    e("s_nop 7")
    e(f"v_mov_b32 v{vx1}, v{vl}")
    e("s_nop 1")
    e(f"v_permlane32_swap_b32 v{vl}, v{vx1}")
    e("s_nop 1")
    e(f"v_add_f32 v{vl}, v{vl}, v{vx1}")
    e("s_barrier")
    e(f"s_lshl_b32 s{sT}, s{sQS}, 14")
    e(f"v_lshlrev_b32 v{vx0}, 4, v{vL}")
    e(f"v_add_u32 v{vx0}, s{sT}, v{vx0}")
    e(f"s_lshl_b32 s{sT}, s{sQS}, 9")
    e(f"v_lshlrev_b32 v{vx1}, 3, v{vL}")
    e(f"v_add_u32 v{vx1}, s{sT}, v{vx1}")
    e(f"v_add_u32 v{vx1}, 65536, v{vx1}")
    e(f"s_cmp_eq_u32 s{sG}, 0")
    e("s_cbranch_scc1 at_merge0")
    for i in range(16):
        e(f"ds_write_b128 v{vx0}, v[{vO + 4 * i}:{vO + 4 * i + 3}] offset:{i * 1024}")
    e(f"ds_write_b64 v{vx1}, v[{vm}:{vl}]")
    e("s_waitcnt lgkmcnt(0)")
    e("s_barrier")
    e("s_branch at_mergedone")
    e.label("at_merge0")
    e("s_barrier")
    e(f"ds_read_b64 v[{vS}:{vS + 1}], v{vx1}")
    for i in range(16):
        e(f"ds_read_b128 v[{vF0 + 4 * i}:{vF0 + 4 * i + 3}], v{vx0} offset:{i * 1024}")
    e("s_waitcnt lgkmcnt(0)")
    e(f"v_max_f32 v{vt0}, v{vm}, v{vS}")
    e(f"v_sub_f32 v{vt1}, v{vm}, v{vt0}")
    e(f"v_sub_f32 v{vt2}, v{vS}, v{vt0}")
    e(f"v_mul_f32 v{vt1}, s{sC}, v{vt1}")
    e(f"v_mul_f32 v{vt2}, s{sC}, v{vt2}")
    e(f"v_exp_f32 v{vt1}, v{vt1}")
    e(f"v_exp_f32 v{vt2}, v{vt2}")
    e("s_nop 0")
    e(f"v_mul_f32 v{vl}, v{vl}, v{vt1}")
    e(f"v_fmac_f32 v{vl}, v{vS + 1}, v{vt2}")
    e(f"v_rcp_f32 v{vl}, v{vl}")
    e("s_nop 0")
    e(f"v_mul_f32 v{vt1}, v{vt1}, v{vl}")
    e(f"v_mul_f32 v{vt2}, v{vt2}, v{vl}")
    for i in range(64):
        e(f"v_mul_f32 v{vO + i}, v{vO + i}, v{vt1}")
        e(f"v_fmac_f32 v{vO + i}, v{vF0 + i}, v{vt2}")
    for i in range(32):
        e(f"v_cvt_pk_bf16_f32 v{vS + i}, v{vO + 2 * i}, v{vO + 2 * i + 1}")
    for i in range(8):
        e(f"buffer_store_dwordx4 v[{vS + 4 * i}:{vS + 4 * i + 3}], v{vst}, s[16:19], 0 offen offset:{i * 32}")
    e.label("at_mergedone")
    e("s_barrier")
    e(f"s_add_u32 s{sPass}, s{sPass}, 1")
    e(f"s_mov_b32 s{sQB}, s{sJ}")
    e(f"s_cmp_eq_u32 s{sPass}, 1")
    e("s_cbranch_scc1 at_qblock")
    e.label("at_end")
    e("s_endpgm")
    return name, VEND, 256, 131072


def gen_final(e):
    name = "final_kernel"
    kernel_header(e, name)
    NT = 160
    e(f"s_cmp_ge_u32 s2, {NT}")
    e("s_cbranch_scc1 fi_end")
    e(f"s_load_dwordx2 s[32:33], s[0:1], {KA['x']}")
    e(f"s_load_dwordx2 s[34:35], s[0:1], {KA['wo']}")
    e(f"s_load_dwordx2 s[36:37], s[0:1], {KA['w2']}")
    e(f"s_load_dwordx2 s[38:39], s[0:1], {KA['b2']}")
    e(f"s_load_dwordx2 s[40:41], s[0:1], {KA['out']}")
    e(f"s_load_dwordx2 s[44:45], s[0:1], {KA['ws']}")
    e("s_waitcnt lgkmcnt(0)")
    g = Gemm(e, "fi", 128, 64, 2, 2)
    make_srd(e, 4, 34, 4096 * 1280)
    make_srd(e, 8, 44, 2048 * 8192, WS_CTX)
    make_srd(e, 12, 40, 2048 * 1280)
    make_srd(e, 16, 32, 2048 * 1280)
    make_srd(e, 56, 44, 640 * 3456, WS_U)
    make_srd(e, 60, 36, 1728 * 4096)
    make_srd(e, 64, 38, 4096)
    e("s_mul_i32 s46, s2, 205")
    e("s_lshr_b32 s47, s46, 10")
    e("s_mul_i32 s46, s47, 5")
    e("s_sub_u32 s46, s2, s46")
    e("s_lshl_b32 s46, s46, 7")
    e("s_lshl_b32 s47, s47, 6")
    e("s_lshl_b32 s48, s46, 1")
    e("s_lshl_b32 s49, s47, 13")
    e("s_mul_i32 s50, s46, 3456")
    e("s_lshl_b32 s51, s47, 1")
    g.setup_common()
    g.zero_acc()
    g.run_seg(Op('t', 4, 1280, 48, perm=True), Op('k', 8, 8192, 49), 64, True)
    g.run_seg(Op('k', 56, 3456, 50), Op('t', 60, 4096, 51, perm=True), 27, False)
    va = g.v_t1
    t0 = g.out_addr(va, 46, 47, 1280)
    e(f"v_lshl_add_u32 v{va}, v{va}, 3, v{t0}")
    vb = g.v_t2
    e(f"s_mul_i32 s24, s{g.s_wb}, {g.TB * 32}")
    e("s_add_u32 s24, s24, s47")
    e(f"v_and_b32 v{vb}, 31, v{g.v_lane}")
    e(f"v_add_u32 v{vb}, s24, v{vb}")
    e(f"v_lshlrev_b32 v{vb}, 1, v{vb}")
    xb = g.v_fA
    e("s_mov_b32 s52, 0xffff0000")
    for ta in range(g.TA):
        for tb in range(g.TB):
            d = g.v_acc + 16 * (ta * g.TB + tb)
            e(f"buffer_load_ushort v{g.v_t0}, v{vb}, s[64:67], 0 offen offset:{tb * 64}")
            e(f"s_mov_b32 s24, {tb * 32 * 1280}")
            for q in range(4):
                e(f"buffer_load_dwordx2 v[{xb + 2 * q}:{xb + 2 * q + 1}], v{va}, s[16:19], s24 offen offset:{ta * 64 + q * 16}")
            e("s_waitcnt vmcnt(0)")
            e("s_nop 15")
            e(f"v_lshlrev_b32 v{g.v_t0}, 16, v{g.v_t0}")
            for i in range(8):
                t = xb + 8
                e(f"v_lshlrev_b32 v{t}, 16, v{xb + i}")
                e(f"v_and_b32 v{t + 1}, s52, v{xb + i}")
                e(f"v_add_f32 v{t}, v{t}, v{g.v_t0}")
                e(f"v_add_f32 v{t + 1}, v{t + 1}, v{g.v_t0}")
                e(f"v_add_f32 v{t}, v{t}, v{d + 2 * i}")
                e(f"v_add_f32 v{t + 1}, v{t + 1}, v{d + 2 * i + 1}")
                e(f"v_cvt_pk_bf16_f32 v{xb + i}, v{t}, v{t + 1}")
            for q in range(4):
                e(f"buffer_store_dwordx2 v[{xb + 2 * q}:{xb + 2 * q + 1}], v{va}, s[12:15], s24 offen offset:{ta * 64 + q * 16}")
            e("s_nop 1")
    e.label("fi_end")
    e("s_endpgm")
    return name, g.v_end, NT, g.lds


def main():
    e = E()
    launches = []
    body = E()
    descs = E()
    n, v = gen_ln(body)
    kernel_desc(descs, n, v)
    launches.append((n, 512, 256, 0))
    n, v, g, lds = gen_p1(body)
    kernel_desc(descs, n, v)
    launches.append((n, g, 512, lds))
    n, v, g, lds = gen_attn(body)
    kernel_desc(descs, n, v)
    launches.append((n, g, 512, lds))
    n, v, g, lds = gen_final(body)
    kernel_desc(descs, n, v)
    launches.append((n, g, 256, lds))
    for (n, g, b, lds) in launches:
        e.raw(f"; @launch kernel={n} grid=({g},1,1) block=({b},1,1) lds={lds}")
    e.raw('.amdgcn_target "amdgcn-amd-amdhsa--gfx950"')
    out = e.text() + body.text() + descs.text()
    path = sys.argv[1] if len(sys.argv) > 1 else f"cdna_kernels/{KN}.s"
    open(path, "w").write(out)
    print("wrote", path, len(out))


if __name__ == "__main__":
    main()
```

```python
import sys
import math
import os
XP = os.environ.get('XP', '')

KN = "parallel_sum__compressed_kv_cla__mixer_token_mlp__prompt"

WS_XN = 0x0000000
WS_H = 0x0280000
WS_Q = 0x1000000
WS_K = 0x2000000
WS_VT = 0x3000000
WS_U = 0x4000000
WS_CTX = 0x5000000

KA = dict(x=0, ckv=8, wq=16, wuk=24, wuv=32, wo=40, bx=48, w1=56, b1=64, w2=72, b2=80, out=88, dbg=96, ws=104)


class E:
    def __init__(self):
        self.lines = []

    def __call__(self, s):
        self.lines.append("    " + s)

    def label(self, l):
        self.lines.append(l + ":")

    def raw(self, s):
        self.lines.append(s)

    def text(self):
        return "\n".join(self.lines) + "\n"


def vr(a, n=1):
    return f"v{a}" if n == 1 else f"v[{a}:{a + n - 1}]"


def sr(a, n=1):
    return f"s{a}" if n == 1 else f"s[{a}:{a + n - 1}]"


def kernel_header(e, name):
    e.raw(".text")
    e.raw(f".globl {name}")
    e.raw(".p2align 8")
    e.raw(f".type {name},@function")
    e.label(name)


def kernel_desc(e, name, vgpr, sgpr=96):
    acc = (vgpr + 3) // 4 * 4
    e.raw('.section .rodata,"a"')
    e.raw(".p2align 6")
    e.raw(f".amdhsa_kernel {name}")
    e.raw(f"  .amdhsa_next_free_vgpr {vgpr}")
    e.raw(f"  .amdhsa_next_free_sgpr {sgpr}")
    e.raw(f"  .amdhsa_accum_offset {acc}")
    e.raw("  .amdhsa_group_segment_fixed_size 0")
    e.raw("  .amdhsa_kernarg_size 112")
    e.raw("  .amdhsa_user_sgpr_count 2")
    e.raw("  .amdhsa_user_sgpr_kernarg_segment_ptr 1")
    e.raw("  .amdhsa_system_sgpr_workgroup_id_x 1")
    e.raw(".end_amdhsa_kernel")


def make_srd(e, d, ptr, nbytes, off=0):
    if off:
        e(f"s_add_u32 s{d}, s{ptr}, 0x{off:x}")
        e(f"s_addc_u32 s{d + 1}, s{ptr + 1}, 0")
    else:
        e(f"s_mov_b32 s{d}, s{ptr}")
        e(f"s_mov_b32 s{d + 1}, s{ptr + 1}")
    e(f"s_mov_b32 s{d + 2}, 0x{nbytes:x}")
    e(f"s_mov_b32 s{d + 3}, 0x00020000")


def wave_sum(e, v, t):
    for off in (0x041F, 0x081F, 0x101F, 0x201F, 0x401F):
        e(f"ds_swizzle_b32 v{t}, v{v} offset:0x{off:04X}")
        e("s_waitcnt lgkmcnt(0)")
        e(f"v_add_f32 v{v}, v{v}, v{t}")
    e(f"v_mov_b32 v{t}, v{v}")
    e("s_nop 1")
    e(f"v_permlane32_swap_b32 v{t}, v{v}")
    e("s_nop 1")
    e(f"v_add_f32 v{v}, v{v}, v{t}")


def gen_ln(e):
    name = "ln_kernel"
    kernel_header(e, name)
    e("s_cmp_ge_u32 s2, 512")
    e("s_cbranch_scc1 ln_end")
    e(f"s_load_dwordx2 s[4:5], s[0:1], {KA['x']}")
    e(f"s_load_dwordx2 s[6:7], s[0:1], {KA['ws']}")
    e("v_lshrrev_b32 v1, 6, v0")
    e("v_and_b32 v2, 63, v0")
    e("s_lshl_b32 s3, s2, 2")
    e("v_add_u32 v1, s3, v1")
    e("s_movk_i32 s16, 1280")
    e("v_mul_lo_u32 v1, v1, s16")
    e("v_lshl_add_u32 v1, v2, 2, v1")
    e("s_waitcnt lgkmcnt(0)")
    make_srd(e, 8, 4, 2048 * 1280)
    make_srd(e, 12, 6, 2 * 2048 * 1280)
    for i in range(5):
        e(f"buffer_load_dword v{4 + i}, v1, s[8:11], 0 offen offset:{i * 256}")
    e("s_waitcnt vmcnt(0)")
    e("s_mov_b32 s17, 0x3acccccd")
    e("s_mov_b32 s18, 0x3727c5ac")
    e("s_mov_b32 s19, 0xffff0000")

    def ln_pass(dst_off):
        for i in range(5):
            e(f"v_lshlrev_b32 v{10 + 2 * i}, 16, v{4 + i}")
            e(f"v_and_b32 v{11 + 2 * i}, s19, v{4 + i}")
        e("v_add_f32 v20, v10, v11")
        for i in range(2, 10):
            e(f"v_add_f32 v20, v20, v{10 + i}")
        wave_sum(e, 20, 21)
        e("v_mul_f32 v20, s17, v20")
        for i in range(10):
            e(f"v_sub_f32 v{10 + i}, v{10 + i}, v20")
        e("v_mul_f32 v22, v10, v10")
        for i in range(1, 10):
            e(f"v_fmac_f32 v22, v{10 + i}, v{10 + i}")
        wave_sum(e, 22, 21)
        e("v_mov_b32 v23, s18")
        e("v_fmac_f32 v23, s17, v22")
        e("v_rsq_f32 v23, v23")
        e("s_nop 1")
        for i in range(10):
            e(f"v_mul_f32 v{10 + i}, v{10 + i}, v23")
        for i in range(5):
            e(f"v_cvt_pk_bf16_f32 v{4 + i}, v{10 + 2 * i}, v{11 + 2 * i}")
        e("s_mov_b32 s20, 0x%x" % dst_off)
        for i in range(5):
            e(f"buffer_store_dword v{4 + i}, v1, s[12:15], s20 offen offset:{i * 256}")

    ln_pass(WS_XN)
    e("s_nop 4")
    ln_pass(WS_H)
    e.label("ln_end")
    e("s_endpgm")
    return name, 32


class Op:
    def __init__(self, mode, srd, ld, base, perm=False):
        self.mode = mode
        self.srd = srd
        self.ld = ld
        self.base = base
        self.perm = perm


class Gemm:
    def __init__(self, e, tag, BA, BB, WA, WB, vbase=2, NS=2):
        self.e = e
        self.tag = tag
        self.BA, self.BB, self.WA, self.WB = BA, BB, WA, WB
        self.NW = WA * WB
        self.TA = BA // WA // 32
        self.TB = BB // WB // 32
        self.SA = BA * 128
        self.SB = BB * 128
        st = self.SA + self.SB
        self.NS = NS
        self.stage = st
        self.lds = st * NS
        self.nA = self.SA // 1024 // self.NW
        self.nB = self.SB // 1024 // self.NW
        assert self.nA * 1024 * self.NW == self.SA and self.nB * 1024 * self.NW == self.SB
        v = vbase
        self.v_lane = v; v += 1
        self.v_t0 = v; v += 1
        self.v_t1 = v; v += 1
        self.v_t2 = v; v += 1
        self.v_dmaA = v; v += self.nA
        self.v_dmaB = v; v += self.nB
        self.v_adrA = v; v += 4
        self.v_adrB = v; v += 4
        v = (v + 3) // 4 * 4
        self.v_fA = v; v += 2 * 4 * self.TA
        self.v_fB = v; v += 2 * 4 * self.TB
        self.v_acc = v; v += 16 * self.TA * self.TB
        self.v_end = v
        self.s_wave = 20
        self.s_cnt = 21
        self.s_offA = 22
        self.s_offB = 23
        self.s_t = 24
        self.s_wa = 28
        self.s_wb = 29
        self.s_stage = 30
        self.s_rd = 31

    def setup_common(self):
        e = self.e
        e(f"v_and_b32 v{self.v_lane}, 63, v0")
        e(f"v_lshrrev_b32 v{self.v_t0}, 6, v0")
        e("s_nop 0")
        e(f"v_readfirstlane_b32 s{self.s_wave}, v{self.v_t0}")
        e("s_nop 3")
        lw = int(math.log2(self.WA))
        e(f"s_and_b32 s{self.s_wa}, s{self.s_wave}, {self.WA - 1}")
        e(f"s_lshr_b32 s{self.s_wb}, s{self.s_wave}, {lw}")

    def setup_op(self, op, R, n, v_dma, v_adr, s_wcoord, T, lds_base):
        e = self.e
        L, t0, t1, t2 = self.v_lane, self.v_t0, self.v_t1, self.v_t2
        st = self.s_t
        if op.mode == 'k':
            for jj in range(n):
                e(f"s_mul_i32 s{st}, s{self.s_wave}, {n * 8}")
                e(f"s_add_u32 s{st}, s{st}, {jj * 8}")
                e(f"v_lshrrev_b32 v{t0}, 3, v{L}")
                e(f"v_add_u32 v{t0}, s{st}, v{t0}")
                e(f"v_bfe_u32 v{t1}, v{t0}, 1, 3")
                e(f"v_and_b32 v{t2}, 7, v{L}")
                e(f"v_xor_b32 v{t1}, v{t1}, v{t2}")
                e(f"s_mov_b32 s{st + 1}, {op.ld}")
                e(f"v_mul_lo_u32 v{t0}, v{t0}, s{st + 1}")
                e(f"v_lshl_add_u32 v{v_dma + jj}, v{t1}, 4, v{t0}")
            e(f"s_mul_i32 s{st}, s{s_wcoord}, {T * 32}")
            e(f"v_and_b32 v{t0}, 31, v{L}")
            e(f"v_add_u32 v{t0}, s{st}, v{t0}")
            e(f"v_bfe_u32 v{t1}, v{t0}, 1, 3")
            e(f"v_lshrrev_b32 v{t2}, 5, v{L}")
            e(f"v_lshlrev_b32 v{t0}, 7, v{t0}")
            for kk in range(4):
                e(f"v_add_u32 v{v_adr + kk}, {2 * kk}, v{t2}")
                e(f"v_xor_b32 v{v_adr + kk}, v{v_adr + kk}, v{t1}")
                e(f"v_lshl_add_u32 v{v_adr + kk}, v{v_adr + kk}, 4, v{t0}")
                if lds_base:
                    e(f"v_add_u32 v{v_adr + kk}, {lds_base}, v{v_adr + kk}")
        else:
            rb = 2 * R
            lrb = int(math.log2(rb))
            for jj in range(n):
                e(f"s_mul_i32 s{st}, s{self.s_wave}, {n * 1024}")
                e(f"s_add_u32 s{st}, s{st}, {jj * 1024}")
                e(f"v_lshlrev_b32 v{t0}, 4, v{L}")
                e(f"v_add_u32 v{t0}, s{st}, v{t0}")
                e(f"v_lshrrev_b32 v{t1}, {lrb}, v{t0}")
                e(f"v_and_b32 v{t0}, {rb - 1}, v{t0}")
                if rb >= 256:
                    e(f"v_and_b32 v{t2}, 3, v{t1}")
                else:
                    e(f"v_bfe_u32 v{t2}, v{t1}, 1, 1")
                e(f"v_lshlrev_b32 v{t2}, 6, v{t2}")
                e(f"v_xor_b32 v{t0}, v{t0}, v{t2}")
                e(f"s_mov_b32 s{st + 1}, {op.ld}")
                e(f"v_mul_lo_u32 v{t1}, v{t1}, s{st + 1}")
                e(f"v_add_u32 v{v_dma + jj}, v{t0}, v{t1}")
            e(f"v_lshrrev_b32 v{t0}, 5, v{L}")
            e(f"v_lshlrev_b32 v{t0}, {2 if op.perm else 3}, v{t0}")
            e(f"v_bfe_u32 v{t1}, v{L}, 2, 2")
            e(f"v_add_u32 v{t0}, v{t0}, v{t1}")
            e(f"v_lshlrev_b32 v{t0}, {lrb}, v{t0}")
            e(f"v_bfe_u32 v{t2}, v{L}, 4, 1")
            e(f"v_lshlrev_b32 v{t2}, 5, v{t2}")
            e(f"v_add_u32 v{t0}, v{t0}, v{t2}")
            e(f"v_and_b32 v{t2}, 3, v{L}")
            e(f"v_lshl_add_u32 v{t0}, v{t2}, 3, v{t0}")
            if rb < 256:
                e(f"v_bfe_u32 v{t1}, v{L}, 3, 1")
            for t in range(T):
                e(f"s_mul_i32 s{st}, s{s_wcoord}, {T}")
                e(f"s_add_u32 s{st}, s{st}, {t}")
                e(f"v_xor_b32 v{t2}, s{st}, v{t1}")
                e(f"v_lshl_add_u32 v{v_adr + t}, v{t2}, 6, v{t0}")
                if lds_base:
                    e(f"v_add_u32 v{v_adr + t}, {lds_base}, v{v_adr + t}")

    def n_adr(self, op, T):
        return 4 if op.mode == 'k' else T

    def issue_dma(self, op, n, v_dma, lds_base, s_off):
        e = self.e
        st = self.s_t
        for jj in range(n):
            e(f"s_mul_i32 s{st}, s{self.s_wave}, {n * 1024}")
            e(f"s_add_u32 s{st}, s{st}, s{self.s_stage}")
            e(f"s_add_u32 m0, s{st}, {lds_base + jj * 1024}")
            e("s_nop 0")
            e(f"buffer_load_dwordx4 v{v_dma + jj}, s[{op.srd}:{op.srd + 3}], s{s_off} offen lds")

    def read_frags(self, op, R, T, v_adr, v_f, kk):
        e = self.e
        cnt = 0
        if op.mode == 'k':
            for t in range(T):
                e(f"ds_read_b128 v[{v_f + 4 * t}:{v_f + 4 * t + 3}], v{v_adr + kk} offset:{t * 4096}")
                cnt += 1
        else:
            rb = 2 * R
            hstep = 8 if op.perm else 4
            for t in range(T):
                for half in range(2):
                    off = (kk * 16 + half * hstep) * rb
                    e(f"ds_read_b64_tr_b16 v[{v_f + 4 * t + 2 * half}:{v_f + 4 * t + 2 * half + 1}], v{v_adr + t} offset:{off}")
                    cnt += 1
        return cnt

    def zero_acc(self):
        for i in range(16 * self.TA * self.TB):
            self.e(f"v_mov_b32 v{self.v_acc + i}, 0")

    def run_seg(self, A, B, nk, first):
        e = self.e
        tag = self.tag
        NS = self.NS
        self.seg = getattr(self, "seg", 0) + 1
        lab = f"{tag}_s{self.seg}"
        self.setup_op(A, self.BA, self.nA, self.v_dmaA, self.v_adrA, self.s_wa, self.TA, 0)
        self.setup_op(B, self.BB, self.nB, self.v_dmaB, self.v_adrB, self.s_wb, self.TB, self.SA)
        stepA = 128 if A.mode == 'k' else 64 * A.ld
        stepB = 128 if B.mode == 'k' else 64 * B.ld
        nd = self.nA + self.nB
        assert nk >= NS
        e(f"s_mov_b32 s{self.s_offA}, s{A.base}")
        e(f"s_mov_b32 s{self.s_offB}, s{B.base}")
        e(f"s_mov_b32 s{self.s_stage}, 0")
        e(f"s_mov_b32 s{self.s_rd}, 0")
        if not first:
            e("s_barrier")

        def dma_next():
            self.issue_dma(A, self.nA, self.v_dmaA, 0, self.s_offA)
            self.issue_dma(B, self.nB, self.v_dmaB, self.SA, self.s_offB)
            e(f"s_add_u32 s{self.s_offA}, s{self.s_offA}, {stepA}")
            e(f"s_add_u32 s{self.s_offB}, s{self.s_offB}, {stepB}")
            e(f"s_add_u32 s{self.s_stage}, s{self.s_stage}, {self.stage}")
            e(f"s_cmp_eq_u32 s{self.s_stage}, {self.stage * NS}")
            e(f"s_cselect_b32 s{self.s_stage}, 0, s{self.s_stage}")

        for i in range(NS - 1):
            dma_next()
        szA = 4 * self.TA
        szB = 4 * self.TB

        def reads(kk):
            buf = kk & 1
            c = self.read_frags(A, self.BA, self.TA, self.v_adrA, self.v_fA + buf * szA, kk)
            c += self.read_frags(B, self.BB, self.TB, self.v_adrB, self.v_fB + buf * szB, kk)
            return c

        def compute():
            reads(0)
            for kk in range(4):
                nxt = reads(kk + 1) if kk < 3 else 0
                e(f"s_waitcnt lgkmcnt({nxt})")
                buf = kk & 1
                for ta in range(self.TA):
                    for tb in range(self.TB):
                        d = self.v_acc + 16 * (ta * self.TB + tb)
                        a = self.v_fA + buf * szA + 4 * ta
                        b = self.v_fB + buf * szB + 4 * tb
                        e(f"v_mfma_f32_32x32x16_bf16 v[{d}:{d + 15}], v[{a}:{a + 3}], v[{b}:{b + 3}], v[{d}:{d + 15}]")
            st = self.s_t
            e(f"s_add_u32 s{st}, s{self.s_rd}, {self.stage}")
            e(f"s_cmp_eq_u32 s{st}, {self.stage * NS}")
            e(f"s_cselect_b32 s{st}, 0, s{st}")
            e(f"s_sub_u32 s{st + 1}, s{st}, s{self.s_rd}")
            e(f"s_mov_b32 s{self.s_rd}, s{st}")
            for i in range(self.n_adr(A, self.TA)):
                e(f"v_add_u32 v{self.v_adrA + i}, s{st + 1}, v{self.v_adrA + i}")
            for i in range(self.n_adr(B, self.TB)):
                e(f"v_add_u32 v{self.v_adrB + i}, s{st + 1}, v{self.v_adrB + i}")

        e(f"s_mov_b32 s{self.s_cnt}, {nk - (NS - 1)}")
        e.label(f"{lab}_loop")
        e(f"s_waitcnt vmcnt({(NS - 2) * nd})")
        e("s_barrier")
        dma_next()
        compute()
        e(f"s_sub_u32 s{self.s_cnt}, s{self.s_cnt}, 1")
        e(f"s_cmp_lg_u32 s{self.s_cnt}, 0")
        e(f"s_cbranch_scc1 {lab}_loop")
        for i in range(NS - 1):
            e(f"s_waitcnt vmcnt({(NS - 2 - i) * nd})")
            e("s_barrier")
            compute()

    def out_addr(self, v_dst, s_rowA0, s_colB0, ld_out):
        e = self.e
        L, t0, st = self.v_lane, self.v_t0, self.s_t
        e(f"s_mul_i32 s{st}, s{self.s_wb}, {self.TB * 32}")
        e(f"s_add_u32 s{st}, s{st}, s{s_colB0}")
        e(f"v_and_b32 v{t0}, 31, v{L}")
        e(f"v_add_u32 v{t0}, s{st}, v{t0}")
        e(f"s_mov_b32 s{st + 1}, {ld_out}")
        e(f"v_mul_lo_u32 v{t0}, v{t0}, s{st + 1}")
        e(f"s_mul_i32 s{st}, s{self.s_wa}, {self.TA * 32}")
        e(f"s_add_u32 s{st}, s{st}, s{s_rowA0}")
        e(f"s_lshl_b32 s{st}, s{st}, 1")
        e(f"v_add_u32 v{t0}, s{st}, v{t0}")
        e(f"v_lshrrev_b32 v{v_dst}, 5, v{L}")
        return t0

    def epi_tile(self, srd_out, s_base):
        e = self.e
        va, t0, L = self.v_t1, self.v_t0, self.v_lane
        e(f"v_and_b32 v{t0}, 31, v{L}")
        e(f"v_lshlrev_b32 v{t0}, 8, v{t0}")
        e(f"v_add_u32 v{t0}, s{s_base}, v{t0}")
        e(f"v_lshrrev_b32 v{va}, 5, v{L}")
        e(f"v_lshl_add_u32 v{va}, v{va}, 4, v{t0}")
        e("s_nop 15")
        e("s_nop 7")
        pk = self.v_fA
        nb = 0
        for tb in range(self.TB):
            e(f"s_mov_b32 s{self.s_t}, {tb * 8192}")
            for ta in range(self.TA):
                d = self.v_acc + 16 * (ta * self.TB + tb)
                p = pk + 8 * (nb & 1)
                nb += 1
                for i in range(8):
                    e(f"v_cvt_pk_bf16_f32 v{p + i}, v{d + 2 * i}, v{d + 2 * i + 1}")
                e(f"buffer_store_dwordx4 v[{p}:{p + 3}], v{va}, s[{srd_out}:{srd_out + 3}], s{self.s_t} offen offset:{ta * 64}")
                e(f"buffer_store_dwordx4 v[{p + 4}:{p + 7}], v{va}, s[{srd_out}:{srd_out + 3}], s{self.s_t} offen offset:{ta * 64 + 32}")
                e("s_nop 1")

    def epi_perm(self, srd_out, s_rowA0, s_colB0, ld_out):
        e = self.e
        va = self.v_t1
        t0 = self.out_addr(va, s_rowA0, s_colB0, ld_out)
        e(f"v_lshl_add_u32 v{va}, v{va}, 4, v{t0}")
        e("s_nop 15")
        e("s_nop 7")
        pk = self.v_fA
        nb = 0
        for ta in range(self.TA):
            for tb in range(self.TB):
                d = self.v_acc + 16 * (ta * self.TB + tb)
                p = pk + 8 * (nb & 1)
                nb += 1
                for i in range(8):
                    e(f"v_cvt_pk_bf16_f32 v{p + i}, v{d + 2 * i}, v{d + 2 * i + 1}")
                off = tb * 32 * ld_out + ta * 64
                assert off + 32 < 4096 or True
                if off + 32 < 4096:
                    e(f"buffer_store_dwordx4 v[{p}:{p + 3}], v{va}, s[{srd_out}:{srd_out + 3}], 0 offen offset:{off}")
                    e(f"buffer_store_dwordx4 v[{p + 4}:{p + 7}], v{va}, s[{srd_out}:{srd_out + 3}], 0 offen offset:{off + 32}")
                else:
                    e(f"s_mov_b32 s{self.s_t}, {tb * 32 * ld_out}")
                    e(f"buffer_store_dwordx4 v[{p}:{p + 3}], v{va}, s[{srd_out}:{srd_out + 3}], s{self.s_t} offen offset:{ta * 64}")
                    e(f"buffer_store_dwordx4 v[{p + 4}:{p + 7}], v{va}, s[{srd_out}:{srd_out + 3}], s{self.s_t} offen offset:{ta * 64 + 32}")
                e("s_nop 1")


P1_NU = 35
P1_NQ = 128


def gen_p1(e):
    name = "proj_kernel"
    kernel_header(e, name)
    ntot = P1_NU + 3 * P1_NQ
    e(f"s_cmp_ge_u32 s2, {ntot}")
    e("s_cbranch_scc1 p1_end")
    e(f"s_load_dwordx2 s[32:33], s[0:1], {KA['ckv']}")
    e(f"s_load_dwordx2 s[34:35], s[0:1], {KA['wq']}")
    e(f"s_load_dwordx2 s[36:37], s[0:1], {KA['wuk']}")
    e(f"s_load_dwordx2 s[38:39], s[0:1], {KA['wuv']}")
    e(f"s_load_dwordx2 s[40:41], s[0:1], {KA['w1']}")
    e(f"s_load_dwordx2 s[42:43], s[0:1], {KA['b1']}")
    e(f"s_load_dwordx2 s[44:45], s[0:1], {KA['ws']}")
    e("s_waitcnt lgkmcnt(0)")
    e(f"s_cmp_lt_u32 s2, {P1_NU}")
    e("s_cbranch_scc1 p1_u")
    e(f"s_cmp_lt_u32 s2, {P1_NU + P1_NQ}")
    e("s_cbranch_scc1 p1_q")
    e(f"s_cmp_lt_u32 s2, {P1_NU + 2 * P1_NQ}")
    e("s_cbranch_scc1 p1_k")
    e("s_branch p1_v")
    vmax = 0

    for tag, wptr, K, xsrc, xld, wsoff, id0 in (("p1_q", 34, 640, 'xn', 1280, WS_Q, P1_NU),
                                                 ("p1_k", 36, 512, 'ckv', 1024, WS_K, P1_NU + P1_NQ)):
        e.label(tag)
        g = Gemm(e, tag, 256, 256, 2, 4)
        vmax = max(vmax, g.v_end)
        make_srd(e, 4, wptr, K * 8192)
        if xsrc == 'xn':
            make_srd(e, 8, 44, 2048 * 1280, WS_XN)
        else:
            make_srd(e, 8, 32, 2048 * 1024)
        make_srd(e, 12, 44, 2048 * 8192, wsoff)
        e(f"s_sub_u32 s3, s2, {id0}")
        e("s_and_b32 s46, s3, 15")
        e("s_lshr_b32 s47, s3, 4")
        e("s_lshl_b32 s46, s46, 8")
        e("s_lshl_b32 s47, s47, 8")
        e("s_lshl_b32 s48, s46, 1")
        e(f"s_mul_i32 s49, s47, {xld}")
        g.setup_common()
        g.zero_acc()
        g.run_seg(Op('t', 4, 8192, 48), Op('k', 8, xld, 49), K // 64, True)
        e(f"s_lshr_b32 s50, s46, 7")
        e(f"s_add_u32 s50, s50, s{g.s_wa}")
        e("s_lshl_b32 s50, s50, 19")
        e(f"s_lshl_b32 s51, s{g.s_wb}, 6")
        e("s_add_u32 s51, s51, s47")
        e("s_lshl_b32 s51, s51, 8")
        e("s_add_u32 s50, s50, s51")
        g.epi_tile(12, 50)
        e("s_endpgm")

    e.label("p1_v")
    g = Gemm(e, "p1_v", 256, 256, 2, 4)
    vmax = max(vmax, g.v_end)
    make_srd(e, 4, 32, 2048 * 1024)
    make_srd(e, 8, 38, 512 * 8192)
    make_srd(e, 12, 44, 4096 * 4096, WS_VT)
    e(f"s_sub_u32 s3, s2, {P1_NU + 2 * P1_NQ}")
    e("s_and_b32 s46, s3, 7")
    e("s_lshr_b32 s47, s3, 3")
    e("s_lshl_b32 s46, s46, 8")
    e("s_lshl_b32 s47, s47, 8")
    e("s_mul_i32 s48, s46, 1024")
    e("s_lshl_b32 s49, s47, 1")
    g.setup_common()
    g.zero_acc()
    g.run_seg(Op('k', 4, 1024, 48), Op('t', 8, 8192, 49), 8, True)
    e("s_lshr_b32 s50, s47, 7")
    e(f"s_lshr_b32 s51, s{g.s_wb}, 1")
    e("s_add_u32 s50, s50, s51")
    e("s_lshl_b32 s50, s50, 19")
    e("s_lshr_b32 s51, s46, 7")
    e(f"s_add_u32 s51, s51, s{g.s_wa}")
    e("s_lshl_b32 s51, s51, 15")
    e("s_add_u32 s50, s50, s51")
    e(f"s_and_b32 s51, s{g.s_wb}, 1")
    e("s_lshl_b32 s51, s51, 14")
    e("s_add_u32 s50, s50, s51")
    g.epi_tile(12, 50)
    e("s_endpgm")

    e.label("p1_u")
    g = Gemm(e, "p1_u", 256, 128, 4, 2)
    vmax = max(vmax, g.v_end)
    make_srd(e, 4, 40, 2048 * 3456)
    make_srd(e, 8, 44, 2048 * 1280, WS_H)
    make_srd(e, 12, 44, 640 * 3456, WS_U)
    make_srd(e, 16, 42, 3456)
    e("s_mul_i32 s46, s2, 37")
    e("s_lshr_b32 s47, s46, 8")
    e("s_mul_i32 s46, s47, 7")
    e("s_sub_u32 s46, s2, s46")
    e("s_lshl_b32 s46, s46, 8")
    e("s_lshl_b32 s47, s47, 7")
    e("s_lshl_b32 s48, s46, 1")
    e("s_lshl_b32 s49, s47, 1")
    g.setup_common()
    g.zero_acc()
    g.run_seg(Op('t', 4, 3456, 48), Op('t', 8, 1280, 49), 32, True)
    va = g.v_t1
    t0 = g.out_addr(va, 46, 47, 3456)
    e(f"v_lshl_add_u32 v{va}, v{va}, 4, v{t0}")
    vb = g.v_t2
    e(f"s_mul_i32 s24, s{g.s_wa}, {g.TA * 32}")
    e("s_add_u32 s50, s24, s46")
    e("s_lshl_b32 s24, s50, 1")
    e(f"v_lshrrev_b32 v{vb}, 5, v{g.v_lane}")
    e(f"v_lshlrev_b32 v{vb}, 3, v{vb}")
    e(f"v_add_u32 v{vb}, s24, v{vb}")
    e("s_nop 15")
    e("s_nop 7")
    e("s_mov_b32 s51, 0xffff0000")
    e("s_mov_b32 s52, 0x3d372713")
    e("s_mov_b32 s53, 0xc0135761")
    bias = g.v_fA
    bf = g.v_fA + 8
    tmp = g.v_fA + 24
    for ta in range(g.TA):
        e(f"s_add_u32 s24, s50, {ta * 32}")
        e("s_cmp_ge_u32 s24, 1728")
        e(f"s_cbranch_scc1 p1_u_skip{ta}")
        for q in range(4):
            e(f"buffer_load_dwordx2 v[{bias + 2 * q}:{bias + 2 * q + 1}], v{vb}, s[16:19], 0 offen offset:{ta * 64 + q * 16}")
        e("s_waitcnt vmcnt(0)")
        for i in range(8):
            e(f"v_lshlrev_b32 v{bf + 2 * i}, 16, v{bias + i}")
            e(f"v_and_b32 v{bf + 2 * i + 1}, s51, v{bias + i}")
        for tb in range(g.TB):
            d = g.v_acc + 16 * (ta * g.TB + tb)
            for i in range(16):
                x = d + i
                e(f"v_add_f32 v{x}, v{x}, v{bf + i}")
                e(f"v_mul_f32 v{tmp}, v{x}, v{x}")
                e(f"v_fma_f32 v{tmp}, v{tmp}, s52, 1.0")
                e(f"v_mul_f32 v{tmp}, v{tmp}, v{x}")
                e(f"v_mul_f32 v{tmp}, s53, v{tmp}")
                e(f"v_exp_f32 v{tmp}, v{tmp}")
                e("s_nop 0")
                e(f"v_add_f32 v{tmp}, 1.0, v{tmp}")
                e(f"v_rcp_f32 v{tmp}, v{tmp}")
                e("s_nop 0")
                e(f"v_mul_f32 v{x}, v{x}, v{tmp}")
            p = bias
            for i in range(8):
                e(f"v_cvt_pk_bf16_f32 v{p + i}, v{d + 2 * i}, v{d + 2 * i + 1}")
            e(f"s_mov_b32 s24, {tb * 32 * 3456}")
            e(f"buffer_store_dwordx4 v[{p}:{p + 3}], v{va}, s[12:15], s24 offen offset:{ta * 64}")
            e(f"buffer_store_dwordx4 v[{p + 4}:{p + 7}], v{va}, s[12:15], s24 offen offset:{ta * 64 + 32}")
            e("s_nop 1")
        e.label(f"p1_u_skip{ta}")
    e.label("p1_end")
    e("s_endpgm")
    return name, vmax, ntot, 131072


def gen_attn(e):
    name = "attn_kernel"
    kernel_header(e, name)
    e("s_cmp_ge_u32 s2, 256")
    e("s_cbranch_scc1 at_end")
    e(f"s_load_dwordx2 s[44:45], s[0:1], {KA['ws']}")
    e(f"s_load_dwordx2 s[60:61], s[0:1], {KA['dbg']}")
    nst = [0]
    if 'wgt' in XP:
        e("s_memrealtime s[90:91]")

    def stamp():
        if 'stamp' in XP and nst[0] < 12:
            e(f"s_memtime s[{64 + 2 * nst[0]}:{65 + 2 * nst[0]}]")
            nst[0] += 1
    vL, vt0, vt1, vt2 = 1, 2, 3, 4
    vdK, vdV = 6, 10
    vaK, vaV = 14, 22
    vm, vl, vmask, vst = 26, 27, 28, 29
    valpha, vmc, vx0, vx1 = 30, 31, 32, 33
    vQ = 36
    vS = 68
    vP = 100
    vF0 = 116
    vF1 = 148
    vO = 180
    VEND = 244
    sW, sG, sQS, sH, sJ, sQB, sIT, sKoff, sVoff, sStage, sT, sC, sPass, sQ0 = 20, 21, 22, 23, 24, 25, 26, 27, 28, 29, 30, 34, 35, 36
    sVst, sKrd, sVrd = 37, 38, 39
    e(f"v_and_b32 v{vL}, 63, v0")
    e(f"v_lshrrev_b32 v{vt0}, 6, v0")
    e("s_nop 0")
    e(f"v_readfirstlane_b32 s{sW}, v{vt0}")
    e("s_nop 3")
    e(f"s_lshr_b32 s{sG}, s{sW}, 2")
    e(f"s_and_b32 s{sQS}, s{sW}, 3")
    e("s_and_b32 s3, s2, 7")
    e(f"s_lshr_b32 s{sT}, s2, 3")
    e(f"s_lshr_b32 s{sH}, s{sT}, 3")
    e(f"s_lshl_b32 s3, s3, 2")
    e(f"s_add_u32 s{sH}, s{sH}, s3")
    e(f"s_and_b32 s{sJ}, s{sT}, 7")
    e("s_waitcnt lgkmcnt(0)")
    make_srd(e, 4, 44, 2048 * 8192, WS_Q)
    make_srd(e, 8, 44, 2048 * 8192, WS_K)
    make_srd(e, 12, 44, 4096 * 4096, WS_VT)
    make_srd(e, 16, 44, 2048 * 8192, WS_CTX)
    e(f"s_mov_b32 s{sC}, 0x3e0293ee")
    for jj in range(4):
        e(f"s_lshl_b32 s{sT}, s{sW}, 4")
        e(f"s_add_u32 s{sT}, s{sT}, {jj * 4}")
        e(f"v_lshrrev_b32 v{vt0}, 4, v{vL}")
        e(f"v_add_u32 v{vt0}, s{sT}, v{vt0}")
        e(f"v_xor_b32 v{vt1}, v{vt0}, v{vL}")
        e(f"v_and_b32 v{vt1}, 15, v{vt1}")
        e(f"v_lshlrev_b32 v{vt1}, 4, v{vt1}")
        e(f"v_lshl_add_u32 v{vdK + jj}, v{vt0}, 8, v{vt1}")
        if jj:
            e(f"v_subrev_u32 v{vdK + jj}, {jj * 1024}, v{vdK + jj}")
        e(f"v_mov_b32 v{vdV + jj}, v{vdK + jj}")
    e(f"v_and_b32 v{vt0}, 31, v{vL}")
    e(f"v_lshrrev_b32 v{vt1}, 5, v{vL}")
    e(f"v_and_b32 v{vt2}, 15, v{vL}")
    e(f"v_xor_b32 v{vt2}, v{vt2}, v{vt1}")
    e(f"v_lshlrev_b32 v{vt2}, 4, v{vt2}")
    e(f"s_lshl_b32 s{sT}, s{sG}, 6")
    e(f"v_add_u32 v{vx0}, s{sT}, v{vt0}")
    e(f"v_lshl_add_u32 v{vx0}, v{vx0}, 8, v{vt2}")
    for kk in range(8):
        e(f"v_xor_b32 v{vaK + kk}, {kk * 32}, v{vx0}")
    e(f"v_lshl_add_u32 v{vx0}, v{vt0}, 8, v{vt2}")
    e(f"v_add_u32 v{vx0}, 65536, v{vx0}")
    e(f"s_lshl_b32 s{sT}, s{sG}, 7")
    e(f"v_xor_b32 v{vx0}, s{sT}, v{vx0}")
    for kk in range(4):
        e(f"v_xor_b32 v{vaV + kk}, {kk * 32}, v{vx0}")
    e(f"s_lshl_b32 s{sT}, s{sQS}, 5")
    e(f"s_lshl_b32 s{sT + 1}, s{sG}, 6")
    e(f"s_sub_u32 s{sT}, s{sT}, s{sT + 1}")
    e(f"v_add_u32 v{vmask}, s{sT}, v{vt0}")
    e(f"v_lshlrev_b32 v{vt1}, 2, v{vt1}")
    e(f"v_sub_u32 v{vmask}, v{vmask}, v{vt1}")
    e(f"s_mov_b32 s{sPass}, 0")
    e(f"s_sub_u32 s{sQB}, 15, s{sJ}")
    e.label("at_qblock")
    e(f"s_lshl_b32 s{sQ0}, s{sQB}, 7")
    e(f"s_lshl_b32 s{sT}, s{sQS}, 5")
    e(f"s_add_u32 s{sT}, s{sT}, s{sQ0}")
    e(f"v_and_b32 v{vt0}, 31, v{vL}")
    e(f"v_add_u32 v{vt0}, s{sT}, v{vt0}")
    e(f"v_lshrrev_b32 v{vt1}, 5, v{vL}")
    e(f"v_lshlrev_b32 v{vt1}, 4, v{vt1}")
    e(f"v_lshl_add_u32 v{vt2}, v{vt0}, 8, v{vt1}")
    e(f"v_lshl_add_u32 v{vt0}, v{vt0}, 13, v{vt1}")
    e(f"s_lshl_b32 s{sT}, s{sH}, 8")
    e(f"v_add_u32 v{vst}, s{sT}, v{vt0}")
    e(f"s_lshl_b32 s{sT}, s{sH}, 19")
    for kk in range(8):
        e(f"buffer_load_dwordx4 v[{vQ + 4 * kk}:{vQ + 4 * kk + 3}], v{vt2}, s[4:7], s{sT} offen offset:{kk * 32}")
    e(f"v_mov_b32 v{vm}, 0xf149f2ca")
    e(f"v_mov_b32 v{vl}, 0")
    for i in range(64):
        e(f"v_mov_b32 v{vO + i}, 0")
    e(f"s_lshl_b32 s{sKoff}, s{sH}, 19")
    e(f"s_lshl_b32 s{sVoff}, s{sH}, 19")
    e(f"s_mov_b32 s{sStage}, 0")
    e(f"s_mov_b32 s{sVst}, 0")
    e(f"s_mov_b32 s{sKrd}, 0")
    e(f"s_mov_b32 s{sVrd}, 0")
    e(f"s_mov_b32 s{sIT}, 0")

    sDK, sDV, sD = 40, 41, 42

    def dma_setup():
        e(f"s_lshl_b32 s{sT}, s{sW}, 12")
        e(f"s_add_u32 s{sDK}, s{sT}, s{sStage}")
        e(f"s_add_u32 s{sDV}, s{sT}, s{sVst}")
        e(f"s_add_u32 s{sDV}, s{sDV}, 65536")

    def dma_piece(i):
        jj = i & 3
        if i == 0:
            e(f"s_mov_b32 m0, s{sDK}")
            e("s_nop 0")
        if i == 4:
            e(f"s_mov_b32 m0, s{sDV}")
            e("s_nop 0")
        if i < 4:
            e(f"buffer_load_dwordx4 v{vdK + jj}, s[8:11], s{sKoff} offen offset:{jj * 1024} lds")
        else:
            e(f"buffer_load_dwordx4 v{vdV + jj}, s[12:15], s{sVoff} offen offset:{jj * 1024} lds")

    def dma_advance():
        e(f"s_add_u32 s{sKoff}, s{sKoff}, 32768")
        e(f"s_add_u32 s{sVoff}, s{sVoff}, 32768")
        e(f"s_xor_b32 s{sStage}, s{sStage}, 32768")
        e(f"s_add_u32 s{sVst}, s{sVst}, 32768")
        e(f"s_cmp_eq_u32 s{sVst}, 98304")
        e(f"s_cselect_b32 s{sVst}, 0, s{sVst}")

    def dma():
        dma_setup()
        for i in range(8):
            dma_piece(i)
        dma_advance()

    pcnt = [0]

    def cond_piece(i):
        pcnt[0] += 1
        lab = f"at_np{pcnt[0]}"
        e(f"s_cmp_eq_u32 s{sD}, 0")
        e(f"s_cbranch_scc1 {lab}")
        dma_piece(i)
        if i == 7:
            dma_advance()
        e.label(lab)

    def top(tag):
        e("s_waitcnt vmcnt(0)")
        e("s_barrier")
        e(f"s_cmp_lg_u32 s{sIT}, s{sQB}")
        e(f"s_cselect_b32 s{sD}, 1, 0")
        dma_setup()

    def kreads(t):
        F = vF0 if t == 0 else vF1
        for kk in range(8):
            e(f"ds_read_b128 v[{F + 4 * kk}:{F + 4 * kk + 3}], v{vaK + kk} offset:{t * 8192}")

    def qk_mfma(t, pieces=()):
        F = vF0 if t == 0 else vF1
        d = vS + 16 * t
        pieces = list(pieces)
        for kk in range(8):
            c = "0" if kk == 0 else f"v[{d}:{d + 15}]"
            e(f"v_mfma_f32_32x32x16_bf16 v[{d}:{d + 15}], v[{F + 4 * kk}:{F + 4 * kk + 3}], v[{vQ + 4 * kk}:{vQ + 4 * kk + 3}], {c}")
            if pieces and kk & 1:
                cond_piece(pieces.pop(0))

    def k_adv():
        for i in range(8):
            e(f"v_xor_b32 v{vaK + i}, 0x8000, v{vaK + i}")
        e(f"s_xor_b32 s{sKrd}, s{sKrd}, 32768")

    def vreads():
        for dt in range(4):
            F = (vF0 if dt < 2 else vF1) + 16 * (dt & 1)
            for kk in range(4):
                e(f"ds_read_b128 v[{F + 4 * kk}:{F + 4 * kk + 3}], v{vaV + kk} offset:{dt * 8192}")
        e(f"s_add_u32 s{sT}, s{sVrd}, 32768")
        e(f"s_cmp_eq_u32 s{sT}, 98304")
        e(f"s_cselect_b32 s{sT}, 0, s{sT}")
        e(f"s_sub_u32 s{sT + 1}, s{sT}, s{sVrd}")
        e(f"s_mov_b32 s{sVrd}, s{sT}")
        for i in range(4):
            e(f"v_add_u32 v{vaV + i}, s{sT + 1}, v{vaV + i}")

    def pv_mfma(dts, pieces=()):
        pieces = list(pieces)
        for dt in dts:
            F = (vF0 if dt < 2 else vF1) + 16 * (dt & 1)
            d = vO + 16 * dt
            for kk in range(4):
                e(f"v_mfma_f32_32x32x16_bf16 v[{d}:{d + 15}], v[{F + 4 * kk}:{F + 4 * kk + 3}], v[{vP + 4 * kk}:{vP + 4 * kk + 3}], v[{d}:{d + 15}]")
                if pieces and kk & 1:
                    cond_piece(pieces.pop(0))

    def mask():
        e(f"v_mov_b32 v{vx0}, 0xf149f2ca")
        for t in range(2):
            for r in range(16):
                cst = t * 32 + (r & 3) + 8 * (r >> 2)
                e(f"v_cmp_gt_i32 vcc, {cst}, v{vmask}")
                e("s_nop 1")
                e(f"v_cndmask_b32 v{vS + 16 * t + r}, v{vS + 16 * t + r}, v{vx0}, vcc")

    def softmax(tag, with_dma=False):
        e("s_setprio 1")
        e(f"v_max3_f32 v{vx0}, v{vS}, v{vS + 1}, v{vS + 2}")
        for i in range(3, 31, 2):
            e(f"v_max3_f32 v{vx0}, v{vx0}, v{vS + i}, v{vS + i + 1}")
        e(f"v_max_f32 v{vx0}, v{vx0}, v{vS + 31}")
        e(f"v_mov_b32 v{vx1}, v{vx0}")
        e("s_nop 1")
        e(f"v_permlane32_swap_b32 v{vx0}, v{vx1}")
        e("s_nop 1")
        e(f"v_max3_f32 v{vx0}, v{vx0}, v{vx1}, v{vm}")
        e(f"v_sub_f32 v{valpha}, v{vm}, v{vx0}")
        e(f"v_mul_f32 v{valpha}, s{sC}, v{valpha}")
        e(f"v_cmp_gt_f32 vcc, -8.0, v{valpha}")
        e("s_nop 4")
        e(f"s_cbranch_vccz {tag}_norescale")
        e(f"v_exp_f32 v{valpha}, v{valpha}")
        e(f"v_mov_b32 v{vm}, v{vx0}")
        e(f"v_mul_f32 v{vl}, v{vl}, v{valpha}")
        for i in range(64):
            e(f"v_mul_f32 v{vO + i}, v{vO + i}, v{valpha}")
        e.label(f"{tag}_norescale")
        e(f"v_mul_f32 v{vmc}, s{sC}, v{vm}")
        for i in range(32):
            e(f"v_fma_f32 v{vS + i}, v{vS + i}, s{sC}, -v{vmc}")
            e(f"v_exp_f32 v{vS + i}, v{vS + i}")
            if with_dma and i % 4 == 3:
                cond_piece(i // 4)
        vreads()
        e(f"v_add_f32 v{vx0}, v{vS}, v{vS + 1}")
        e(f"v_add_f32 v{vx1}, v{vS + 2}, v{vS + 3}")
        for i in range(4, 32, 2):
            e(f"v_add_f32 v{vx0}, v{vx0}, v{vS + i}")
            e(f"v_add_f32 v{vx1}, v{vx1}, v{vS + i + 1}")
        e(f"v_add_f32 v{vl}, v{vl}, v{vx0}")
        e(f"v_add_f32 v{vl}, v{vl}, v{vx1}")
        for i in range(16):
            e(f"v_cvt_pk_bf16_f32 v{vP + i}, v{vS + 2 * i}, v{vS + 2 * i + 1}")
        e("s_setprio 0")

    def pv_qk(with_pv, with_dma):
        pc = list(range(8)) if with_dma else []
        if with_pv:
            e("s_waitcnt lgkmcnt(0)")
            e("s_nop 1")
            pv_mfma((0, 1), pc[0:4])
            kreads(0)
            pv_mfma((2, 3), pc[4:8])
            kreads(1)
            e("s_waitcnt lgkmcnt(8)")
            qk_mfma(0)
            e("s_waitcnt lgkmcnt(0)")
            qk_mfma(1)
        else:
            kreads(0)
            kreads(1)
            e("s_waitcnt lgkmcnt(8)")
            qk_mfma(0, pc[0:4])
            e("s_waitcnt lgkmcnt(0)")
            qk_mfma(1, pc[4:8])
        k_adv()

    def pv_only():
        e("s_waitcnt lgkmcnt(0)")
        e("s_nop 1")
        pv_mfma((0, 1, 2, 3))

    dma()
    e(f"s_cmp_eq_u32 s{sG}, 1")
    e("s_cbranch_scc1 at1_loop")
    e.label("at0_loop")
    stamp()
    top("at0")
    stamp()
    e(f"s_cmp_eq_u32 s{sIT}, 0")
    e("s_cbranch_scc1 at0_first")
    pv_qk(True, True)
    e("s_branch at0_sm")
    e.label("at0_first")
    pv_qk(False, True)
    e.label("at0_sm")
    stamp()
    e("s_nop 15")
    e(f"s_cmp_lg_u32 s{sIT}, s{sQB}")
    e("s_cbranch_scc1 at0_nomask")
    mask()
    e.label("at0_nomask")
    softmax("at0")
    stamp()
    if 'stamp' in XP:
        e("s_waitcnt lgkmcnt(0)")
        e(f"s_cmp_eq_u32 s{sIT}, 5")
        e("s_cbranch_scc0 at0_nost")
        e("s_cmp_eq_u32 s2, 0")
        e("s_cbranch_scc0 at0_nost")
        e(f"s_cmp_eq_u32 s{sW}, 0")
        e("s_cbranch_scc0 at0_nost")
        e(f"v_mov_b32 v{vx0}, 0")
        for i in range(6):
            e(f"v_mov_b32 v{vx1}, s{64 + 2 * i}")
            e(f"global_store_dword v{vx0}, v{vx1}, s[60:61] offset:{4 * i}")
            e("s_nop 1")
        e.label("at0_nost")
    e(f"s_add_u32 s{sIT}, s{sIT}, 1")
    e(f"s_cmp_le_u32 s{sIT}, s{sQB}")
    e("s_cbranch_scc1 at0_loop")
    pv_only()
    e("s_branch at_done")
    e.label("at1_loop")
    nst[0] = 0
    stamp()
    top("at1")
    stamp()
    e(f"s_cmp_eq_u32 s{sIT}, 0")
    e("s_cbranch_scc1 at1_first")
    softmax("at1", with_dma=False)
    stamp()
    e(f"s_cmp_lg_u32 s{sIT}, s{sQB}")
    e("s_cbranch_scc1 at1_doqk")
    e(f"s_cmp_lt_u32 s{sQS}, 2")
    e("s_cbranch_scc0 at1_doqk")
    pv_only()
    e("s_branch at_done")
    e.label("at1_doqk")
    pv_qk(True, True)
    e("s_branch at1_next")
    e.label("at1_first")
    for i in range(8):
        cond_piece(i)
    e(f"s_cmp_lg_u32 s{sIT}, s{sQB}")
    e("s_cbranch_scc1 at1_doqk0")
    e(f"s_cmp_lt_u32 s{sQS}, 2")
    e("s_cbranch_scc1 at_done")
    e.label("at1_doqk0")
    pv_qk(False, False)
    e.label("at1_next")
    stamp()
    if 'stamp' in XP:
        e("s_waitcnt lgkmcnt(0)")
        e(f"s_cmp_eq_u32 s{sIT}, 5")
        e("s_cbranch_scc0 at1_nost")
        e("s_cmp_eq_u32 s2, 0")
        e("s_cbranch_scc0 at1_nost")
        e(f"s_cmp_eq_u32 s{sW}, 4")
        e("s_cbranch_scc0 at1_nost")
        e(f"v_mov_b32 v{vx0}, 0")
        for i in range(6):
            e(f"v_mov_b32 v{vx1}, s{64 + 2 * i}")
            e(f"global_store_dword v{vx0}, v{vx1}, s[60:61] offset:{24 + 4 * i}")
            e("s_nop 1")
        e.label("at1_nost")
    e(f"s_add_u32 s{sIT}, s{sIT}, 1")
    e(f"s_cmp_le_u32 s{sIT}, s{sQB}")
    e("s_cbranch_scc1 at1_loop")
    e("s_nop 15")
    mask()
    softmax("at1b")
    pv_only()
    e.label("at_done")
    e(f"s_sub_u32 s{sT}, 0, s{sKrd}")
    for i in range(8):
        e(f"v_add_u32 v{vaK + i}, s{sT}, v{vaK + i}")
    e(f"s_sub_u32 s{sT}, 0, s{sVrd}")
    for i in range(4):
        e(f"v_add_u32 v{vaV + i}, s{sT}, v{vaV + i}")
    e("s_nop 15")
    e("s_nop 7")
    e(f"v_mov_b32 v{vx1}, v{vl}")
    e("s_nop 1")
    e(f"v_permlane32_swap_b32 v{vl}, v{vx1}")
    e("s_nop 1")
    e(f"v_add_f32 v{vl}, v{vl}, v{vx1}")
    e("s_barrier")
    e(f"s_lshl_b32 s{sT}, s{sQS}, 14")
    e(f"v_lshlrev_b32 v{vx0}, 4, v{vL}")
    e(f"v_add_u32 v{vx0}, s{sT}, v{vx0}")
    e(f"s_lshl_b32 s{sT}, s{sQS}, 9")
    e(f"v_lshlrev_b32 v{vx1}, 3, v{vL}")
    e(f"v_add_u32 v{vx1}, s{sT}, v{vx1}")
    e(f"v_add_u32 v{vx1}, 65536, v{vx1}")
    e(f"s_cmp_eq_u32 s{sG}, 0")
    e("s_cbranch_scc1 at_merge0")
    for i in range(16):
        e(f"ds_write_b128 v{vx0}, v[{vO + 4 * i}:{vO + 4 * i + 3}] offset:{i * 1024}")
    e(f"ds_write_b64 v{vx1}, v[{vm}:{vl}]")
    e("s_waitcnt lgkmcnt(0)")
    e("s_barrier")
    e("s_branch at_mergedone")
    e.label("at_merge0")
    e("s_barrier")
    e(f"ds_read_b64 v[{vS}:{vS + 1}], v{vx1}")
    for i in range(16):
        e(f"ds_read_b128 v[{vF0 + 4 * i}:{vF0 + 4 * i + 3}], v{vx0} offset:{i * 1024}")
    e("s_waitcnt lgkmcnt(0)")
    e(f"v_max_f32 v{vt0}, v{vm}, v{vS}")
    e(f"v_sub_f32 v{vt1}, v{vm}, v{vt0}")
    e(f"v_sub_f32 v{vt2}, v{vS}, v{vt0}")
    e(f"v_mul_f32 v{vt1}, s{sC}, v{vt1}")
    e(f"v_mul_f32 v{vt2}, s{sC}, v{vt2}")
    e(f"v_exp_f32 v{vt1}, v{vt1}")
    e(f"v_exp_f32 v{vt2}, v{vt2}")
    e("s_nop 0")
    e(f"v_mul_f32 v{vl}, v{vl}, v{vt1}")
    e(f"v_fmac_f32 v{vl}, v{vS + 1}, v{vt2}")
    e(f"v_rcp_f32 v{vl}, v{vl}")
    e("s_nop 0")
    e(f"v_mul_f32 v{vt1}, v{vt1}, v{vl}")
    e(f"v_mul_f32 v{vt2}, v{vt2}, v{vl}")
    for i in range(64):
        e(f"v_mul_f32 v{vO + i}, v{vO + i}, v{vt1}")
        e(f"v_fmac_f32 v{vO + i}, v{vF0 + i}, v{vt2}")
    for i in range(32):
        e(f"v_cvt_pk_bf16_f32 v{vS + i}, v{vO + 2 * i}, v{vO + 2 * i + 1}")
    for i in range(8):
        e(f"buffer_store_dwordx4 v[{vS + 4 * i}:{vS + 4 * i + 3}], v{vst}, s[16:19], 0 offen offset:{i * 32}")
    e.label("at_mergedone")
    e("s_barrier")
    e(f"s_add_u32 s{sPass}, s{sPass}, 1")
    e(f"s_mov_b32 s{sQB}, s{sJ}")
    e(f"s_cmp_eq_u32 s{sPass}, 1")
    e("s_cbranch_scc1 at_qblock")
    if 'wgt' in XP:
        e("s_memrealtime s[92:93]")
        e("s_waitcnt lgkmcnt(0)")
        e("s_lshl_b32 s3, s2, 3")
        e("s_add_u32 s3, s3, 0x6f00000")
        e("v_mov_b32 v2, s3")
        e("v_mov_b32 v4, s90")
        e("v_mov_b32 v5, s92")
        e("s_nop 1")
        e("global_store_dwordx2 v2, v[4:5], s[44:45]")
    e.label("at_end")
    e("s_endpgm")
    return name, VEND, 256, 163840


WS_PART = 0x6000000


def gen_final(e):
    name = "final_kernel"
    kernel_header(e, name)
    NT = 240
    e(f"s_cmp_ge_u32 s2, {NT}")
    e("s_cbranch_scc1 fi_end")
    e(f"s_load_dwordx2 s[34:35], s[0:1], {KA['wo']}")
    e(f"s_load_dwordx2 s[36:37], s[0:1], {KA['w2']}")
    e(f"s_load_dwordx2 s[44:45], s[0:1], {KA['ws']}")
    e("s_waitcnt lgkmcnt(0)")
    g = Gemm(e, "fi", 128, 128, 2, 4, NS=4)
    make_srd(e, 4, 34, 4096 * 1280)
    make_srd(e, 8, 44, 2048 * 8192, WS_CTX)
    make_srd(e, 12, 44, 3 * 2048 * 2560, WS_PART)
    make_srd(e, 56, 44, 640 * 3456, WS_U)
    make_srd(e, 60, 36, 1728 * 4096)
    e("s_mul_i32 s53, s2, 205")
    e("s_lshr_b32 s53, s53, 14")
    e("s_mul_i32 s46, s53, 80")
    e("s_sub_u32 s52, s2, s46")
    e("s_mul_i32 s46, s52, 205")
    e("s_lshr_b32 s47, s46, 10")
    e("s_mul_i32 s46, s47, 5")
    e("s_sub_u32 s46, s52, s46")
    e("s_lshl_b32 s46, s46, 7")
    e("s_lshl_b32 s47, s47, 7")
    g.setup_common()
    g.zero_acc()
    e("s_cmp_eq_u32 s53, 2")
    e("s_cbranch_scc1 fi_seg2")
    e("s_mul_i32 s48, s53, %d" % (2048 * 1280))
    e("s_lshl_b32 s24, s46, 1")
    e("s_add_u32 s48, s48, s24")
    e("s_lshl_b32 s49, s47, 13")
    e("s_lshl_b32 s24, s53, 12")
    e("s_add_u32 s49, s49, s24")
    g.run_seg(Op('t', 4, 1280, 48, perm=True), Op('k', 8, 8192, 49), 32, True)
    e("s_branch fi_epi")
    e.label("fi_seg2")
    e("s_mul_i32 s50, s46, 3456")
    e("s_lshl_b32 s51, s47, 1")
    g.run_seg(Op('k', 56, 3456, 50), Op('t', 60, 4096, 51, perm=True), 27, True)
    e.label("fi_epi")
    va = g.v_t1
    L, t0, st = g.v_lane, g.v_t0, g.s_t
    e(f"s_mul_i32 s{st}, s{g.s_wb}, {g.TB * 32}")
    e(f"s_add_u32 s{st}, s{st}, s47")
    e(f"v_and_b32 v{t0}, 31, v{L}")
    e(f"v_add_u32 v{t0}, s{st}, v{t0}")
    e(f"s_movk_i32 s{st + 1}, 2560")
    e(f"v_mul_lo_u32 v{t0}, v{t0}, s{st + 1}")
    e(f"s_mul_i32 s{st}, s{g.s_wa}, {g.TA * 32}")
    e(f"s_add_u32 s{st}, s{st}, s46")
    e(f"s_lshl_b32 s{st}, s{st}, 2")
    e(f"s_mul_i32 s{st + 1}, s53, {2048 * 2560}")
    e(f"s_add_u32 s{st}, s{st}, s{st + 1}")
    e(f"v_add_u32 v{t0}, s{st}, v{t0}")
    e(f"v_lshrrev_b32 v{va}, 5, v{L}")
    e(f"v_lshl_add_u32 v{va}, v{va}, 4, v{t0}")
    e("s_nop 15")
    e("s_nop 7")
    for ta in range(g.TA):
        for tb in range(g.TB):
            d = g.v_acc + 16 * (ta * g.TB + tb)
            e(f"s_mov_b32 s24, {tb * 32 * 2560}")
            for q in range(4):
                e(f"buffer_store_dwordx4 v[{d + 4 * q}:{d + 4 * q + 3}], v{va}, s[12:15], s24 offen offset:{ta * 128 + q * 32}")
    e.label("fi_end")
    e("s_endpgm")
    return name, g.v_end, NT, g.lds


def gen_reduce(e):
    name = "reduce_kernel"
    kernel_header(e, name)
    NT = 640
    e(f"s_cmp_ge_u32 s2, {NT}")
    e("s_cbranch_scc1 rd_end")
    e(f"s_load_dwordx2 s[32:33], s[0:1], {KA['x']}")
    e(f"s_load_dwordx2 s[38:39], s[0:1], {KA['b2']}")
    e(f"s_load_dwordx2 s[40:41], s[0:1], {KA['out']}")
    e(f"s_load_dwordx2 s[44:45], s[0:1], {KA['ws']}")
    e("s_lshl_b32 s3, s2, 8")
    e("v_add_u32 v1, s3, v0")
    e("v_lshlrev_b32 v2, 4, v1")
    e("v_lshlrev_b32 v3, 5, v1")
    e("s_mov_b32 s4, 0x3333334")
    e("v_mul_hi_u32 v4, v1, s4")
    e("v_lshlrev_b32 v4, 1, v4")
    e("s_waitcnt lgkmcnt(0)")
    make_srd(e, 8, 32, 2048 * 1280)
    make_srd(e, 12, 40, 2048 * 1280)
    make_srd(e, 16, 44, 3 * 2048 * 2560, WS_PART)
    make_srd(e, 20, 38, 4096)
    e("buffer_load_dwordx4 v[8:11], v2, s[8:11], 0 offen")
    e("buffer_load_ushort v5, v4, s[20:23], 0 offen")
    for sp in range(3):
        e(f"s_mov_b32 s24, {sp * 2048 * 2560}")
        e(f"buffer_load_dwordx4 v[{12 + 8 * sp}:{15 + 8 * sp}], v3, s[16:19], s24 offen")
        e(f"buffer_load_dwordx4 v[{16 + 8 * sp}:{19 + 8 * sp}], v3, s[16:19], s24 offen offset:16")
    e("s_mov_b32 s25, 0xffff0000")
    e("s_waitcnt vmcnt(0)")
    e("v_lshlrev_b32 v5, 16, v5")
    for i in range(8):
        e(f"v_add_f32 v{12 + i}, v{12 + i}, v{20 + i}")
        e(f"v_add_f32 v{12 + i}, v{12 + i}, v{28 + i}")
        e(f"v_add_f32 v{12 + i}, v{12 + i}, v5")
    for i in range(4):
        e(f"v_lshlrev_b32 v6, 16, v{8 + i}")
        e(f"v_and_b32 v7, s25, v{8 + i}")
        e(f"v_add_f32 v6, v6, v{12 + 2 * i}")
        e(f"v_add_f32 v7, v7, v{13 + 2 * i}")
        e(f"v_cvt_pk_bf16_f32 v{8 + i}, v6, v7")
    e("buffer_store_dwordx4 v[8:11], v2, s[12:15], 0 offen")
    e.label("rd_end")
    e("s_endpgm")
    return name, 40, NT, 0


def main():
    e = E()
    launches = []
    body = E()
    descs = E()
    n, v = gen_ln(body)
    kernel_desc(descs, n, v)
    launches.append((n, 512, 256, 0))
    n, v, g, lds = gen_p1(body)
    kernel_desc(descs, n, v)
    launches.append((n, g, 512, lds))
    n, v, g, lds = gen_attn(body)
    kernel_desc(descs, n, v)
    launches.append((n, g, 512, lds))
    n, v, g, lds = gen_final(body)
    kernel_desc(descs, n, v)
    launches.append((n, g, 512, lds))
    n, v, g, lds = gen_reduce(body)
    kernel_desc(descs, n, v)
    launches.append((n, g, 256, lds))
    for (n, g, b, lds) in launches:
        e.raw(f"; @launch kernel={n} grid=({g},1,1) block=({b},1,1) lds={lds}")
    e.raw('.amdgcn_target "amdgcn-amd-amdhsa--gfx950"')
    out = e.text() + body.text() + descs.text()
    path = sys.argv[1] if len(sys.argv) > 1 else f"cdna_kernels/{KN}.s"
    open(path, "w").write(out)
    print("wrote", path, len(out))


if __name__ == "__main__":
    main()
```

```python
import sys
import math
import os
XP = os.environ.get('XP', '')

KN = "parallel_sum__compressed_kv_cla__mixer_token_mlp__prompt"

WS_XN = 0x0000000
WS_H = 0x0280000
WS_Q = 0x1000000
WS_K = 0x2000000
WS_VT = 0x3000000
WS_U = 0x4000000
WS_CTX = 0x5000000

KA = dict(x=0, ckv=8, wq=16, wuk=24, wuv=32, wo=40, bx=48, w1=56, b1=64, w2=72, b2=80, out=88, dbg=96, ws=104)


class E:
    def __init__(self):
        self.lines = []

    def __call__(self, s):
        self.lines.append("    " + s)

    def label(self, l):
        self.lines.append(l + ":")

    def raw(self, s):
        self.lines.append(s)

    def text(self):
        return "\n".join(self.lines) + "\n"


def vr(a, n=1):
    return f"v{a}" if n == 1 else f"v[{a}:{a + n - 1}]"


def sr(a, n=1):
    return f"s{a}" if n == 1 else f"s[{a}:{a + n - 1}]"


def kernel_header(e, name):
    e.raw(".text")
    e.raw(f".globl {name}")
    e.raw(".p2align 8")
    e.raw(f".type {name},@function")
    e.label(name)


def kernel_desc(e, name, vgpr, sgpr=96):
    acc = (vgpr + 3) // 4 * 4
    e.raw('.section .rodata,"a"')
    e.raw(".p2align 6")
    e.raw(f".amdhsa_kernel {name}")
    e.raw(f"  .amdhsa_next_free_vgpr {vgpr}")
    e.raw(f"  .amdhsa_next_free_sgpr {sgpr}")
    e.raw(f"  .amdhsa_accum_offset {acc}")
    e.raw("  .amdhsa_group_segment_fixed_size 0")
    e.raw("  .amdhsa_kernarg_size 112")
    e.raw("  .amdhsa_user_sgpr_count 2")
    e.raw("  .amdhsa_user_sgpr_kernarg_segment_ptr 1")
    e.raw("  .amdhsa_system_sgpr_workgroup_id_x 1")
    e.raw(".end_amdhsa_kernel")


def make_srd(e, d, ptr, nbytes, off=0):
    if off:
        e(f"s_add_u32 s{d}, s{ptr}, 0x{off:x}")
        e(f"s_addc_u32 s{d + 1}, s{ptr + 1}, 0")
    else:
        e(f"s_mov_b32 s{d}, s{ptr}")
        e(f"s_mov_b32 s{d + 1}, s{ptr + 1}")
    e(f"s_mov_b32 s{d + 2}, 0x{nbytes:x}")
    e(f"s_mov_b32 s{d + 3}, 0x00020000")


def wave_sum(e, v, t):
    for off in (0x041F, 0x081F, 0x101F, 0x201F, 0x401F):
        e(f"ds_swizzle_b32 v{t}, v{v} offset:0x{off:04X}")
        e("s_waitcnt lgkmcnt(0)")
        e(f"v_add_f32 v{v}, v{v}, v{t}")
    e(f"v_mov_b32 v{t}, v{v}")
    e("s_nop 1")
    e(f"v_permlane32_swap_b32 v{t}, v{v}")
    e("s_nop 1")
    e(f"v_add_f32 v{v}, v{v}, v{t}")


def gen_ln(e):
    name = "ln_kernel"
    kernel_header(e, name)
    e("s_cmp_ge_u32 s2, 512")
    e("s_cbranch_scc1 ln_end")
    e(f"s_load_dwordx2 s[4:5], s[0:1], {KA['x']}")
    e(f"s_load_dwordx2 s[6:7], s[0:1], {KA['ws']}")
    e("v_lshrrev_b32 v1, 6, v0")
    e("v_and_b32 v2, 63, v0")
    e("s_lshl_b32 s3, s2, 2")
    e("v_add_u32 v1, s3, v1")
    e("s_movk_i32 s16, 1280")
    e("v_mul_lo_u32 v1, v1, s16")
    e("v_lshl_add_u32 v1, v2, 2, v1")
    e("s_waitcnt lgkmcnt(0)")
    make_srd(e, 8, 4, 2048 * 1280)
    make_srd(e, 12, 6, 2 * 2048 * 1280)
    for i in range(5):
        e(f"buffer_load_dword v{4 + i}, v1, s[8:11], 0 offen offset:{i * 256}")
    e("s_waitcnt vmcnt(0)")
    e("s_mov_b32 s17, 0x3acccccd")
    e("s_mov_b32 s18, 0x3727c5ac")
    e("s_mov_b32 s19, 0xffff0000")

    def ln_pass(dst_off):
        for i in range(5):
            e(f"v_lshlrev_b32 v{10 + 2 * i}, 16, v{4 + i}")
            e(f"v_and_b32 v{11 + 2 * i}, s19, v{4 + i}")
        e("v_add_f32 v20, v10, v11")
        for i in range(2, 10):
            e(f"v_add_f32 v20, v20, v{10 + i}")
        wave_sum(e, 20, 21)
        e("v_mul_f32 v20, s17, v20")
        for i in range(10):
            e(f"v_sub_f32 v{10 + i}, v{10 + i}, v20")
        e("v_mul_f32 v22, v10, v10")
        for i in range(1, 10):
            e(f"v_fmac_f32 v22, v{10 + i}, v{10 + i}")
        wave_sum(e, 22, 21)
        e("v_mov_b32 v23, s18")
        e("v_fmac_f32 v23, s17, v22")
        e("v_rsq_f32 v23, v23")
        e("s_nop 1")
        for i in range(10):
            e(f"v_mul_f32 v{10 + i}, v{10 + i}, v23")
        for i in range(5):
            e(f"v_cvt_pk_bf16_f32 v{4 + i}, v{10 + 2 * i}, v{11 + 2 * i}")
        e("s_mov_b32 s20, 0x%x" % dst_off)
        for i in range(5):
            e(f"buffer_store_dword v{4 + i}, v1, s[12:15], s20 offen offset:{i * 256}")

    ln_pass(WS_XN)
    e("s_nop 4")
    ln_pass(WS_H)
    e.label("ln_end")
    e("s_endpgm")
    return name, 32


class Op:
    def __init__(self, mode, srd, ld, base, perm=False):
        self.mode = mode
        self.srd = srd
        self.ld = ld
        self.base = base
        self.perm = perm


class Gemm:
    def __init__(self, e, tag, BA, BB, WA, WB, vbase=2, NS=2):
        self.e = e
        self.tag = tag
        self.BA, self.BB, self.WA, self.WB = BA, BB, WA, WB
        self.NW = WA * WB
        self.TA = BA // WA // 32
        self.TB = BB // WB // 32
        self.SA = BA * 128
        self.SB = BB * 128
        st = self.SA + self.SB
        self.NS = NS
        self.stage = st
        self.lds = st * NS
        self.nA = self.SA // 1024 // self.NW
        self.nB = self.SB // 1024 // self.NW
        assert self.nA * 1024 * self.NW == self.SA and self.nB * 1024 * self.NW == self.SB
        v = vbase
        self.v_lane = v; v += 1
        self.v_t0 = v; v += 1
        self.v_t1 = v; v += 1
        self.v_t2 = v; v += 1
        self.v_dmaA = v; v += self.nA
        self.v_dmaB = v; v += self.nB
        self.v_adrA = v; v += 4
        self.v_adrB = v; v += 4
        v = (v + 3) // 4 * 4
        self.v_fA = v; v += 2 * 4 * self.TA
        self.v_fB = v; v += 2 * 4 * self.TB
        self.v_acc = v; v += 16 * self.TA * self.TB
        self.v_end = v
        self.s_wave = 20
        self.s_cnt = 21
        self.s_offA = 22
        self.s_offB = 23
        self.s_t = 24
        self.s_wa = 28
        self.s_wb = 29
        self.s_stage = 30
        self.s_rd = 31

    def setup_common(self):
        e = self.e
        e(f"v_and_b32 v{self.v_lane}, 63, v0")
        e(f"v_lshrrev_b32 v{self.v_t0}, 6, v0")
        e("s_nop 0")
        e(f"v_readfirstlane_b32 s{self.s_wave}, v{self.v_t0}")
        e("s_nop 3")
        lw = int(math.log2(self.WA))
        e(f"s_and_b32 s{self.s_wa}, s{self.s_wave}, {self.WA - 1}")
        e(f"s_lshr_b32 s{self.s_wb}, s{self.s_wave}, {lw}")

    def setup_op(self, op, R, n, v_dma, v_adr, s_wcoord, T, lds_base):
        e = self.e
        L, t0, t1, t2 = self.v_lane, self.v_t0, self.v_t1, self.v_t2
        st = self.s_t
        if op.mode == 'k':
            for jj in range(n):
                e(f"s_mul_i32 s{st}, s{self.s_wave}, {n * 8}")
                e(f"s_add_u32 s{st}, s{st}, {jj * 8}")
                e(f"v_lshrrev_b32 v{t0}, 3, v{L}")
                e(f"v_add_u32 v{t0}, s{st}, v{t0}")
                e(f"v_bfe_u32 v{t1}, v{t0}, 1, 3")
                e(f"v_and_b32 v{t2}, 7, v{L}")
                e(f"v_xor_b32 v{t1}, v{t1}, v{t2}")
                e(f"s_mov_b32 s{st + 1}, {op.ld}")
                e(f"v_mul_lo_u32 v{t0}, v{t0}, s{st + 1}")
                e(f"v_lshl_add_u32 v{v_dma + jj}, v{t1}, 4, v{t0}")
            e(f"s_mul_i32 s{st}, s{s_wcoord}, {T * 32}")
            e(f"v_and_b32 v{t0}, 31, v{L}")
            e(f"v_add_u32 v{t0}, s{st}, v{t0}")
            e(f"v_bfe_u32 v{t1}, v{t0}, 1, 3")
            e(f"v_lshrrev_b32 v{t2}, 5, v{L}")
            e(f"v_lshlrev_b32 v{t0}, 7, v{t0}")
            for kk in range(4):
                e(f"v_add_u32 v{v_adr + kk}, {2 * kk}, v{t2}")
                e(f"v_xor_b32 v{v_adr + kk}, v{v_adr + kk}, v{t1}")
                e(f"v_lshl_add_u32 v{v_adr + kk}, v{v_adr + kk}, 4, v{t0}")
                if lds_base:
                    e(f"v_add_u32 v{v_adr + kk}, {lds_base}, v{v_adr + kk}")
        else:
            rb = 2 * R
            lrb = int(math.log2(rb))
            for jj in range(n):
                e(f"s_mul_i32 s{st}, s{self.s_wave}, {n * 1024}")
                e(f"s_add_u32 s{st}, s{st}, {jj * 1024}")
                e(f"v_lshlrev_b32 v{t0}, 4, v{L}")
                e(f"v_add_u32 v{t0}, s{st}, v{t0}")
                e(f"v_lshrrev_b32 v{t1}, {lrb}, v{t0}")
                e(f"v_and_b32 v{t0}, {rb - 1}, v{t0}")
                if rb >= 256:
                    e(f"v_and_b32 v{t2}, 3, v{t1}")
                else:
                    e(f"v_bfe_u32 v{t2}, v{t1}, 1, 1")
                e(f"v_lshlrev_b32 v{t2}, 6, v{t2}")
                e(f"v_xor_b32 v{t0}, v{t0}, v{t2}")
                e(f"s_mov_b32 s{st + 1}, {op.ld}")
                e(f"v_mul_lo_u32 v{t1}, v{t1}, s{st + 1}")
                e(f"v_add_u32 v{v_dma + jj}, v{t0}, v{t1}")
            e(f"v_lshrrev_b32 v{t0}, 5, v{L}")
            e(f"v_lshlrev_b32 v{t0}, {2 if op.perm else 3}, v{t0}")
            e(f"v_bfe_u32 v{t1}, v{L}, 2, 2")
            e(f"v_add_u32 v{t0}, v{t0}, v{t1}")
            e(f"v_lshlrev_b32 v{t0}, {lrb}, v{t0}")
            e(f"v_bfe_u32 v{t2}, v{L}, 4, 1")
            e(f"v_lshlrev_b32 v{t2}, 5, v{t2}")
            e(f"v_add_u32 v{t0}, v{t0}, v{t2}")
            e(f"v_and_b32 v{t2}, 3, v{L}")
            e(f"v_lshl_add_u32 v{t0}, v{t2}, 3, v{t0}")
            if rb < 256:
                e(f"v_bfe_u32 v{t1}, v{L}, 3, 1")
            for t in range(T):
                e(f"s_mul_i32 s{st}, s{s_wcoord}, {T}")
                e(f"s_add_u32 s{st}, s{st}, {t}")
                e(f"v_xor_b32 v{t2}, s{st}, v{t1}")
                e(f"v_lshl_add_u32 v{v_adr + t}, v{t2}, 6, v{t0}")
                if lds_base:
                    e(f"v_add_u32 v{v_adr + t}, {lds_base}, v{v_adr + t}")

    def n_adr(self, op, T):
        return 4 if op.mode == 'k' else T

    def issue_dma(self, op, n, v_dma, lds_base, s_off):
        e = self.e
        st = self.s_t
        for jj in range(n):
            e(f"s_mul_i32 s{st}, s{self.s_wave}, {n * 1024}")
            e(f"s_add_u32 s{st}, s{st}, s{self.s_stage}")
            e(f"s_add_u32 m0, s{st}, {lds_base + jj * 1024}")
            e("s_nop 0")
            e(f"buffer_load_dwordx4 v{v_dma + jj}, s[{op.srd}:{op.srd + 3}], s{s_off} offen lds")

    def read_frags(self, op, R, T, v_adr, v_f, kk):
        e = self.e
        cnt = 0
        if op.mode == 'k':
            for t in range(T):
                e(f"ds_read_b128 v[{v_f + 4 * t}:{v_f + 4 * t + 3}], v{v_adr + kk} offset:{t * 4096}")
                cnt += 1
        else:
            rb = 2 * R
            hstep = 8 if op.perm else 4
            for t in range(T):
                for half in range(2):
                    off = (kk * 16 + half * hstep) * rb
                    e(f"ds_read_b64_tr_b16 v[{v_f + 4 * t + 2 * half}:{v_f + 4 * t + 2 * half + 1}], v{v_adr + t} offset:{off}")
                    cnt += 1
        return cnt

    def zero_acc(self):
        for i in range(16 * self.TA * self.TB):
            self.e(f"v_mov_b32 v{self.v_acc + i}, 0")

    def run_seg(self, A, B, nk, first):
        e = self.e
        tag = self.tag
        NS = self.NS
        self.seg = getattr(self, "seg", 0) + 1
        lab = f"{tag}_s{self.seg}"
        self.setup_op(A, self.BA, self.nA, self.v_dmaA, self.v_adrA, self.s_wa, self.TA, 0)
        self.setup_op(B, self.BB, self.nB, self.v_dmaB, self.v_adrB, self.s_wb, self.TB, self.SA)
        stepA = 128 if A.mode == 'k' else 64 * A.ld
        stepB = 128 if B.mode == 'k' else 64 * B.ld
        nd = self.nA + self.nB
        assert nk >= NS
        e(f"s_mov_b32 s{self.s_offA}, s{A.base}")
        e(f"s_mov_b32 s{self.s_offB}, s{B.base}")
        e(f"s_mov_b32 s{self.s_stage}, 0")
        e(f"s_mov_b32 s{self.s_rd}, 0")
        if not first:
            e("s_barrier")

        st4 = self.s_t + 3

        def pieces():
            out = []

            def first():
                e(f"s_mul_i32 s{st4}, s{self.s_wave}, {self.nA * 1024}")
                e(f"s_add_u32 s{st4}, s{st4}, s{self.s_stage}")
            for jj in range(self.nA):
                def f(jj=jj):
                    if jj == 0:
                        first()
                    e(f"s_add_u32 m0, s{st4}, {jj * 1024}")
                    e("s_nop 0")
                    e(f"buffer_load_dwordx4 v{self.v_dmaA + jj}, s[{A.srd}:{A.srd + 3}], s{self.s_offA} offen lds")
                out.append(f)
            for jj in range(self.nB):
                def f(jj=jj):
                    if jj == 0:
                        e(f"s_mul_i32 s{st4}, s{self.s_wave}, {self.nB * 1024}")
                        e(f"s_add_u32 s{st4}, s{st4}, s{self.s_stage}")
                    e(f"s_add_u32 m0, s{st4}, {self.SA + jj * 1024}")
                    e("s_nop 0")
                    e(f"buffer_load_dwordx4 v{self.v_dmaB + jj}, s[{B.srd}:{B.srd + 3}], s{self.s_offB} offen lds")
                    if jj == self.nB - 1:
                        e(f"s_add_u32 s{self.s_offA}, s{self.s_offA}, {stepA}")
                        e(f"s_add_u32 s{self.s_offB}, s{self.s_offB}, {stepB}")
                        e(f"s_add_u32 s{self.s_stage}, s{self.s_stage}, {self.stage}")
                        e(f"s_cmp_eq_u32 s{self.s_stage}, {self.stage * NS}")
                        e(f"s_cselect_b32 s{self.s_stage}, 0, s{self.s_stage}")
                out.append(f)
            return out

        for i in range(NS - 1):
            for f in pieces():
                f()
        szA = 4 * self.TA
        szB = 4 * self.TB

        def reads(kk):
            buf = kk & 1
            c = self.read_frags(A, self.BA, self.TA, self.v_adrA, self.v_fA + buf * szA, kk)
            c += self.read_frags(B, self.BB, self.TB, self.v_adrB, self.v_fB + buf * szB, kk)
            return c

        early = NS >= 3

        def compute(pcs, last=False):
            pcs = list(pcs)
            nm = self.TA * self.TB
            per = -(-len(pcs) // 3) if pcs else 0
            gap = max(1, nm // max(per, 1))
            if not early:
                reads(0)
            for kk in range(4):
                nxt = reads(kk + 1) if kk < 3 else 0
                e(f"s_waitcnt lgkmcnt({nxt})")
                buf = kk & 1
                i = 0
                used = 0
                for ta in range(self.TA):
                    for tb in range(self.TB):
                        d = self.v_acc + 16 * (ta * self.TB + tb)
                        a = self.v_fA + buf * szA + 4 * ta
                        b = self.v_fB + buf * szB + 4 * tb
                        e(f"v_mfma_f32_32x32x16_bf16 v[{d}:{d + 15}], v[{a}:{a + 3}], v[{b}:{b + 3}], v[{d}:{d + 15}]")
                        i += 1
                        if pcs and used < per and (i % gap == 0):
                            pcs.pop(0)()
                            used += 1
                if kk == 2:
                    while pcs:
                        pcs.pop(0)()
            st = self.s_t
            e(f"s_add_u32 s{st}, s{self.s_rd}, {self.stage}")
            e(f"s_cmp_eq_u32 s{st}, {self.stage * NS}")
            e(f"s_cselect_b32 s{st}, 0, s{st}")
            e(f"s_sub_u32 s{st + 1}, s{st}, s{self.s_rd}")
            e(f"s_mov_b32 s{self.s_rd}, s{st}")
            for i in range(self.n_adr(A, self.TA)):
                e(f"v_add_u32 v{self.v_adrA + i}, s{st + 1}, v{self.v_adrA + i}")
            for i in range(self.n_adr(B, self.TB)):
                e(f"v_add_u32 v{self.v_adrB + i}, s{st + 1}, v{self.v_adrB + i}")
            if early and not last:
                reads(0)

        if early:
            e(f"s_waitcnt vmcnt({(NS - 2) * nd})")
            e("s_barrier")
            reads(0)
        lag = 1 if early else 0
        e(f"s_mov_b32 s{self.s_cnt}, {nk - (NS - 1)}")
        e.label(f"{lab}_loop")
        e(f"s_waitcnt vmcnt({(NS - 2 - lag) * nd})")
        e("s_barrier")
        compute(pieces())
        e(f"s_sub_u32 s{self.s_cnt}, s{self.s_cnt}, 1")
        e(f"s_cmp_lg_u32 s{self.s_cnt}, 0")
        e(f"s_cbranch_scc1 {lab}_loop")
        for i in range(NS - 1):
            e(f"s_waitcnt vmcnt({max(NS - 2 - i - lag, 0) * nd})")
            e("s_barrier")
            compute([], last=(i == NS - 2))

    def out_addr(self, v_dst, s_rowA0, s_colB0, ld_out):
        e = self.e
        L, t0, st = self.v_lane, self.v_t0, self.s_t
        e(f"s_mul_i32 s{st}, s{self.s_wb}, {self.TB * 32}")
        e(f"s_add_u32 s{st}, s{st}, s{s_colB0}")
        e(f"v_and_b32 v{t0}, 31, v{L}")
        e(f"v_add_u32 v{t0}, s{st}, v{t0}")
        e(f"s_mov_b32 s{st + 1}, {ld_out}")
        e(f"v_mul_lo_u32 v{t0}, v{t0}, s{st + 1}")
        e(f"s_mul_i32 s{st}, s{self.s_wa}, {self.TA * 32}")
        e(f"s_add_u32 s{st}, s{st}, s{s_rowA0}")
        e(f"s_lshl_b32 s{st}, s{st}, 1")
        e(f"v_add_u32 v{t0}, s{st}, v{t0}")
        e(f"v_lshrrev_b32 v{v_dst}, 5, v{L}")
        return t0

    def epi_tile(self, srd_out, s_base):
        e = self.e
        va, t0, L = self.v_t1, self.v_t0, self.v_lane
        e(f"v_and_b32 v{t0}, 31, v{L}")
        e(f"v_lshlrev_b32 v{t0}, 8, v{t0}")
        e(f"v_add_u32 v{t0}, s{s_base}, v{t0}")
        e(f"v_lshrrev_b32 v{va}, 5, v{L}")
        e(f"v_lshl_add_u32 v{va}, v{va}, 4, v{t0}")
        e("s_nop 15")
        e("s_nop 7")
        pk = self.v_fA
        nb = 0
        for tb in range(self.TB):
            e(f"s_mov_b32 s{self.s_t}, {tb * 8192}")
            for ta in range(self.TA):
                d = self.v_acc + 16 * (ta * self.TB + tb)
                p = pk + 8 * (nb & 1)
                nb += 1
                for i in range(8):
                    e(f"v_cvt_pk_bf16_f32 v{p + i}, v{d + 2 * i}, v{d + 2 * i + 1}")
                e(f"buffer_store_dwordx4 v[{p}:{p + 3}], v{va}, s[{srd_out}:{srd_out + 3}], s{self.s_t} offen offset:{ta * 64}")
                e(f"buffer_store_dwordx4 v[{p + 4}:{p + 7}], v{va}, s[{srd_out}:{srd_out + 3}], s{self.s_t} offen offset:{ta * 64 + 32}")
                e("s_nop 1")

    def epi_perm(self, srd_out, s_rowA0, s_colB0, ld_out):
        e = self.e
        va = self.v_t1
        t0 = self.out_addr(va, s_rowA0, s_colB0, ld_out)
        e(f"v_lshl_add_u32 v{va}, v{va}, 4, v{t0}")
        e("s_nop 15")
        e("s_nop 7")
        pk = self.v_fA
        nb = 0
        for ta in range(self.TA):
            for tb in range(self.TB):
                d = self.v_acc + 16 * (ta * self.TB + tb)
                p = pk + 8 * (nb & 1)
                nb += 1
                for i in range(8):
                    e(f"v_cvt_pk_bf16_f32 v{p + i}, v{d + 2 * i}, v{d + 2 * i + 1}")
                off = tb * 32 * ld_out + ta * 64
                assert off + 32 < 4096 or True
                if off + 32 < 4096:
                    e(f"buffer_store_dwordx4 v[{p}:{p + 3}], v{va}, s[{srd_out}:{srd_out + 3}], 0 offen offset:{off}")
                    e(f"buffer_store_dwordx4 v[{p + 4}:{p + 7}], v{va}, s[{srd_out}:{srd_out + 3}], 0 offen offset:{off + 32}")
                else:
                    e(f"s_mov_b32 s{self.s_t}, {tb * 32 * ld_out}")
                    e(f"buffer_store_dwordx4 v[{p}:{p + 3}], v{va}, s[{srd_out}:{srd_out + 3}], s{self.s_t} offen offset:{ta * 64}")
                    e(f"buffer_store_dwordx4 v[{p + 4}:{p + 7}], v{va}, s[{srd_out}:{srd_out + 3}], s{self.s_t} offen offset:{ta * 64 + 32}")
                e("s_nop 1")


P1_NU = 35
P1_NQ = 128


def gen_p1(e):
    name = "proj_kernel"
    kernel_header(e, name)
    ntot = P1_NU + 3 * P1_NQ
    e(f"s_cmp_ge_u32 s2, {ntot}")
    e("s_cbranch_scc1 p1_end")
    e(f"s_load_dwordx2 s[32:33], s[0:1], {KA['ckv']}")
    e(f"s_load_dwordx2 s[34:35], s[0:1], {KA['wq']}")
    e(f"s_load_dwordx2 s[36:37], s[0:1], {KA['wuk']}")
    e(f"s_load_dwordx2 s[38:39], s[0:1], {KA['wuv']}")
    e(f"s_load_dwordx2 s[40:41], s[0:1], {KA['w1']}")
    e(f"s_load_dwordx2 s[42:43], s[0:1], {KA['b1']}")
    e(f"s_load_dwordx2 s[44:45], s[0:1], {KA['ws']}")
    e("s_waitcnt lgkmcnt(0)")
    e(f"s_cmp_lt_u32 s2, {P1_NU}")
    e("s_cbranch_scc1 p1_u")
    e(f"s_cmp_lt_u32 s2, {P1_NU + P1_NQ}")
    e("s_cbranch_scc1 p1_q")
    e(f"s_cmp_lt_u32 s2, {P1_NU + 2 * P1_NQ}")
    e("s_cbranch_scc1 p1_k")
    e("s_branch p1_v")
    vmax = 0

    for tag, wptr, K, xsrc, xld, wsoff, id0 in (("p1_q", 34, 640, 'xn', 1280, WS_Q, P1_NU),
                                                 ("p1_k", 36, 512, 'ckv', 1024, WS_K, P1_NU + P1_NQ)):
        e.label(tag)
        g = Gemm(e, tag, 256, 256, 2, 4)
        vmax = max(vmax, g.v_end)
        make_srd(e, 4, wptr, K * 8192)
        if xsrc == 'xn':
            make_srd(e, 8, 44, 2048 * 1280, WS_XN)
        else:
            make_srd(e, 8, 32, 2048 * 1024)
        make_srd(e, 12, 44, 2048 * 8192, wsoff)
        e(f"s_sub_u32 s3, s2, {id0}")
        e("s_and_b32 s46, s3, 15")
        e("s_lshr_b32 s47, s3, 4")
        e("s_lshl_b32 s46, s46, 8")
        e("s_lshl_b32 s47, s47, 8")
        e("s_lshl_b32 s48, s46, 1")
        e(f"s_mul_i32 s49, s47, {xld}")
        g.setup_common()
        g.zero_acc()
        g.run_seg(Op('t', 4, 8192, 48), Op('k', 8, xld, 49), K // 64, True)
        e(f"s_lshr_b32 s50, s46, 7")
        e(f"s_add_u32 s50, s50, s{g.s_wa}")
        e("s_lshl_b32 s50, s50, 19")
        e(f"s_lshl_b32 s51, s{g.s_wb}, 6")
        e("s_add_u32 s51, s51, s47")
        e("s_lshl_b32 s51, s51, 8")
        e("s_add_u32 s50, s50, s51")
        g.epi_tile(12, 50)
        e("s_endpgm")

    e.label("p1_v")
    g = Gemm(e, "p1_v", 256, 256, 2, 4)
    vmax = max(vmax, g.v_end)
    make_srd(e, 4, 32, 2048 * 1024)
    make_srd(e, 8, 38, 512 * 8192)
    make_srd(e, 12, 44, 4096 * 4096, WS_VT)
    e(f"s_sub_u32 s3, s2, {P1_NU + 2 * P1_NQ}")
    e("s_and_b32 s46, s3, 7")
    e("s_lshr_b32 s47, s3, 3")
    e("s_lshl_b32 s46, s46, 8")
    e("s_lshl_b32 s47, s47, 8")
    e("s_mul_i32 s48, s46, 1024")
    e("s_lshl_b32 s49, s47, 1")
    g.setup_common()
    g.zero_acc()
    g.run_seg(Op('k', 4, 1024, 48), Op('t', 8, 8192, 49), 8, True)
    e("s_lshr_b32 s50, s47, 7")
    e(f"s_lshr_b32 s51, s{g.s_wb}, 1")
    e("s_add_u32 s50, s50, s51")
    e("s_lshl_b32 s50, s50, 19")
    e("s_lshr_b32 s51, s46, 7")
    e(f"s_add_u32 s51, s51, s{g.s_wa}")
    e("s_lshl_b32 s51, s51, 15")
    e("s_add_u32 s50, s50, s51")
    e(f"s_and_b32 s51, s{g.s_wb}, 1")
    e("s_lshl_b32 s51, s51, 14")
    e("s_add_u32 s50, s50, s51")
    g.epi_tile(12, 50)
    e("s_endpgm")

    e.label("p1_u")
    g = Gemm(e, "p1_u", 256, 128, 4, 2)
    vmax = max(vmax, g.v_end)
    make_srd(e, 4, 40, 2048 * 3456)
    make_srd(e, 8, 44, 2048 * 1280, WS_H)
    make_srd(e, 12, 44, 640 * 3456, WS_U)
    make_srd(e, 16, 42, 3456)
    e("s_mul_i32 s46, s2, 37")
    e("s_lshr_b32 s47, s46, 8")
    e("s_mul_i32 s46, s47, 7")
    e("s_sub_u32 s46, s2, s46")
    e("s_lshl_b32 s46, s46, 8")
    e("s_lshl_b32 s47, s47, 7")
    e("s_lshl_b32 s48, s46, 1")
    e("s_lshl_b32 s49, s47, 1")
    g.setup_common()
    g.zero_acc()
    g.run_seg(Op('t', 4, 3456, 48), Op('t', 8, 1280, 49), 32, True)
    va = g.v_t1
    t0 = g.out_addr(va, 46, 47, 3456)
    e(f"v_lshl_add_u32 v{va}, v{va}, 4, v{t0}")
    vb = g.v_t2
    e(f"s_mul_i32 s24, s{g.s_wa}, {g.TA * 32}")
    e("s_add_u32 s50, s24, s46")
    e("s_lshl_b32 s24, s50, 1")
    e(f"v_lshrrev_b32 v{vb}, 5, v{g.v_lane}")
    e(f"v_lshlrev_b32 v{vb}, 3, v{vb}")
    e(f"v_add_u32 v{vb}, s24, v{vb}")
    e("s_nop 15")
    e("s_nop 7")
    e("s_mov_b32 s51, 0xffff0000")
    e("s_mov_b32 s52, 0x3d372713")
    e("s_mov_b32 s53, 0xc0135761")
    bias = g.v_fA
    bf = g.v_fA + 8
    tmp = g.v_fA + 24
    for ta in range(g.TA):
        e(f"s_add_u32 s24, s50, {ta * 32}")
        e("s_cmp_ge_u32 s24, 1728")
        e(f"s_cbranch_scc1 p1_u_skip{ta}")
        for q in range(4):
            e(f"buffer_load_dwordx2 v[{bias + 2 * q}:{bias + 2 * q + 1}], v{vb}, s[16:19], 0 offen offset:{ta * 64 + q * 16}")
        e("s_waitcnt vmcnt(0)")
        for i in range(8):
            e(f"v_lshlrev_b32 v{bf + 2 * i}, 16, v{bias + i}")
            e(f"v_and_b32 v{bf + 2 * i + 1}, s51, v{bias + i}")
        for tb in range(g.TB):
            d = g.v_acc + 16 * (ta * g.TB + tb)
            for i in range(16):
                x = d + i
                e(f"v_add_f32 v{x}, v{x}, v{bf + i}")
                e(f"v_mul_f32 v{tmp}, v{x}, v{x}")
                e(f"v_fma_f32 v{tmp}, v{tmp}, s52, 1.0")
                e(f"v_mul_f32 v{tmp}, v{tmp}, v{x}")
                e(f"v_mul_f32 v{tmp}, s53, v{tmp}")
                e(f"v_exp_f32 v{tmp}, v{tmp}")
                e("s_nop 0")
                e(f"v_add_f32 v{tmp}, 1.0, v{tmp}")
                e(f"v_rcp_f32 v{tmp}, v{tmp}")
                e("s_nop 0")
                e(f"v_mul_f32 v{x}, v{x}, v{tmp}")
            p = bias
            for i in range(8):
                e(f"v_cvt_pk_bf16_f32 v{p + i}, v{d + 2 * i}, v{d + 2 * i + 1}")
            e(f"s_mov_b32 s24, {tb * 32 * 3456}")
            e(f"buffer_store_dwordx4 v[{p}:{p + 3}], v{va}, s[12:15], s24 offen offset:{ta * 64}")
            e(f"buffer_store_dwordx4 v[{p + 4}:{p + 7}], v{va}, s[12:15], s24 offen offset:{ta * 64 + 32}")
            e("s_nop 1")
        e.label(f"p1_u_skip{ta}")
    e.label("p1_end")
    e("s_endpgm")
    return name, vmax, ntot, 131072


def gen_attn(e):
    name = "attn_kernel"
    kernel_header(e, name)
    e("s_cmp_ge_u32 s2, 256")
    e("s_cbranch_scc1 at_end")
    e(f"s_load_dwordx2 s[44:45], s[0:1], {KA['ws']}")
    e(f"s_load_dwordx2 s[60:61], s[0:1], {KA['dbg']}")
    nst = [0]
    if 'wgt' in XP:
        e("s_memrealtime s[90:91]")

    def stamp():
        if 'stamp' in XP and nst[0] < 12:
            e(f"s_memtime s[{64 + 2 * nst[0]}:{65 + 2 * nst[0]}]")
            nst[0] += 1
    vL, vt0, vt1, vt2 = 1, 2, 3, 4
    vdK, vdV = 6, 10
    vaK, vaV = 14, 22
    vm, vl, vmask, vst = 26, 27, 28, 29
    valpha, vmc, vx0, vx1 = 30, 31, 32, 33
    vcc2 = 34
    vQ = 36
    vS = 68
    vP = 100
    vF0 = 116
    vF1 = 148
    vO = 180
    VEND = 244
    sW, sG, sQS, sH, sJ, sQB, sIT, sKoff, sVoff, sStage, sT, sC, sPass, sQ0 = 20, 21, 22, 23, 24, 25, 26, 27, 28, 29, 30, 34, 35, 36
    sVst, sKrd, sVrd = 37, 38, 39
    e(f"v_and_b32 v{vL}, 63, v0")
    e(f"v_lshrrev_b32 v{vt0}, 6, v0")
    e("s_nop 0")
    e(f"v_readfirstlane_b32 s{sW}, v{vt0}")
    e("s_nop 3")
    e(f"s_lshr_b32 s{sG}, s{sW}, 2")
    e(f"s_and_b32 s{sQS}, s{sW}, 3")
    e("s_and_b32 s3, s2, 7")
    e(f"s_lshr_b32 s{sT}, s2, 3")
    e(f"s_lshr_b32 s{sH}, s{sT}, 3")
    e(f"s_lshl_b32 s3, s3, 2")
    e(f"s_add_u32 s{sH}, s{sH}, s3")
    e(f"s_and_b32 s{sJ}, s{sT}, 7")
    e("s_waitcnt lgkmcnt(0)")
    make_srd(e, 4, 44, 2048 * 8192, WS_Q)
    make_srd(e, 8, 44, 2048 * 8192, WS_K)
    make_srd(e, 12, 44, 4096 * 4096, WS_VT)
    make_srd(e, 16, 44, 2048 * 8192, WS_CTX)
    e(f"s_mov_b32 s{sC}, 0x3e0293ee")
    for jj in range(4):
        e(f"s_lshl_b32 s{sT}, s{sW}, 4")
        e(f"s_add_u32 s{sT}, s{sT}, {jj * 4}")
        e(f"v_lshrrev_b32 v{vt0}, 4, v{vL}")
        e(f"v_add_u32 v{vt0}, s{sT}, v{vt0}")
        e(f"v_xor_b32 v{vt1}, v{vt0}, v{vL}")
        e(f"v_and_b32 v{vt1}, 15, v{vt1}")
        e(f"v_lshlrev_b32 v{vt1}, 4, v{vt1}")
        e(f"v_lshl_add_u32 v{vdK + jj}, v{vt0}, 8, v{vt1}")
        if jj:
            e(f"v_subrev_u32 v{vdK + jj}, {jj * 1024}, v{vdK + jj}")
        e(f"v_mov_b32 v{vdV + jj}, v{vdK + jj}")
    e(f"v_and_b32 v{vt0}, 31, v{vL}")
    e(f"v_lshrrev_b32 v{vt1}, 5, v{vL}")
    e(f"v_and_b32 v{vt2}, 15, v{vL}")
    e(f"v_xor_b32 v{vt2}, v{vt2}, v{vt1}")
    e(f"v_lshlrev_b32 v{vt2}, 4, v{vt2}")
    e(f"s_lshl_b32 s{sT}, s{sG}, 6")
    e(f"v_add_u32 v{vx0}, s{sT}, v{vt0}")
    e(f"v_lshl_add_u32 v{vx0}, v{vx0}, 8, v{vt2}")
    for kk in range(8):
        e(f"v_xor_b32 v{vaK + kk}, {kk * 32}, v{vx0}")
    e(f"v_lshl_add_u32 v{vx0}, v{vt0}, 8, v{vt2}")
    e(f"v_add_u32 v{vx0}, 65536, v{vx0}")
    e(f"s_lshl_b32 s{sT}, s{sG}, 7")
    e(f"v_xor_b32 v{vx0}, s{sT}, v{vx0}")
    for kk in range(4):
        e(f"v_xor_b32 v{vaV + kk}, {kk * 32}, v{vx0}")
    e(f"s_lshl_b32 s{sT}, s{sQS}, 5")
    e(f"s_lshl_b32 s{sT + 1}, s{sG}, 6")
    e(f"s_sub_u32 s{sT}, s{sT}, s{sT + 1}")
    e(f"v_add_u32 v{vmask}, s{sT}, v{vt0}")
    e(f"v_lshlrev_b32 v{vt1}, 2, v{vt1}")
    e(f"v_sub_u32 v{vmask}, v{vmask}, v{vt1}")
    e(f"s_mov_b32 s{sPass}, 0")
    e(f"v_mov_b32 v{vcc2}, s{sC}")
    e(f"v_mov_b32 v{vcc2 + 1}, s{sC}")
    e(f"s_sub_u32 s{sQB}, 15, s{sJ}")
    e.label("at_qblock")
    e(f"s_lshl_b32 s{sQ0}, s{sQB}, 7")
    e(f"s_lshl_b32 s{sT}, s{sQS}, 5")
    e(f"s_add_u32 s{sT}, s{sT}, s{sQ0}")
    e(f"v_and_b32 v{vt0}, 31, v{vL}")
    e(f"v_add_u32 v{vt0}, s{sT}, v{vt0}")
    e(f"v_lshrrev_b32 v{vt1}, 5, v{vL}")
    e(f"v_lshlrev_b32 v{vt1}, 4, v{vt1}")
    e(f"v_lshl_add_u32 v{vt2}, v{vt0}, 8, v{vt1}")
    e(f"v_lshl_add_u32 v{vt0}, v{vt0}, 13, v{vt1}")
    e(f"s_lshl_b32 s{sT}, s{sH}, 8")
    e(f"v_add_u32 v{vst}, s{sT}, v{vt0}")
    e(f"s_lshl_b32 s{sT}, s{sH}, 19")
    for kk in range(8):
        e(f"buffer_load_dwordx4 v[{vQ + 4 * kk}:{vQ + 4 * kk + 3}], v{vt2}, s[4:7], s{sT} offen offset:{kk * 32}")
    e(f"v_mov_b32 v{vm}, 0xf149f2ca")
    e(f"v_mov_b32 v{vl}, 0")
    for i in range(64):
        e(f"v_mov_b32 v{vO + i}, 0")
    e(f"s_lshl_b32 s{sKoff}, s{sH}, 19")
    e(f"s_lshl_b32 s{sVoff}, s{sH}, 19")
    e(f"s_mov_b32 s{sStage}, 0")
    e(f"s_mov_b32 s{sVst}, 0")
    e(f"s_mov_b32 s{sKrd}, 0")
    e(f"s_mov_b32 s{sVrd}, 0")
    e(f"s_mov_b32 s{sIT}, 0")

    sDK, sDV, sD = 40, 41, 42

    def dma_setup():
        e(f"s_lshl_b32 s{sT}, s{sW}, 12")
        e(f"s_add_u32 s{sDK}, s{sT}, s{sStage}")
        e(f"s_add_u32 s{sDV}, s{sT}, s{sVst}")
        e(f"s_add_u32 s{sDV}, s{sDV}, 65536")

    def dma_piece(i):
        jj = i & 3
        if i == 0:
            e(f"s_mov_b32 m0, s{sDK}")
            e("s_nop 0")
        if i == 4:
            e(f"s_mov_b32 m0, s{sDV}")
            e("s_nop 0")
        if i < 4:
            e(f"buffer_load_dwordx4 v{vdK + jj}, s[8:11], s{sKoff} offen offset:{jj * 1024} lds")
        else:
            e(f"buffer_load_dwordx4 v{vdV + jj}, s[12:15], s{sVoff} offen offset:{jj * 1024} lds")

    def dma_advance():
        e(f"s_add_u32 s{sKoff}, s{sKoff}, 32768")
        e(f"s_add_u32 s{sVoff}, s{sVoff}, 32768")
        e(f"s_xor_b32 s{sStage}, s{sStage}, 32768")
        e(f"s_add_u32 s{sVst}, s{sVst}, 32768")
        e(f"s_cmp_eq_u32 s{sVst}, 98304")
        e(f"s_cselect_b32 s{sVst}, 0, s{sVst}")

    def dma():
        dma_setup()
        for i in range(8):
            dma_piece(i)
        dma_advance()

    pcnt = [0]

    def cond_piece(i):
        pcnt[0] += 1
        lab = f"at_np{pcnt[0]}"
        e(f"s_cmp_eq_u32 s{sD}, 0")
        e(f"s_cbranch_scc1 {lab}")
        dma_piece(i)
        if i == 7:
            dma_advance()
        e.label(lab)

    def top(tag):
        e("s_waitcnt vmcnt(0)")
        e("s_barrier")
        e(f"s_cmp_lg_u32 s{sIT}, s{sQB}")
        e(f"s_cselect_b32 s{sD}, 1, 0")
        dma_setup()

    def kreads(t):
        F = vF0 if t == 0 else vF1
        for kk in range(8):
            e(f"ds_read_b128 v[{F + 4 * kk}:{F + 4 * kk + 3}], v{vaK + kk} offset:{t * 8192}")

    def qk_mfma(t, pieces=()):
        F = vF0 if t == 0 else vF1
        d = vS + 16 * t
        pieces = list(pieces)
        for kk in range(8):
            c = "0" if kk == 0 else f"v[{d}:{d + 15}]"
            e(f"v_mfma_f32_32x32x16_bf16 v[{d}:{d + 15}], v[{F + 4 * kk}:{F + 4 * kk + 3}], v[{vQ + 4 * kk}:{vQ + 4 * kk + 3}], {c}")
            if pieces and kk & 1:
                cond_piece(pieces.pop(0))

    def k_adv():
        for i in range(8):
            e(f"v_xor_b32 v{vaK + i}, 0x8000, v{vaK + i}")
        e(f"s_xor_b32 s{sKrd}, s{sKrd}, 32768")

    def vreads():
        for dt in range(4):
            F = (vF0 if dt < 2 else vF1) + 16 * (dt & 1)
            for kk in range(4):
                e(f"ds_read_b128 v[{F + 4 * kk}:{F + 4 * kk + 3}], v{vaV + kk} offset:{dt * 8192}")
        e(f"s_add_u32 s{sT}, s{sVrd}, 32768")
        e(f"s_cmp_eq_u32 s{sT}, 98304")
        e(f"s_cselect_b32 s{sT}, 0, s{sT}")
        e(f"s_sub_u32 s{sT + 1}, s{sT}, s{sVrd}")
        e(f"s_mov_b32 s{sVrd}, s{sT}")
        for i in range(4):
            e(f"v_add_u32 v{vaV + i}, s{sT + 1}, v{vaV + i}")

    def pv_mfma(dts, pieces=()):
        pieces = list(pieces)
        for dt in dts:
            F = (vF0 if dt < 2 else vF1) + 16 * (dt & 1)
            d = vO + 16 * dt
            for kk in range(4):
                e(f"v_mfma_f32_32x32x16_bf16 v[{d}:{d + 15}], v[{F + 4 * kk}:{F + 4 * kk + 3}], v[{vP + 4 * kk}:{vP + 4 * kk + 3}], v[{d}:{d + 15}]")
                if pieces and kk & 1:
                    cond_piece(pieces.pop(0))

    def mask():
        e(f"v_mov_b32 v{vx0}, 0xf149f2ca")
        for t in range(2):
            for r in range(16):
                cst = t * 32 + (r & 3) + 8 * (r >> 2)
                e(f"v_cmp_gt_i32 vcc, {cst}, v{vmask}")
                e("s_nop 1")
                e(f"v_cndmask_b32 v{vS + 16 * t + r}, v{vS + 16 * t + r}, v{vx0}, vcc")

    def softmax(tag, with_dma=False):
        e("s_setprio 1")
        e(f"v_max3_f32 v{vx0}, v{vS}, v{vS + 1}, v{vS + 2}")
        for i in range(3, 31, 2):
            e(f"v_max3_f32 v{vx0}, v{vx0}, v{vS + i}, v{vS + i + 1}")
        e(f"v_max_f32 v{vx0}, v{vx0}, v{vS + 31}")
        e(f"v_mov_b32 v{vx1}, v{vx0}")
        e("s_nop 1")
        e(f"v_permlane32_swap_b32 v{vx0}, v{vx1}")
        e("s_nop 1")
        e(f"v_max3_f32 v{vx0}, v{vx0}, v{vx1}, v{vm}")
        e(f"v_sub_f32 v{valpha}, v{vm}, v{vx0}")
        e(f"v_mul_f32 v{valpha}, s{sC}, v{valpha}")
        e(f"v_cmp_gt_f32 vcc, -8.0, v{valpha}")
        e("s_nop 4")
        e(f"s_cbranch_vccz {tag}_norescale")
        e(f"v_exp_f32 v{valpha}, v{valpha}")
        e(f"v_mov_b32 v{vm}, v{vx0}")
        e(f"v_mul_f32 v{vl}, v{vl}, v{valpha}")
        for i in range(64):
            e(f"v_mul_f32 v{vO + i}, v{vO + i}, v{valpha}")
        e.label(f"{tag}_norescale")
        e(f"v_mul_f32 v{vx0}, s{sC}, v{vm}")
        e(f"v_sub_f32 v{vx0}, 0, v{vx0}")
        e(f"v_mov_b32 v{vx1}, v{vx0}")
        for i in range(16):
            r = vS + 2 * i
            e(f"v_pk_fma_f32 v[{r}:{r + 1}], v[{r}:{r + 1}], v[{vcc2}:{vcc2 + 1}], v[{vx0}:{vx1}]")
            e(f"v_exp_f32 v{r}, v{r}")
            e(f"v_exp_f32 v{r + 1}, v{r + 1}")
        vreads()
        e(f"v_pk_add_f32 v[{vx0}:{vx1}], v[{vS}:{vS + 1}], v[{vS + 2}:{vS + 3}]")
        for i in range(2, 16):
            e(f"v_pk_add_f32 v[{vx0}:{vx1}], v[{vx0}:{vx1}], v[{vS + 2 * i}:{vS + 2 * i + 1}]")
        e(f"v_add_f32 v{vl}, v{vl}, v{vx0}")
        e(f"v_add_f32 v{vl}, v{vl}, v{vx1}")
        for i in range(16):
            e(f"v_cvt_pk_bf16_f32 v{vP + i}, v{vS + 2 * i}, v{vS + 2 * i + 1}")
        e("s_setprio 0")

    def pv_qk(with_pv, with_dma):
        pc = list(range(8)) if with_dma else []
        if with_pv:
            e("s_waitcnt lgkmcnt(0)")
            e("s_nop 1")
            pv_mfma((0, 1), pc[0:4])
            kreads(0)
            pv_mfma((2, 3), pc[4:8])
            kreads(1)
            e("s_waitcnt lgkmcnt(8)")
            qk_mfma(0)
            e("s_waitcnt lgkmcnt(0)")
            qk_mfma(1)
        else:
            kreads(0)
            kreads(1)
            e("s_waitcnt lgkmcnt(8)")
            qk_mfma(0, pc[0:4])
            e("s_waitcnt lgkmcnt(0)")
            qk_mfma(1, pc[4:8])
        k_adv()

    def pv_only():
        e("s_waitcnt lgkmcnt(0)")
        e("s_nop 1")
        pv_mfma((0, 1, 2, 3))

    dma()
    e(f"s_cmp_eq_u32 s{sG}, 1")
    e("s_cbranch_scc1 at1_loop")
    e.label("at0_loop")
    stamp()
    top("at0")
    stamp()
    e(f"s_cmp_eq_u32 s{sIT}, 0")
    e("s_cbranch_scc1 at0_first")
    pv_qk(True, True)
    e("s_branch at0_sm")
    e.label("at0_first")
    pv_qk(False, True)
    e.label("at0_sm")
    stamp()
    e("s_nop 15")
    e(f"s_cmp_lg_u32 s{sIT}, s{sQB}")
    e("s_cbranch_scc1 at0_nomask")
    mask()
    e.label("at0_nomask")
    softmax("at0")
    stamp()
    if 'stamp' in XP:
        e("s_waitcnt lgkmcnt(0)")
        e(f"s_cmp_eq_u32 s{sIT}, 5")
        e("s_cbranch_scc0 at0_nost")
        e("s_cmp_eq_u32 s2, 0")
        e("s_cbranch_scc0 at0_nost")
        e(f"s_cmp_eq_u32 s{sW}, 0")
        e("s_cbranch_scc0 at0_nost")
        e(f"v_mov_b32 v{vx0}, 0")
        for i in range(6):
            e(f"v_mov_b32 v{vx1}, s{64 + 2 * i}")
            e(f"global_store_dword v{vx0}, v{vx1}, s[60:61] offset:{4 * i}")
            e("s_nop 1")
        e.label("at0_nost")
    e(f"s_add_u32 s{sIT}, s{sIT}, 1")
    e(f"s_cmp_le_u32 s{sIT}, s{sQB}")
    e("s_cbranch_scc1 at0_loop")
    pv_only()
    e("s_branch at_done")
    e.label("at1_loop")
    nst[0] = 0
    stamp()
    top("at1")
    stamp()
    e(f"s_cmp_eq_u32 s{sIT}, 0")
    e("s_cbranch_scc1 at1_first")
    softmax("at1", with_dma=False)
    stamp()
    e(f"s_cmp_lg_u32 s{sIT}, s{sQB}")
    e("s_cbranch_scc1 at1_doqk")
    e(f"s_cmp_lt_u32 s{sQS}, 2")
    e("s_cbranch_scc0 at1_doqk")
    pv_only()
    e("s_branch at_done")
    e.label("at1_doqk")
    pv_qk(True, True)
    e("s_branch at1_next")
    e.label("at1_first")
    for i in range(8):
        cond_piece(i)
    e(f"s_cmp_lg_u32 s{sIT}, s{sQB}")
    e("s_cbranch_scc1 at1_doqk0")
    e(f"s_cmp_lt_u32 s{sQS}, 2")
    e("s_cbranch_scc1 at_done")
    e.label("at1_doqk0")
    pv_qk(False, False)
    e.label("at1_next")
    stamp()
    if 'stamp' in XP:
        e("s_waitcnt lgkmcnt(0)")
        e(f"s_cmp_eq_u32 s{sIT}, 5")
        e("s_cbranch_scc0 at1_nost")
        e("s_cmp_eq_u32 s2, 0")
        e("s_cbranch_scc0 at1_nost")
        e(f"s_cmp_eq_u32 s{sW}, 4")
        e("s_cbranch_scc0 at1_nost")
        e(f"v_mov_b32 v{vx0}, 0")
        for i in range(6):
            e(f"v_mov_b32 v{vx1}, s{64 + 2 * i}")
            e(f"global_store_dword v{vx0}, v{vx1}, s[60:61] offset:{24 + 4 * i}")
            e("s_nop 1")
        e.label("at1_nost")
    e(f"s_add_u32 s{sIT}, s{sIT}, 1")
    e(f"s_cmp_le_u32 s{sIT}, s{sQB}")
    e("s_cbranch_scc1 at1_loop")
    e("s_nop 15")
    mask()
    softmax("at1b")
    pv_only()
    e.label("at_done")
    e(f"s_sub_u32 s{sT}, 0, s{sKrd}")
    for i in range(8):
        e(f"v_add_u32 v{vaK + i}, s{sT}, v{vaK + i}")
    e(f"s_sub_u32 s{sT}, 0, s{sVrd}")
    for i in range(4):
        e(f"v_add_u32 v{vaV + i}, s{sT}, v{vaV + i}")
    e("s_nop 15")
    e("s_nop 7")
    e(f"v_mov_b32 v{vx1}, v{vl}")
    e("s_nop 1")
    e(f"v_permlane32_swap_b32 v{vl}, v{vx1}")
    e("s_nop 1")
    e(f"v_add_f32 v{vl}, v{vl}, v{vx1}")
    e("s_barrier")
    e(f"s_lshl_b32 s{sT}, s{sQS}, 14")
    e(f"v_lshlrev_b32 v{vx0}, 4, v{vL}")
    e(f"v_add_u32 v{vx0}, s{sT}, v{vx0}")
    e(f"s_lshl_b32 s{sT}, s{sQS}, 9")
    e(f"v_lshlrev_b32 v{vx1}, 3, v{vL}")
    e(f"v_add_u32 v{vx1}, s{sT}, v{vx1}")
    e(f"v_add_u32 v{vx1}, 65536, v{vx1}")
    e(f"s_cmp_eq_u32 s{sG}, 0")
    e("s_cbranch_scc1 at_merge0")
    for i in range(16):
        e(f"ds_write_b128 v{vx0}, v[{vO + 4 * i}:{vO + 4 * i + 3}] offset:{i * 1024}")
    e(f"ds_write_b64 v{vx1}, v[{vm}:{vl}]")
    e("s_waitcnt lgkmcnt(0)")
    e("s_barrier")
    e("s_branch at_mergedone")
    e.label("at_merge0")
    e("s_barrier")
    e(f"ds_read_b64 v[{vS}:{vS + 1}], v{vx1}")
    for i in range(16):
        e(f"ds_read_b128 v[{vF0 + 4 * i}:{vF0 + 4 * i + 3}], v{vx0} offset:{i * 1024}")
    e("s_waitcnt lgkmcnt(0)")
    e(f"v_max_f32 v{vt0}, v{vm}, v{vS}")
    e(f"v_sub_f32 v{vt1}, v{vm}, v{vt0}")
    e(f"v_sub_f32 v{vt2}, v{vS}, v{vt0}")
    e(f"v_mul_f32 v{vt1}, s{sC}, v{vt1}")
    e(f"v_mul_f32 v{vt2}, s{sC}, v{vt2}")
    e(f"v_exp_f32 v{vt1}, v{vt1}")
    e(f"v_exp_f32 v{vt2}, v{vt2}")
    e("s_nop 0")
    e(f"v_mul_f32 v{vl}, v{vl}, v{vt1}")
    e(f"v_fmac_f32 v{vl}, v{vS + 1}, v{vt2}")
    e(f"v_rcp_f32 v{vl}, v{vl}")
    e("s_nop 0")
    e(f"v_mul_f32 v{vt1}, v{vt1}, v{vl}")
    e(f"v_mul_f32 v{vt2}, v{vt2}, v{vl}")
    for i in range(64):
        e(f"v_mul_f32 v{vO + i}, v{vO + i}, v{vt1}")
        e(f"v_fmac_f32 v{vO + i}, v{vF0 + i}, v{vt2}")
    for i in range(32):
        e(f"v_cvt_pk_bf16_f32 v{vS + i}, v{vO + 2 * i}, v{vO + 2 * i + 1}")
    for i in range(8):
        e(f"buffer_store_dwordx4 v[{vS + 4 * i}:{vS + 4 * i + 3}], v{vst}, s[16:19], 0 offen offset:{i * 32}")
    e.label("at_mergedone")
    e("s_barrier")
    e(f"s_add_u32 s{sPass}, s{sPass}, 1")
    e(f"s_mov_b32 s{sQB}, s{sJ}")
    e(f"s_cmp_eq_u32 s{sPass}, 1")
    e("s_cbranch_scc1 at_qblock")
    if 'wgt' in XP:
        e("s_memrealtime s[92:93]")
        e("s_waitcnt lgkmcnt(0)")
        e("s_lshl_b32 s3, s2, 3")
        e("s_add_u32 s3, s3, 0x6f00000")
        e("v_mov_b32 v2, s3")
        e("v_mov_b32 v4, s90")
        e("v_mov_b32 v5, s92")
        e("s_nop 1")
        e("global_store_dwordx2 v2, v[4:5], s[44:45]")
    e.label("at_end")
    e("s_endpgm")
    return name, VEND, 256, 163840


WS_PART = 0x6000000


def gen_final(e):
    name = "final_kernel"
    kernel_header(e, name)
    NT = 240
    e(f"s_cmp_ge_u32 s2, {NT}")
    e("s_cbranch_scc1 fi_end")
    e(f"s_load_dwordx2 s[34:35], s[0:1], {KA['wo']}")
    e(f"s_load_dwordx2 s[36:37], s[0:1], {KA['w2']}")
    e(f"s_load_dwordx2 s[44:45], s[0:1], {KA['ws']}")
    e("s_waitcnt lgkmcnt(0)")
    g = Gemm(e, "fi", 128, 128, 2, 4, NS=4)
    make_srd(e, 4, 34, 4096 * 1280)
    make_srd(e, 8, 44, 2048 * 8192, WS_CTX)
    make_srd(e, 12, 44, 3 * 2048 * 2560, WS_PART)
    make_srd(e, 56, 44, 640 * 3456, WS_U)
    make_srd(e, 60, 36, 1728 * 4096)
    e("s_and_b32 s47, s2, 7")
    e("s_lshr_b32 s52, s2, 3")
    e("s_lshl_b32 s47, s47, 1")
    e("s_and_b32 s46, s52, 1")
    e("s_add_u32 s47, s47, s46")
    e("s_lshr_b32 s52, s52, 1")
    e("s_mul_i32 s53, s52, 205")
    e("s_lshr_b32 s53, s53, 10")
    e("s_mul_i32 s46, s53, 5")
    e("s_sub_u32 s46, s52, s46")
    e("s_lshl_b32 s46, s46, 7")
    e("s_lshl_b32 s47, s47, 7")
    g.setup_common()
    g.zero_acc()
    e("s_cmp_eq_u32 s53, 2")
    e("s_cbranch_scc1 fi_seg2")
    e("s_mul_i32 s48, s53, %d" % (2048 * 1280))
    e("s_lshl_b32 s24, s46, 1")
    e("s_add_u32 s48, s48, s24")
    e("s_lshl_b32 s49, s47, 13")
    e("s_lshl_b32 s24, s53, 12")
    e("s_add_u32 s49, s49, s24")
    g.run_seg(Op('t', 4, 1280, 48, perm=True), Op('k', 8, 8192, 49), 32, True)
    e("s_branch fi_epi")
    e.label("fi_seg2")
    e("s_mul_i32 s50, s46, 3456")
    e("s_lshl_b32 s51, s47, 1")
    g.run_seg(Op('k', 56, 3456, 50), Op('t', 60, 4096, 51, perm=True), 27, True)
    e.label("fi_epi")
    va = g.v_t1
    L, t0, st = g.v_lane, g.v_t0, g.s_t
    e(f"s_mul_i32 s{st}, s{g.s_wb}, {g.TB * 32}")
    e(f"s_add_u32 s{st}, s{st}, s47")
    e(f"v_and_b32 v{t0}, 31, v{L}")
    e(f"v_add_u32 v{t0}, s{st}, v{t0}")
    e(f"s_movk_i32 s{st + 1}, 2560")
    e(f"v_mul_lo_u32 v{t0}, v{t0}, s{st + 1}")
    e(f"s_mul_i32 s{st}, s{g.s_wa}, {g.TA * 32}")
    e(f"s_add_u32 s{st}, s{st}, s46")
    e(f"s_lshl_b32 s{st}, s{st}, 2")
    e(f"s_mul_i32 s{st + 1}, s53, {2048 * 2560}")
    e(f"s_add_u32 s{st}, s{st}, s{st + 1}")
    e(f"v_add_u32 v{t0}, s{st}, v{t0}")
    e(f"v_lshrrev_b32 v{va}, 5, v{L}")
    e(f"v_lshl_add_u32 v{va}, v{va}, 4, v{t0}")
    e("s_nop 15")
    e("s_nop 7")
    for ta in range(g.TA):
        for tb in range(g.TB):
            d = g.v_acc + 16 * (ta * g.TB + tb)
            e(f"s_mov_b32 s24, {tb * 32 * 2560}")
            for q in range(4):
                e(f"buffer_store_dwordx4 v[{d + 4 * q}:{d + 4 * q + 3}], v{va}, s[12:15], s24 offen offset:{ta * 128 + q * 32}")
    e.label("fi_end")
    e("s_endpgm")
    return name, g.v_end, NT, g.lds


def gen_reduce(e):
    name = "reduce_kernel"
    kernel_header(e, name)
    NT = 640
    e(f"s_cmp_ge_u32 s2, {NT}")
    e("s_cbranch_scc1 rd_end")
    e(f"s_load_dwordx2 s[32:33], s[0:1], {KA['x']}")
    e(f"s_load_dwordx2 s[38:39], s[0:1], {KA['b2']}")
    e(f"s_load_dwordx2 s[40:41], s[0:1], {KA['out']}")
    e(f"s_load_dwordx2 s[44:45], s[0:1], {KA['ws']}")
    e("s_lshl_b32 s3, s2, 8")
    e("v_add_u32 v1, s3, v0")
    e("v_lshlrev_b32 v2, 4, v1")
    e("v_lshlrev_b32 v3, 5, v1")
    e("s_mov_b32 s4, 0x3333334")
    e("v_mul_hi_u32 v4, v1, s4")
    e("v_lshlrev_b32 v4, 1, v4")
    e("s_waitcnt lgkmcnt(0)")
    make_srd(e, 8, 32, 2048 * 1280)
    make_srd(e, 12, 40, 2048 * 1280)
    make_srd(e, 16, 44, 3 * 2048 * 2560, WS_PART)
    make_srd(e, 20, 38, 4096)
    e("buffer_load_dwordx4 v[8:11], v2, s[8:11], 0 offen")
    e("buffer_load_ushort v5, v4, s[20:23], 0 offen")
    for sp in range(3):
        e(f"s_mov_b32 s24, {sp * 2048 * 2560}")
        e(f"buffer_load_dwordx4 v[{12 + 8 * sp}:{15 + 8 * sp}], v3, s[16:19], s24 offen")
        e(f"buffer_load_dwordx4 v[{16 + 8 * sp}:{19 + 8 * sp}], v3, s[16:19], s24 offen offset:16")
    e("s_mov_b32 s25, 0xffff0000")
    e("s_waitcnt vmcnt(0)")
    e("v_lshlrev_b32 v5, 16, v5")
    for i in range(8):
        e(f"v_add_f32 v{12 + i}, v{12 + i}, v{20 + i}")
        e(f"v_add_f32 v{12 + i}, v{12 + i}, v{28 + i}")
        e(f"v_add_f32 v{12 + i}, v{12 + i}, v5")
    for i in range(4):
        e(f"v_lshlrev_b32 v6, 16, v{8 + i}")
        e(f"v_and_b32 v7, s25, v{8 + i}")
        e(f"v_add_f32 v6, v6, v{12 + 2 * i}")
        e(f"v_add_f32 v7, v7, v{13 + 2 * i}")
        e(f"v_cvt_pk_bf16_f32 v{8 + i}, v6, v7")
    e("buffer_store_dwordx4 v[8:11], v2, s[12:15], 0 offen")
    e.label("rd_end")
    e("s_endpgm")
    return name, 40, NT, 0


def main():
    e = E()
    launches = []
    body = E()
    descs = E()
    n, v = gen_ln(body)
    kernel_desc(descs, n, v)
    launches.append((n, 512, 256, 0))
    n, v, g, lds = gen_p1(body)
    kernel_desc(descs, n, v)
    launches.append((n, g, 512, lds))
    n, v, g, lds = gen_attn(body)
    kernel_desc(descs, n, v)
    launches.append((n, g, 512, lds))
    n, v, g, lds = gen_final(body)
    kernel_desc(descs, n, v)
    launches.append((n, g, 512, lds))
    n, v, g, lds = gen_reduce(body)
    kernel_desc(descs, n, v)
    launches.append((n, g, 256, lds))
    for (n, g, b, lds) in launches:
        e.raw(f"; @launch kernel={n} grid=({g},1,1) block=({b},1,1) lds={lds}")
    e.raw('.amdgcn_target "amdgcn-amd-amdhsa--gfx950"')
    out = e.text() + body.text() + descs.text()
    path = sys.argv[1] if len(sys.argv) > 1 else f"cdna_kernels/{KN}.s"
    open(path, "w").write(out)
    print("wrote", path, len(out))


if __name__ == "__main__":
    main()
```

```python
import sys
import math
import os
XP = os.environ.get('XP', '')

KN = "parallel_sum__compressed_kv_cla__mixer_token_mlp__prompt"

WS_XN = 0x0000000
WS_H = 0x0280000
WS_Q = 0x1000000
WS_K = 0x2000000
WS_VT = 0x3000000
WS_U = 0x4000000
WS_CTX = 0x5000000

KA = dict(x=0, ckv=8, wq=16, wuk=24, wuv=32, wo=40, bx=48, w1=56, b1=64, w2=72, b2=80, out=88, dbg=96, ws=104)


class E:
    def __init__(self):
        self.lines = []

    def __call__(self, s):
        self.lines.append("    " + s)

    def label(self, l):
        self.lines.append(l + ":")

    def raw(self, s):
        self.lines.append(s)

    def text(self):
        return "\n".join(self.lines) + "\n"


def vr(a, n=1):
    return f"v{a}" if n == 1 else f"v[{a}:{a + n - 1}]"


def sr(a, n=1):
    return f"s{a}" if n == 1 else f"s[{a}:{a + n - 1}]"


def kernel_header(e, name):
    e.raw(".text")
    e.raw(f".globl {name}")
    e.raw(".p2align 8")
    e.raw(f".type {name},@function")
    e.label(name)


def kernel_desc(e, name, vgpr, sgpr=96):
    acc = (vgpr + 3) // 4 * 4
    e.raw('.section .rodata,"a"')
    e.raw(".p2align 6")
    e.raw(f".amdhsa_kernel {name}")
    e.raw(f"  .amdhsa_next_free_vgpr {vgpr}")
    e.raw(f"  .amdhsa_next_free_sgpr {sgpr}")
    e.raw(f"  .amdhsa_accum_offset {acc}")
    e.raw("  .amdhsa_group_segment_fixed_size 0")
    e.raw("  .amdhsa_kernarg_size 112")
    e.raw("  .amdhsa_user_sgpr_count 2")
    e.raw("  .amdhsa_user_sgpr_kernarg_segment_ptr 1")
    e.raw("  .amdhsa_system_sgpr_workgroup_id_x 1")
    e.raw(".end_amdhsa_kernel")


def make_srd(e, d, ptr, nbytes, off=0):
    if off:
        e(f"s_add_u32 s{d}, s{ptr}, 0x{off:x}")
        e(f"s_addc_u32 s{d + 1}, s{ptr + 1}, 0")
    else:
        e(f"s_mov_b32 s{d}, s{ptr}")
        e(f"s_mov_b32 s{d + 1}, s{ptr + 1}")
    e(f"s_mov_b32 s{d + 2}, 0x{nbytes:x}")
    e(f"s_mov_b32 s{d + 3}, 0x00020000")


def wave_sum(e, v, t):
    for off in (0x041F, 0x081F, 0x101F, 0x201F, 0x401F):
        e(f"ds_swizzle_b32 v{t}, v{v} offset:0x{off:04X}")
        e("s_waitcnt lgkmcnt(0)")
        e(f"v_add_f32 v{v}, v{v}, v{t}")
    e(f"v_mov_b32 v{t}, v{v}")
    e("s_nop 1")
    e(f"v_permlane32_swap_b32 v{t}, v{v}")
    e("s_nop 1")
    e(f"v_add_f32 v{v}, v{v}, v{t}")


def gen_ln(e):
    name = "ln_kernel"
    kernel_header(e, name)
    e("s_cmp_ge_u32 s2, 512")
    e("s_cbranch_scc1 ln_end")
    e(f"s_load_dwordx2 s[4:5], s[0:1], {KA['x']}")
    e(f"s_load_dwordx2 s[6:7], s[0:1], {KA['ws']}")
    e("v_lshrrev_b32 v1, 6, v0")
    e("v_and_b32 v2, 63, v0")
    e("s_lshl_b32 s3, s2, 2")
    e("v_add_u32 v1, s3, v1")
    e("s_movk_i32 s16, 1280")
    e("v_mul_lo_u32 v1, v1, s16")
    e("v_lshl_add_u32 v1, v2, 2, v1")
    e("s_waitcnt lgkmcnt(0)")
    make_srd(e, 8, 4, 2048 * 1280)
    make_srd(e, 12, 6, 2 * 2048 * 1280)
    for i in range(5):
        e(f"buffer_load_dword v{4 + i}, v1, s[8:11], 0 offen offset:{i * 256}")
    e("s_waitcnt vmcnt(0)")
    e("s_mov_b32 s17, 0x3acccccd")
    e("s_mov_b32 s18, 0x3727c5ac")
    e("s_mov_b32 s19, 0xffff0000")

    def ln_pass(dst_off):
        for i in range(5):
            e(f"v_lshlrev_b32 v{10 + 2 * i}, 16, v{4 + i}")
            e(f"v_and_b32 v{11 + 2 * i}, s19, v{4 + i}")
        e("v_add_f32 v20, v10, v11")
        for i in range(2, 10):
            e(f"v_add_f32 v20, v20, v{10 + i}")
        wave_sum(e, 20, 21)
        e("v_mul_f32 v20, s17, v20")
        for i in range(10):
            e(f"v_sub_f32 v{10 + i}, v{10 + i}, v20")
        e("v_mul_f32 v22, v10, v10")
        for i in range(1, 10):
            e(f"v_fmac_f32 v22, v{10 + i}, v{10 + i}")
        wave_sum(e, 22, 21)
        e("v_mov_b32 v23, s18")
        e("v_fmac_f32 v23, s17, v22")
        e("v_rsq_f32 v23, v23")
        e("s_nop 1")
        for i in range(10):
            e(f"v_mul_f32 v{10 + i}, v{10 + i}, v23")
        for i in range(5):
            e(f"v_cvt_pk_bf16_f32 v{4 + i}, v{10 + 2 * i}, v{11 + 2 * i}")
        e("s_mov_b32 s20, 0x%x" % dst_off)
        for i in range(5):
            e(f"buffer_store_dword v{4 + i}, v1, s[12:15], s20 offen offset:{i * 256}")

    ln_pass(WS_XN)
    e("s_nop 4")
    ln_pass(WS_H)
    e.label("ln_end")
    e("s_endpgm")
    return name, 32


class Op:
    def __init__(self, mode, srd, ld, base, perm=False):
        self.mode = mode
        self.srd = srd
        self.ld = ld
        self.base = base
        self.perm = perm


class Gemm:
    def __init__(self, e, tag, BA, BB, WA, WB, vbase=2, NS=2):
        self.e = e
        self.tag = tag
        self.BA, self.BB, self.WA, self.WB = BA, BB, WA, WB
        self.NW = WA * WB
        self.TA = BA // WA // 32
        self.TB = BB // WB // 32
        self.SA = BA * 128
        self.SB = BB * 128
        st = self.SA + self.SB
        self.NS = NS
        self.stage = st
        self.lds = st * NS
        self.nA = self.SA // 1024 // self.NW
        self.nB = self.SB // 1024 // self.NW
        assert self.nA * 1024 * self.NW == self.SA and self.nB * 1024 * self.NW == self.SB
        v = vbase
        self.v_lane = v; v += 1
        self.v_t0 = v; v += 1
        self.v_t1 = v; v += 1
        self.v_t2 = v; v += 1
        self.v_dmaA = v; v += self.nA
        self.v_dmaB = v; v += self.nB
        self.v_adrA = v; v += 4
        self.v_adrB = v; v += 4
        v = (v + 3) // 4 * 4
        self.v_fA = v; v += 2 * 4 * self.TA
        self.v_fB = v; v += 2 * 4 * self.TB
        self.v_acc = v; v += 16 * self.TA * self.TB
        self.v_end = v
        self.s_wave = 20
        self.s_cnt = 21
        self.s_offA = 22
        self.s_offB = 23
        self.s_t = 24
        self.s_wa = 28
        self.s_wb = 29
        self.s_stage = 30
        self.s_rd = 31

    def setup_common(self):
        e = self.e
        e(f"v_and_b32 v{self.v_lane}, 63, v0")
        e(f"v_lshrrev_b32 v{self.v_t0}, 6, v0")
        e("s_nop 0")
        e(f"v_readfirstlane_b32 s{self.s_wave}, v{self.v_t0}")
        e("s_nop 3")
        lw = int(math.log2(self.WA))
        e(f"s_and_b32 s{self.s_wa}, s{self.s_wave}, {self.WA - 1}")
        e(f"s_lshr_b32 s{self.s_wb}, s{self.s_wave}, {lw}")

    def setup_op(self, op, R, n, v_dma, v_adr, s_wcoord, T, lds_base):
        e = self.e
        L, t0, t1, t2 = self.v_lane, self.v_t0, self.v_t1, self.v_t2
        st = self.s_t
        if op.mode == 'k':
            for jj in range(n):
                e(f"s_mul_i32 s{st}, s{self.s_wave}, {n * 8}")
                e(f"s_add_u32 s{st}, s{st}, {jj * 8}")
                e(f"v_lshrrev_b32 v{t0}, 3, v{L}")
                e(f"v_add_u32 v{t0}, s{st}, v{t0}")
                e(f"v_bfe_u32 v{t1}, v{t0}, 1, 3")
                e(f"v_and_b32 v{t2}, 7, v{L}")
                e(f"v_xor_b32 v{t1}, v{t1}, v{t2}")
                e(f"s_mov_b32 s{st + 1}, {op.ld}")
                e(f"v_mul_lo_u32 v{t0}, v{t0}, s{st + 1}")
                e(f"v_lshl_add_u32 v{v_dma + jj}, v{t1}, 4, v{t0}")
            e(f"s_mul_i32 s{st}, s{s_wcoord}, {T * 32}")
            e(f"v_and_b32 v{t0}, 31, v{L}")
            e(f"v_add_u32 v{t0}, s{st}, v{t0}")
            e(f"v_bfe_u32 v{t1}, v{t0}, 1, 3")
            e(f"v_lshrrev_b32 v{t2}, 5, v{L}")
            e(f"v_lshlrev_b32 v{t0}, 7, v{t0}")
            for kk in range(4):
                e(f"v_add_u32 v{v_adr + kk}, {2 * kk}, v{t2}")
                e(f"v_xor_b32 v{v_adr + kk}, v{v_adr + kk}, v{t1}")
                e(f"v_lshl_add_u32 v{v_adr + kk}, v{v_adr + kk}, 4, v{t0}")
                if lds_base:
                    e(f"v_add_u32 v{v_adr + kk}, {lds_base}, v{v_adr + kk}")
        else:
            rb = 2 * R
            lrb = int(math.log2(rb))
            for jj in range(n):
                e(f"s_mul_i32 s{st}, s{self.s_wave}, {n * 1024}")
                e(f"s_add_u32 s{st}, s{st}, {jj * 1024}")
                e(f"v_lshlrev_b32 v{t0}, 4, v{L}")
                e(f"v_add_u32 v{t0}, s{st}, v{t0}")
                e(f"v_lshrrev_b32 v{t1}, {lrb}, v{t0}")
                e(f"v_and_b32 v{t0}, {rb - 1}, v{t0}")
                if rb >= 256:
                    e(f"v_and_b32 v{t2}, 3, v{t1}")
                else:
                    e(f"v_bfe_u32 v{t2}, v{t1}, 1, 1")
                e(f"v_lshlrev_b32 v{t2}, 6, v{t2}")
                e(f"v_xor_b32 v{t0}, v{t0}, v{t2}")
                e(f"s_mov_b32 s{st + 1}, {op.ld}")
                e(f"v_mul_lo_u32 v{t1}, v{t1}, s{st + 1}")
                e(f"v_add_u32 v{v_dma + jj}, v{t0}, v{t1}")
            e(f"v_lshrrev_b32 v{t0}, 5, v{L}")
            e(f"v_lshlrev_b32 v{t0}, {2 if op.perm else 3}, v{t0}")
            e(f"v_bfe_u32 v{t1}, v{L}, 2, 2")
            e(f"v_add_u32 v{t0}, v{t0}, v{t1}")
            e(f"v_lshlrev_b32 v{t0}, {lrb}, v{t0}")
            e(f"v_bfe_u32 v{t2}, v{L}, 4, 1")
            e(f"v_lshlrev_b32 v{t2}, 5, v{t2}")
            e(f"v_add_u32 v{t0}, v{t0}, v{t2}")
            e(f"v_and_b32 v{t2}, 3, v{L}")
            e(f"v_lshl_add_u32 v{t0}, v{t2}, 3, v{t0}")
            if rb < 256:
                e(f"v_bfe_u32 v{t1}, v{L}, 3, 1")
            for t in range(T):
                e(f"s_mul_i32 s{st}, s{s_wcoord}, {T}")
                e(f"s_add_u32 s{st}, s{st}, {t}")
                e(f"v_xor_b32 v{t2}, s{st}, v{t1}")
                e(f"v_lshl_add_u32 v{v_adr + t}, v{t2}, 6, v{t0}")
                if lds_base:
                    e(f"v_add_u32 v{v_adr + t}, {lds_base}, v{v_adr + t}")

    def n_adr(self, op, T):
        return 4 if op.mode == 'k' else T

    def issue_dma(self, op, n, v_dma, lds_base, s_off):
        e = self.e
        st = self.s_t
        for jj in range(n):
            e(f"s_mul_i32 s{st}, s{self.s_wave}, {n * 1024}")
            e(f"s_add_u32 s{st}, s{st}, s{self.s_stage}")
            e(f"s_add_u32 m0, s{st}, {lds_base + jj * 1024}")
            e("s_nop 0")
            e(f"buffer_load_dwordx4 v{v_dma + jj}, s[{op.srd}:{op.srd + 3}], s{s_off} offen lds")

    def read_frags(self, op, R, T, v_adr, v_f, kk):
        e = self.e
        cnt = 0
        if op.mode == 'k':
            for t in range(T):
                e(f"ds_read_b128 v[{v_f + 4 * t}:{v_f + 4 * t + 3}], v{v_adr + kk} offset:{t * 4096}")
                cnt += 1
        else:
            rb = 2 * R
            hstep = 8 if op.perm else 4
            for t in range(T):
                for half in range(2):
                    off = (kk * 16 + half * hstep) * rb
                    e(f"ds_read_b64_tr_b16 v[{v_f + 4 * t + 2 * half}:{v_f + 4 * t + 2 * half + 1}], v{v_adr + t} offset:{off}")
                    cnt += 1
        return cnt

    def zero_acc(self):
        for i in range(16 * self.TA * self.TB):
            self.e(f"v_mov_b32 v{self.v_acc + i}, 0")

    def run_seg(self, A, B, nk, first):
        e = self.e
        tag = self.tag
        NS = self.NS
        self.seg = getattr(self, "seg", 0) + 1
        lab = f"{tag}_s{self.seg}"
        self.setup_op(A, self.BA, self.nA, self.v_dmaA, self.v_adrA, self.s_wa, self.TA, 0)
        self.setup_op(B, self.BB, self.nB, self.v_dmaB, self.v_adrB, self.s_wb, self.TB, self.SA)
        stepA = 128 if A.mode == 'k' else 64 * A.ld
        stepB = 128 if B.mode == 'k' else 64 * B.ld
        nd = self.nA + self.nB
        assert nk >= NS
        e(f"s_mov_b32 s{self.s_offA}, s{A.base}")
        e(f"s_mov_b32 s{self.s_offB}, s{B.base}")
        e(f"s_mov_b32 s{self.s_stage}, 0")
        e(f"s_mov_b32 s{self.s_rd}, 0")
        if not first:
            e("s_barrier")

        st4 = self.s_t + 3

        def pieces():
            out = []

            def first():
                e(f"s_mul_i32 s{st4}, s{self.s_wave}, {self.nA * 1024}")
                e(f"s_add_u32 s{st4}, s{st4}, s{self.s_stage}")
            for jj in range(self.nA):
                def f(jj=jj):
                    if jj == 0:
                        first()
                    e(f"s_add_u32 m0, s{st4}, {jj * 1024}")
                    e("s_nop 0")
                    e(f"buffer_load_dwordx4 v{self.v_dmaA + jj}, s[{A.srd}:{A.srd + 3}], s{self.s_offA} offen lds")
                out.append(f)
            for jj in range(self.nB):
                def f(jj=jj):
                    if jj == 0:
                        e(f"s_mul_i32 s{st4}, s{self.s_wave}, {self.nB * 1024}")
                        e(f"s_add_u32 s{st4}, s{st4}, s{self.s_stage}")
                    e(f"s_add_u32 m0, s{st4}, {self.SA + jj * 1024}")
                    e("s_nop 0")
                    e(f"buffer_load_dwordx4 v{self.v_dmaB + jj}, s[{B.srd}:{B.srd + 3}], s{self.s_offB} offen lds")
                    if jj == self.nB - 1:
                        e(f"s_add_u32 s{self.s_offA}, s{self.s_offA}, {stepA}")
                        e(f"s_add_u32 s{self.s_offB}, s{self.s_offB}, {stepB}")
                        e(f"s_add_u32 s{self.s_stage}, s{self.s_stage}, {self.stage}")
                        e(f"s_cmp_eq_u32 s{self.s_stage}, {self.stage * NS}")
                        e(f"s_cselect_b32 s{self.s_stage}, 0, s{self.s_stage}")
                out.append(f)
            return out

        for i in range(NS - 1):
            for f in pieces():
                f()
        szA = 4 * self.TA
        szB = 4 * self.TB

        def reads(kk):
            buf = kk & 1
            c = self.read_frags(A, self.BA, self.TA, self.v_adrA, self.v_fA + buf * szA, kk)
            c += self.read_frags(B, self.BB, self.TB, self.v_adrB, self.v_fB + buf * szB, kk)
            return c

        early = NS >= 3

        def compute(pcs, last=False):
            pcs = list(pcs)
            nm = self.TA * self.TB
            per = -(-len(pcs) // 3) if pcs else 0
            gap = max(1, nm // max(per, 1))
            if not early:
                reads(0)
            for kk in range(4):
                nxt = reads(kk + 1) if kk < 3 else 0
                e(f"s_waitcnt lgkmcnt({nxt})")
                buf = kk & 1
                i = 0
                used = 0
                for ta in range(self.TA):
                    for tb in range(self.TB):
                        d = self.v_acc + 16 * (ta * self.TB + tb)
                        a = self.v_fA + buf * szA + 4 * ta
                        b = self.v_fB + buf * szB + 4 * tb
                        e(f"v_mfma_f32_32x32x16_bf16 v[{d}:{d + 15}], v[{a}:{a + 3}], v[{b}:{b + 3}], v[{d}:{d + 15}]")
                        i += 1
                        if pcs and used < per and (i % gap == 0):
                            pcs.pop(0)()
                            used += 1
                if kk == 2:
                    while pcs:
                        pcs.pop(0)()
            st = self.s_t
            e(f"s_add_u32 s{st}, s{self.s_rd}, {self.stage}")
            e(f"s_cmp_eq_u32 s{st}, {self.stage * NS}")
            e(f"s_cselect_b32 s{st}, 0, s{st}")
            e(f"s_sub_u32 s{st + 1}, s{st}, s{self.s_rd}")
            e(f"s_mov_b32 s{self.s_rd}, s{st}")
            for i in range(self.n_adr(A, self.TA)):
                e(f"v_add_u32 v{self.v_adrA + i}, s{st + 1}, v{self.v_adrA + i}")
            for i in range(self.n_adr(B, self.TB)):
                e(f"v_add_u32 v{self.v_adrB + i}, s{st + 1}, v{self.v_adrB + i}")
            if early and not last:
                reads(0)

        if early:
            e(f"s_waitcnt vmcnt({(NS - 2) * nd})")
            e("s_barrier")
            reads(0)
        lag = 1 if early else 0
        e(f"s_mov_b32 s{self.s_cnt}, {nk - (NS - 1)}")
        e.label(f"{lab}_loop")
        e(f"s_waitcnt vmcnt({(NS - 2 - lag) * nd})")
        e("s_barrier")
        compute(pieces())
        e(f"s_sub_u32 s{self.s_cnt}, s{self.s_cnt}, 1")
        e(f"s_cmp_lg_u32 s{self.s_cnt}, 0")
        e(f"s_cbranch_scc1 {lab}_loop")
        for i in range(NS - 1):
            e(f"s_waitcnt vmcnt({max(NS - 2 - i - lag, 0) * nd})")
            e("s_barrier")
            compute([], last=(i == NS - 2))

    def out_addr(self, v_dst, s_rowA0, s_colB0, ld_out):
        e = self.e
        L, t0, st = self.v_lane, self.v_t0, self.s_t
        e(f"s_mul_i32 s{st}, s{self.s_wb}, {self.TB * 32}")
        e(f"s_add_u32 s{st}, s{st}, s{s_colB0}")
        e(f"v_and_b32 v{t0}, 31, v{L}")
        e(f"v_add_u32 v{t0}, s{st}, v{t0}")
        e(f"s_mov_b32 s{st + 1}, {ld_out}")
        e(f"v_mul_lo_u32 v{t0}, v{t0}, s{st + 1}")
        e(f"s_mul_i32 s{st}, s{self.s_wa}, {self.TA * 32}")
        e(f"s_add_u32 s{st}, s{st}, s{s_rowA0}")
        e(f"s_lshl_b32 s{st}, s{st}, 1")
        e(f"v_add_u32 v{t0}, s{st}, v{t0}")
        e(f"v_lshrrev_b32 v{v_dst}, 5, v{L}")
        return t0

    def epi_tile(self, srd_out, s_base):
        e = self.e
        va, t0, L = self.v_t1, self.v_t0, self.v_lane
        e(f"v_and_b32 v{t0}, 31, v{L}")
        e(f"v_lshlrev_b32 v{t0}, 8, v{t0}")
        e(f"v_add_u32 v{t0}, s{s_base}, v{t0}")
        e(f"v_lshrrev_b32 v{va}, 5, v{L}")
        e(f"v_lshl_add_u32 v{va}, v{va}, 4, v{t0}")
        e("s_nop 15")
        e("s_nop 7")
        pk = self.v_fA
        nb = 0
        for tb in range(self.TB):
            e(f"s_mov_b32 s{self.s_t}, {tb * 8192}")
            for ta in range(self.TA):
                d = self.v_acc + 16 * (ta * self.TB + tb)
                p = pk + 8 * (nb & 1)
                nb += 1
                for i in range(8):
                    e(f"v_cvt_pk_bf16_f32 v{p + i}, v{d + 2 * i}, v{d + 2 * i + 1}")
                e(f"buffer_store_dwordx4 v[{p}:{p + 3}], v{va}, s[{srd_out}:{srd_out + 3}], s{self.s_t} offen offset:{ta * 64}")
                e(f"buffer_store_dwordx4 v[{p + 4}:{p + 7}], v{va}, s[{srd_out}:{srd_out + 3}], s{self.s_t} offen offset:{ta * 64 + 32}")
                e("s_nop 1")

    def epi_perm(self, srd_out, s_rowA0, s_colB0, ld_out):
        e = self.e
        va = self.v_t1
        t0 = self.out_addr(va, s_rowA0, s_colB0, ld_out)
        e(f"v_lshl_add_u32 v{va}, v{va}, 4, v{t0}")
        e("s_nop 15")
        e("s_nop 7")
        pk = self.v_fA
        nb = 0
        for ta in range(self.TA):
            for tb in range(self.TB):
                d = self.v_acc + 16 * (ta * self.TB + tb)
                p = pk + 8 * (nb & 1)
                nb += 1
                for i in range(8):
                    e(f"v_cvt_pk_bf16_f32 v{p + i}, v{d + 2 * i}, v{d + 2 * i + 1}")
                off = tb * 32 * ld_out + ta * 64
                assert off + 32 < 4096 or True
                if off + 32 < 4096:
                    e(f"buffer_store_dwordx4 v[{p}:{p + 3}], v{va}, s[{srd_out}:{srd_out + 3}], 0 offen offset:{off}")
                    e(f"buffer_store_dwordx4 v[{p + 4}:{p + 7}], v{va}, s[{srd_out}:{srd_out + 3}], 0 offen offset:{off + 32}")
                else:
                    e(f"s_mov_b32 s{self.s_t}, {tb * 32 * ld_out}")
                    e(f"buffer_store_dwordx4 v[{p}:{p + 3}], v{va}, s[{srd_out}:{srd_out + 3}], s{self.s_t} offen offset:{ta * 64}")
                    e(f"buffer_store_dwordx4 v[{p + 4}:{p + 7}], v{va}, s[{srd_out}:{srd_out + 3}], s{self.s_t} offen offset:{ta * 64 + 32}")
                e("s_nop 1")


P1_NU = 35
P1_NQ = 128


def gen_p1(e):
    name = "proj_kernel"
    kernel_header(e, name)
    ntot = P1_NU + 3 * P1_NQ
    e(f"s_cmp_ge_u32 s2, {ntot}")
    e("s_cbranch_scc1 p1_end")
    e(f"s_load_dwordx2 s[32:33], s[0:1], {KA['ckv']}")
    e(f"s_load_dwordx2 s[34:35], s[0:1], {KA['wq']}")
    e(f"s_load_dwordx2 s[36:37], s[0:1], {KA['wuk']}")
    e(f"s_load_dwordx2 s[38:39], s[0:1], {KA['wuv']}")
    e(f"s_load_dwordx2 s[40:41], s[0:1], {KA['w1']}")
    e(f"s_load_dwordx2 s[42:43], s[0:1], {KA['b1']}")
    e(f"s_load_dwordx2 s[44:45], s[0:1], {KA['ws']}")
    e("s_waitcnt lgkmcnt(0)")
    e(f"s_cmp_lt_u32 s2, {P1_NU}")
    e("s_cbranch_scc1 p1_u")
    e(f"s_cmp_lt_u32 s2, {P1_NU + P1_NQ}")
    e("s_cbranch_scc1 p1_q")
    e(f"s_cmp_lt_u32 s2, {P1_NU + 2 * P1_NQ}")
    e("s_cbranch_scc1 p1_k")
    e("s_branch p1_v")
    vmax = 0

    for tag, wptr, K, xsrc, xld, wsoff, id0 in (("p1_q", 34, 640, 'xn', 1280, WS_Q, P1_NU),
                                                 ("p1_k", 36, 512, 'ckv', 1024, WS_K, P1_NU + P1_NQ)):
        e.label(tag)
        g = Gemm(e, tag, 256, 256, 2, 4)
        vmax = max(vmax, g.v_end)
        make_srd(e, 4, wptr, K * 8192)
        if xsrc == 'xn':
            make_srd(e, 8, 44, 2048 * 1280, WS_XN)
        else:
            make_srd(e, 8, 32, 2048 * 1024)
        make_srd(e, 12, 44, 2048 * 8192, wsoff)
        e(f"s_sub_u32 s3, s2, {id0}")
        e("s_and_b32 s46, s3, 15")
        e("s_lshr_b32 s47, s3, 4")
        e("s_lshl_b32 s46, s46, 8")
        e("s_lshl_b32 s47, s47, 8")
        e("s_lshl_b32 s48, s46, 1")
        e(f"s_mul_i32 s49, s47, {xld}")
        g.setup_common()
        g.zero_acc()
        g.run_seg(Op('t', 4, 8192, 48), Op('k', 8, xld, 49), K // 64, True)
        e(f"s_lshr_b32 s50, s46, 7")
        e(f"s_add_u32 s50, s50, s{g.s_wa}")
        e("s_lshl_b32 s50, s50, 19")
        e(f"s_lshl_b32 s51, s{g.s_wb}, 6")
        e("s_add_u32 s51, s51, s47")
        e("s_lshl_b32 s51, s51, 8")
        e("s_add_u32 s50, s50, s51")
        g.epi_tile(12, 50)
        e("s_endpgm")

    e.label("p1_v")
    g = Gemm(e, "p1_v", 256, 256, 2, 4)
    vmax = max(vmax, g.v_end)
    make_srd(e, 4, 32, 2048 * 1024)
    make_srd(e, 8, 38, 512 * 8192)
    make_srd(e, 12, 44, 4096 * 4096, WS_VT)
    e(f"s_sub_u32 s3, s2, {P1_NU + 2 * P1_NQ}")
    e("s_and_b32 s46, s3, 7")
    e("s_lshr_b32 s47, s3, 3")
    e("s_lshl_b32 s46, s46, 8")
    e("s_lshl_b32 s47, s47, 8")
    e("s_mul_i32 s48, s46, 1024")
    e("s_lshl_b32 s49, s47, 1")
    g.setup_common()
    g.zero_acc()
    g.run_seg(Op('k', 4, 1024, 48), Op('t', 8, 8192, 49), 8, True)
    e("s_lshr_b32 s50, s47, 7")
    e(f"s_lshr_b32 s51, s{g.s_wb}, 1")
    e("s_add_u32 s50, s50, s51")
    e("s_lshl_b32 s50, s50, 19")
    e("s_lshr_b32 s51, s46, 7")
    e(f"s_add_u32 s51, s51, s{g.s_wa}")
    e("s_lshl_b32 s51, s51, 15")
    e("s_add_u32 s50, s50, s51")
    e(f"s_and_b32 s51, s{g.s_wb}, 1")
    e("s_lshl_b32 s51, s51, 14")
    e("s_add_u32 s50, s50, s51")
    g.epi_tile(12, 50)
    e("s_endpgm")

    e.label("p1_u")
    g = Gemm(e, "p1_u", 256, 128, 4, 2)
    vmax = max(vmax, g.v_end)
    make_srd(e, 4, 40, 2048 * 3456)
    make_srd(e, 8, 44, 2048 * 1280, WS_H)
    make_srd(e, 12, 44, 640 * 3456, WS_U)
    make_srd(e, 16, 42, 3456)
    e("s_mul_i32 s46, s2, 37")
    e("s_lshr_b32 s47, s46, 8")
    e("s_mul_i32 s46, s47, 7")
    e("s_sub_u32 s46, s2, s46")
    e("s_lshl_b32 s46, s46, 8")
    e("s_lshl_b32 s47, s47, 7")
    e("s_lshl_b32 s48, s46, 1")
    e("s_lshl_b32 s49, s47, 1")
    g.setup_common()
    g.zero_acc()
    g.run_seg(Op('t', 4, 3456, 48), Op('t', 8, 1280, 49), 32, True)
    va = g.v_t1
    t0 = g.out_addr(va, 46, 47, 3456)
    e(f"v_lshl_add_u32 v{va}, v{va}, 4, v{t0}")
    vb = g.v_t2
    e(f"s_mul_i32 s24, s{g.s_wa}, {g.TA * 32}")
    e("s_add_u32 s50, s24, s46")
    e("s_lshl_b32 s24, s50, 1")
    e(f"v_lshrrev_b32 v{vb}, 5, v{g.v_lane}")
    e(f"v_lshlrev_b32 v{vb}, 3, v{vb}")
    e(f"v_add_u32 v{vb}, s24, v{vb}")
    e("s_nop 15")
    e("s_nop 7")
    e("s_mov_b32 s51, 0xffff0000")
    e("s_mov_b32 s52, 0x3d372713")
    e("s_mov_b32 s53, 0xc0135761")
    bias = g.v_fA
    bf = g.v_fA + 8
    tmp = g.v_fA + 24
    for ta in range(g.TA):
        e(f"s_add_u32 s24, s50, {ta * 32}")
        e("s_cmp_ge_u32 s24, 1728")
        e(f"s_cbranch_scc1 p1_u_skip{ta}")
        for q in range(4):
            e(f"buffer_load_dwordx2 v[{bias + 2 * q}:{bias + 2 * q + 1}], v{vb}, s[16:19], 0 offen offset:{ta * 64 + q * 16}")
        e("s_waitcnt vmcnt(0)")
        for i in range(8):
            e(f"v_lshlrev_b32 v{bf + 2 * i}, 16, v{bias + i}")
            e(f"v_and_b32 v{bf + 2 * i + 1}, s51, v{bias + i}")
        for tb in range(g.TB):
            d = g.v_acc + 16 * (ta * g.TB + tb)
            for i in range(16):
                x = d + i
                e(f"v_add_f32 v{x}, v{x}, v{bf + i}")
                e(f"v_mul_f32 v{tmp}, v{x}, v{x}")
                e(f"v_fma_f32 v{tmp}, v{tmp}, s52, 1.0")
                e(f"v_mul_f32 v{tmp}, v{tmp}, v{x}")
                e(f"v_mul_f32 v{tmp}, s53, v{tmp}")
                e(f"v_exp_f32 v{tmp}, v{tmp}")
                e("s_nop 0")
                e(f"v_add_f32 v{tmp}, 1.0, v{tmp}")
                e(f"v_rcp_f32 v{tmp}, v{tmp}")
                e("s_nop 0")
                e(f"v_mul_f32 v{x}, v{x}, v{tmp}")
            p = bias
            for i in range(8):
                e(f"v_cvt_pk_bf16_f32 v{p + i}, v{d + 2 * i}, v{d + 2 * i + 1}")
            e(f"s_mov_b32 s24, {tb * 32 * 3456}")
            e(f"buffer_store_dwordx4 v[{p}:{p + 3}], v{va}, s[12:15], s24 offen offset:{ta * 64}")
            e(f"buffer_store_dwordx4 v[{p + 4}:{p + 7}], v{va}, s[12:15], s24 offen offset:{ta * 64 + 32}")
            e("s_nop 1")
        e.label(f"p1_u_skip{ta}")
    e.label("p1_end")
    e("s_endpgm")
    return name, vmax, ntot, 131072


def gen_attn(e):
    name = "attn_kernel"
    kernel_header(e, name)
    e("s_cmp_ge_u32 s2, 256")
    e("s_cbranch_scc1 at_end")
    e(f"s_load_dwordx2 s[44:45], s[0:1], {KA['ws']}")
    e(f"s_load_dwordx2 s[60:61], s[0:1], {KA['dbg']}")
    nst = [0]
    if 'wgt' in XP:
        e("s_memrealtime s[90:91]")

    def stamp():
        if 'stamp' in XP and nst[0] < 12:
            e(f"s_memtime s[{64 + 2 * nst[0]}:{65 + 2 * nst[0]}]")
            nst[0] += 1
    vL, vt0, vt1, vt2 = 1, 2, 3, 4
    vdK, vdV = 6, 10
    vaK, vaV = 14, 22
    vm, vl, vmask, vst = 26, 27, 28, 29
    valpha, vmc, vx0, vx1 = 30, 31, 32, 33
    vcc2 = 34
    vQ = 36
    vS = 68
    vP = 100
    vF0 = 116
    vF1 = 148
    vO = 180
    VEND = 244
    sW, sG, sQS, sH, sJ, sQB, sIT, sKoff, sVoff, sStage, sT, sC, sPass, sQ0 = 20, 21, 22, 23, 24, 25, 26, 27, 28, 29, 30, 34, 35, 36
    sVst, sKrd, sVrd = 37, 38, 39
    e(f"v_and_b32 v{vL}, 63, v0")
    e(f"v_lshrrev_b32 v{vt0}, 6, v0")
    e("s_nop 0")
    e(f"v_readfirstlane_b32 s{sW}, v{vt0}")
    e("s_nop 3")
    e(f"s_lshr_b32 s{sG}, s{sW}, 2")
    e(f"s_and_b32 s{sQS}, s{sW}, 3")
    e("s_and_b32 s3, s2, 7")
    e(f"s_lshr_b32 s{sT}, s2, 3")
    e(f"s_lshr_b32 s{sH}, s{sT}, 3")
    e(f"s_lshl_b32 s3, s3, 2")
    e(f"s_add_u32 s{sH}, s{sH}, s3")
    e(f"s_and_b32 s{sJ}, s{sT}, 7")
    e("s_waitcnt lgkmcnt(0)")
    make_srd(e, 4, 44, 2048 * 8192, WS_Q)
    make_srd(e, 8, 44, 2048 * 8192, WS_K)
    make_srd(e, 12, 44, 4096 * 4096, WS_VT)
    make_srd(e, 16, 44, 2048 * 8192, WS_CTX)
    e(f"s_mov_b32 s{sC}, 0x3e0293ee")
    for jj in range(4):
        e(f"s_lshl_b32 s{sT}, s{sW}, 4")
        e(f"s_add_u32 s{sT}, s{sT}, {jj * 4}")
        e(f"v_lshrrev_b32 v{vt0}, 4, v{vL}")
        e(f"v_add_u32 v{vt0}, s{sT}, v{vt0}")
        e(f"v_xor_b32 v{vt1}, v{vt0}, v{vL}")
        e(f"v_and_b32 v{vt1}, 15, v{vt1}")
        e(f"v_lshlrev_b32 v{vt1}, 4, v{vt1}")
        e(f"v_lshl_add_u32 v{vdK + jj}, v{vt0}, 8, v{vt1}")
        if jj:
            e(f"v_subrev_u32 v{vdK + jj}, {jj * 1024}, v{vdK + jj}")
        e(f"v_mov_b32 v{vdV + jj}, v{vdK + jj}")
    e(f"v_and_b32 v{vt0}, 31, v{vL}")
    e(f"v_lshrrev_b32 v{vt1}, 5, v{vL}")
    e(f"v_and_b32 v{vt2}, 15, v{vL}")
    e(f"v_xor_b32 v{vt2}, v{vt2}, v{vt1}")
    e(f"v_lshlrev_b32 v{vt2}, 4, v{vt2}")
    e(f"s_lshl_b32 s{sT}, s{sG}, 6")
    e(f"v_add_u32 v{vx0}, s{sT}, v{vt0}")
    e(f"v_lshl_add_u32 v{vx0}, v{vx0}, 8, v{vt2}")
    for kk in range(8):
        e(f"v_xor_b32 v{vaK + kk}, {kk * 32}, v{vx0}")
    e(f"v_lshl_add_u32 v{vx0}, v{vt0}, 8, v{vt2}")
    e(f"v_add_u32 v{vx0}, 65536, v{vx0}")
    e(f"s_lshl_b32 s{sT}, s{sG}, 7")
    e(f"v_xor_b32 v{vx0}, s{sT}, v{vx0}")
    for kk in range(4):
        e(f"v_xor_b32 v{vaV + kk}, {kk * 32}, v{vx0}")
    e(f"s_lshl_b32 s{sT}, s{sQS}, 5")
    e(f"s_lshl_b32 s{sT + 1}, s{sG}, 6")
    e(f"s_sub_u32 s{sT}, s{sT}, s{sT + 1}")
    e(f"v_add_u32 v{vmask}, s{sT}, v{vt0}")
    e(f"v_lshlrev_b32 v{vt1}, 2, v{vt1}")
    e(f"v_sub_u32 v{vmask}, v{vmask}, v{vt1}")
    e(f"s_mov_b32 s{sPass}, 0")
    e(f"v_mov_b32 v{vcc2}, s{sC}")
    e(f"v_mov_b32 v{vcc2 + 1}, s{sC}")
    e(f"s_sub_u32 s{sQB}, 15, s{sJ}")
    e.label("at_qblock")
    e(f"s_lshl_b32 s{sQ0}, s{sQB}, 7")
    e(f"s_lshl_b32 s{sT}, s{sQS}, 5")
    e(f"s_add_u32 s{sT}, s{sT}, s{sQ0}")
    e(f"v_and_b32 v{vt0}, 31, v{vL}")
    e(f"v_add_u32 v{vt0}, s{sT}, v{vt0}")
    e(f"v_lshrrev_b32 v{vt1}, 5, v{vL}")
    e(f"v_lshlrev_b32 v{vt1}, 4, v{vt1}")
    e(f"v_lshl_add_u32 v{vt2}, v{vt0}, 8, v{vt1}")
    e(f"v_lshl_add_u32 v{vt0}, v{vt0}, 13, v{vt1}")
    e(f"s_lshl_b32 s{sT}, s{sH}, 8")
    e(f"v_add_u32 v{vst}, s{sT}, v{vt0}")
    e(f"s_lshl_b32 s{sT}, s{sH}, 19")
    for kk in range(8):
        e(f"buffer_load_dwordx4 v[{vQ + 4 * kk}:{vQ + 4 * kk + 3}], v{vt2}, s[4:7], s{sT} offen offset:{kk * 32}")
    e(f"v_mov_b32 v{vm}, 0xf149f2ca")
    e(f"v_mov_b32 v{vl}, 0")
    for i in range(64):
        e(f"v_mov_b32 v{vO + i}, 0")
    e(f"s_lshl_b32 s{sKoff}, s{sH}, 19")
    e(f"s_lshl_b32 s{sVoff}, s{sH}, 19")
    e(f"s_mov_b32 s{sStage}, 0")
    e(f"s_mov_b32 s{sVst}, 0")
    e(f"s_mov_b32 s{sKrd}, 0")
    e(f"s_mov_b32 s{sVrd}, 0")
    e(f"s_mov_b32 s{sIT}, 0")

    sDK, sDV, sD = 40, 41, 42

    def dma_setup():
        e(f"s_lshl_b32 s{sT}, s{sW}, 12")
        e(f"s_add_u32 s{sDK}, s{sT}, s{sStage}")
        e(f"s_add_u32 s{sDV}, s{sT}, s{sVst}")
        e(f"s_add_u32 s{sDV}, s{sDV}, 65536")

    def dma_piece(i):
        jj = i & 3
        if i == 0:
            e(f"s_mov_b32 m0, s{sDK}")
            e("s_nop 0")
        if i == 4:
            e(f"s_mov_b32 m0, s{sDV}")
            e("s_nop 0")
        if i < 4:
            e(f"buffer_load_dwordx4 v{vdK + jj}, s[8:11], s{sKoff} offen offset:{jj * 1024} lds")
        else:
            e(f"buffer_load_dwordx4 v{vdV + jj}, s[12:15], s{sVoff} offen offset:{jj * 1024} lds")

    def dma_advance():
        e(f"s_add_u32 s{sKoff}, s{sKoff}, 32768")
        e(f"s_add_u32 s{sVoff}, s{sVoff}, 32768")
        e(f"s_xor_b32 s{sStage}, s{sStage}, 32768")
        e(f"s_add_u32 s{sVst}, s{sVst}, 32768")
        e(f"s_cmp_eq_u32 s{sVst}, 98304")
        e(f"s_cselect_b32 s{sVst}, 0, s{sVst}")

    def dma():
        dma_setup()
        for i in range(8):
            dma_piece(i)
        dma_advance()

    pcnt = [0]

    def cond_piece(i):
        pcnt[0] += 1
        lab = f"at_np{pcnt[0]}"
        e(f"s_cmp_eq_u32 s{sD}, 0")
        e(f"s_cbranch_scc1 {lab}")
        dma_piece(i)
        if i == 7:
            dma_advance()
        e.label(lab)

    def top(tag):
        e("s_waitcnt vmcnt(0)")
        e("s_barrier")
        e(f"s_cmp_lg_u32 s{sIT}, s{sQB}")
        e(f"s_cselect_b32 s{sD}, 1, 0")
        dma_setup()

    def kreads(t):
        F = vF0 if t == 0 else vF1
        for kk in range(8):
            e(f"ds_read_b128 v[{F + 4 * kk}:{F + 4 * kk + 3}], v{vaK + kk} offset:{t * 8192}")

    def qk_mfma(t, pieces=()):
        F = vF0 if t == 0 else vF1
        d = vS + 16 * t
        pieces = list(pieces)
        for kk in range(8):
            c = "0" if kk == 0 else f"v[{d}:{d + 15}]"
            e(f"v_mfma_f32_32x32x16_bf16 v[{d}:{d + 15}], v[{F + 4 * kk}:{F + 4 * kk + 3}], v[{vQ + 4 * kk}:{vQ + 4 * kk + 3}], {c}")
            if pieces and kk & 1:
                cond_piece(pieces.pop(0))

    def k_adv():
        for i in range(8):
            e(f"v_xor_b32 v{vaK + i}, 0x8000, v{vaK + i}")
        e(f"s_xor_b32 s{sKrd}, s{sKrd}, 32768")

    def vreads():
        for dt in range(4):
            F = (vF0 if dt < 2 else vF1) + 16 * (dt & 1)
            for kk in range(4):
                e(f"ds_read_b128 v[{F + 4 * kk}:{F + 4 * kk + 3}], v{vaV + kk} offset:{dt * 8192}")
        e(f"s_add_u32 s{sT}, s{sVrd}, 32768")
        e(f"s_cmp_eq_u32 s{sT}, 98304")
        e(f"s_cselect_b32 s{sT}, 0, s{sT}")
        e(f"s_sub_u32 s{sT + 1}, s{sT}, s{sVrd}")
        e(f"s_mov_b32 s{sVrd}, s{sT}")
        for i in range(4):
            e(f"v_add_u32 v{vaV + i}, s{sT + 1}, v{vaV + i}")

    def pv_mfma(dts, pieces=()):
        pieces = list(pieces)
        for dt in dts:
            F = (vF0 if dt < 2 else vF1) + 16 * (dt & 1)
            d = vO + 16 * dt
            for kk in range(4):
                e(f"v_mfma_f32_32x32x16_bf16 v[{d}:{d + 15}], v[{F + 4 * kk}:{F + 4 * kk + 3}], v[{vP + 4 * kk}:{vP + 4 * kk + 3}], v[{d}:{d + 15}]")
                if pieces and kk & 1:
                    cond_piece(pieces.pop(0))

    def mask():
        e(f"v_mov_b32 v{vx0}, 0xf149f2ca")
        for t in range(2):
            for r in range(16):
                cst = t * 32 + (r & 3) + 8 * (r >> 2)
                e(f"v_cmp_gt_i32 vcc, {cst}, v{vmask}")
                e("s_nop 1")
                e(f"v_cndmask_b32 v{vS + 16 * t + r}, v{vS + 16 * t + r}, v{vx0}, vcc")

    def softmax(tag, with_dma=False):
        e("s_setprio 1")
        e(f"v_max3_f32 v{vx0}, v{vS}, v{vS + 1}, v{vS + 2}")
        for i in range(3, 31, 2):
            e(f"v_max3_f32 v{vx0}, v{vx0}, v{vS + i}, v{vS + i + 1}")
        e(f"v_max_f32 v{vx0}, v{vx0}, v{vS + 31}")
        e(f"v_mov_b32 v{vx1}, v{vx0}")
        e("s_nop 1")
        e(f"v_permlane32_swap_b32 v{vx0}, v{vx1}")
        e("s_nop 1")
        e(f"v_max3_f32 v{vx0}, v{vx0}, v{vx1}, v{vm}")
        e(f"v_sub_f32 v{valpha}, v{vm}, v{vx0}")
        e(f"v_mul_f32 v{valpha}, s{sC}, v{valpha}")
        e(f"v_cmp_gt_f32 vcc, -8.0, v{valpha}")
        e("s_nop 4")
        e(f"s_cbranch_vccz {tag}_norescale")
        e(f"v_exp_f32 v{valpha}, v{valpha}")
        e(f"v_mov_b32 v{vm}, v{vx0}")
        e(f"v_mul_f32 v{vl}, v{vl}, v{valpha}")
        for i in range(64):
            e(f"v_mul_f32 v{vO + i}, v{vO + i}, v{valpha}")
        e.label(f"{tag}_norescale")
        e(f"v_mul_f32 v{vx0}, s{sC}, v{vm}")
        e(f"v_sub_f32 v{vx0}, 0, v{vx0}")
        e(f"v_mov_b32 v{vx1}, v{vx0}")
        for i in range(16):
            r = vS + 2 * i
            e(f"v_pk_fma_f32 v[{r}:{r + 1}], v[{r}:{r + 1}], v[{vcc2}:{vcc2 + 1}], v[{vx0}:{vx1}]")
            e(f"v_exp_f32 v{r}, v{r}")
            e(f"v_exp_f32 v{r + 1}, v{r + 1}")
        vreads()
        e(f"v_pk_add_f32 v[{vx0}:{vx1}], v[{vS}:{vS + 1}], v[{vS + 2}:{vS + 3}]")
        for i in range(2, 16):
            e(f"v_pk_add_f32 v[{vx0}:{vx1}], v[{vx0}:{vx1}], v[{vS + 2 * i}:{vS + 2 * i + 1}]")
        e(f"v_add_f32 v{vl}, v{vl}, v{vx0}")
        e(f"v_add_f32 v{vl}, v{vl}, v{vx1}")
        for i in range(16):
            e(f"v_cvt_pk_bf16_f32 v{vP + i}, v{vS + 2 * i}, v{vS + 2 * i + 1}")
        e("s_setprio 0")

    def pv_qk(with_pv, with_dma):
        pc = list(range(8)) if with_dma else []
        if with_pv:
            e("s_waitcnt lgkmcnt(0)")
            e("s_nop 1")
            pv_mfma((0, 1), pc[0:4])
            kreads(0)
            pv_mfma((2, 3), pc[4:8])
            kreads(1)
            e("s_waitcnt lgkmcnt(8)")
            qk_mfma(0)
            e("s_waitcnt lgkmcnt(0)")
            qk_mfma(1)
        else:
            kreads(0)
            kreads(1)
            e("s_waitcnt lgkmcnt(8)")
            qk_mfma(0, pc[0:4])
            e("s_waitcnt lgkmcnt(0)")
            qk_mfma(1, pc[4:8])
        k_adv()

    def pv_only():
        e("s_waitcnt lgkmcnt(0)")
        e("s_nop 1")
        pv_mfma((0, 1, 2, 3))

    dma()
    e(f"s_cmp_eq_u32 s{sG}, 1")
    e("s_cbranch_scc1 at1_loop")
    e.label("at0_loop")
    stamp()
    top("at0")
    stamp()
    e(f"s_cmp_eq_u32 s{sIT}, 0")
    e("s_cbranch_scc1 at0_first")
    pv_qk(True, True)
    e("s_branch at0_sm")
    e.label("at0_first")
    pv_qk(False, True)
    e.label("at0_sm")
    stamp()
    e("s_nop 15")
    e(f"s_cmp_lg_u32 s{sIT}, s{sQB}")
    e("s_cbranch_scc1 at0_nomask")
    mask()
    e.label("at0_nomask")
    softmax("at0")
    stamp()
    if 'stamp' in XP:
        e("s_waitcnt lgkmcnt(0)")
        e(f"s_cmp_eq_u32 s{sIT}, 5")
        e("s_cbranch_scc0 at0_nost")
        e("s_cmp_eq_u32 s2, 0")
        e("s_cbranch_scc0 at0_nost")
        e(f"s_cmp_eq_u32 s{sW}, 0")
        e("s_cbranch_scc0 at0_nost")
        e(f"v_mov_b32 v{vx0}, 0")
        for i in range(6):
            e(f"v_mov_b32 v{vx1}, s{64 + 2 * i}")
            e(f"global_store_dword v{vx0}, v{vx1}, s[60:61] offset:{4 * i}")
            e("s_nop 1")
        e.label("at0_nost")
    e(f"s_add_u32 s{sIT}, s{sIT}, 1")
    e(f"s_cmp_le_u32 s{sIT}, s{sQB}")
    e("s_cbranch_scc1 at0_loop")
    pv_only()
    e("s_branch at_done")
    e.label("at1_loop")
    nst[0] = 0
    stamp()
    top("at1")
    stamp()
    e(f"s_cmp_eq_u32 s{sIT}, 0")
    e("s_cbranch_scc1 at1_first")
    softmax("at1", with_dma=False)
    stamp()
    e(f"s_cmp_lg_u32 s{sIT}, s{sQB}")
    e("s_cbranch_scc1 at1_doqk")
    e(f"s_cmp_lt_u32 s{sQS}, 2")
    e("s_cbranch_scc0 at1_doqk")
    pv_only()
    e("s_branch at_done")
    e.label("at1_doqk")
    pv_qk(True, True)
    e("s_branch at1_next")
    e.label("at1_first")
    for i in range(8):
        cond_piece(i)
    e(f"s_cmp_lg_u32 s{sIT}, s{sQB}")
    e("s_cbranch_scc1 at1_doqk0")
    e(f"s_cmp_lt_u32 s{sQS}, 2")
    e("s_cbranch_scc1 at_done")
    e.label("at1_doqk0")
    pv_qk(False, False)
    e.label("at1_next")
    stamp()
    if 'stamp' in XP:
        e("s_waitcnt lgkmcnt(0)")
        e(f"s_cmp_eq_u32 s{sIT}, 5")
        e("s_cbranch_scc0 at1_nost")
        e("s_cmp_eq_u32 s2, 0")
        e("s_cbranch_scc0 at1_nost")
        e(f"s_cmp_eq_u32 s{sW}, 4")
        e("s_cbranch_scc0 at1_nost")
        e(f"v_mov_b32 v{vx0}, 0")
        for i in range(6):
            e(f"v_mov_b32 v{vx1}, s{64 + 2 * i}")
            e(f"global_store_dword v{vx0}, v{vx1}, s[60:61] offset:{24 + 4 * i}")
            e("s_nop 1")
        e.label("at1_nost")
    e(f"s_add_u32 s{sIT}, s{sIT}, 1")
    e(f"s_cmp_le_u32 s{sIT}, s{sQB}")
    e("s_cbranch_scc1 at1_loop")
    e("s_nop 15")
    mask()
    softmax("at1b")
    pv_only()
    e.label("at_done")
    e(f"s_sub_u32 s{sT}, 0, s{sKrd}")
    for i in range(8):
        e(f"v_add_u32 v{vaK + i}, s{sT}, v{vaK + i}")
    e(f"s_sub_u32 s{sT}, 0, s{sVrd}")
    for i in range(4):
        e(f"v_add_u32 v{vaV + i}, s{sT}, v{vaV + i}")
    e("s_nop 15")
    e("s_nop 7")
    e(f"v_mov_b32 v{vx1}, v{vl}")
    e("s_nop 1")
    e(f"v_permlane32_swap_b32 v{vl}, v{vx1}")
    e("s_nop 1")
    e(f"v_add_f32 v{vl}, v{vl}, v{vx1}")
    e("s_barrier")
    e(f"s_lshl_b32 s{sT}, s{sQS}, 14")
    e(f"v_lshlrev_b32 v{vx0}, 4, v{vL}")
    e(f"v_add_u32 v{vx0}, s{sT}, v{vx0}")
    e(f"s_lshl_b32 s{sT}, s{sQS}, 9")
    e(f"v_lshlrev_b32 v{vx1}, 3, v{vL}")
    e(f"v_add_u32 v{vx1}, s{sT}, v{vx1}")
    e(f"v_add_u32 v{vx1}, 65536, v{vx1}")
    e(f"s_cmp_eq_u32 s{sG}, 0")
    e("s_cbranch_scc1 at_merge0")
    for i in range(16):
        e(f"ds_write_b128 v{vx0}, v[{vO + 4 * i}:{vO + 4 * i + 3}] offset:{i * 1024}")
    e(f"ds_write_b64 v{vx1}, v[{vm}:{vl}]")
    e("s_waitcnt lgkmcnt(0)")
    e("s_barrier")
    e("s_branch at_mergedone")
    e.label("at_merge0")
    e("s_barrier")
    e(f"ds_read_b64 v[{vS}:{vS + 1}], v{vx1}")
    for i in range(16):
        e(f"ds_read_b128 v[{vF0 + 4 * i}:{vF0 + 4 * i + 3}], v{vx0} offset:{i * 1024}")
    e("s_waitcnt lgkmcnt(0)")
    e(f"v_max_f32 v{vt0}, v{vm}, v{vS}")
    e(f"v_sub_f32 v{vt1}, v{vm}, v{vt0}")
    e(f"v_sub_f32 v{vt2}, v{vS}, v{vt0}")
    e(f"v_mul_f32 v{vt1}, s{sC}, v{vt1}")
    e(f"v_mul_f32 v{vt2}, s{sC}, v{vt2}")
    e(f"v_exp_f32 v{vt1}, v{vt1}")
    e(f"v_exp_f32 v{vt2}, v{vt2}")
    e("s_nop 0")
    e(f"v_mul_f32 v{vl}, v{vl}, v{vt1}")
    e(f"v_fmac_f32 v{vl}, v{vS + 1}, v{vt2}")
    e(f"v_rcp_f32 v{vl}, v{vl}")
    e("s_nop 0")
    e(f"v_mul_f32 v{vt1}, v{vt1}, v{vl}")
    e(f"v_mul_f32 v{vt2}, v{vt2}, v{vl}")
    for i in range(64):
        e(f"v_mul_f32 v{vO + i}, v{vO + i}, v{vt1}")
        e(f"v_fmac_f32 v{vO + i}, v{vF0 + i}, v{vt2}")
    for i in range(32):
        e(f"v_cvt_pk_bf16_f32 v{vS + i}, v{vO + 2 * i}, v{vO + 2 * i + 1}")
    for i in range(8):
        e(f"buffer_store_dwordx4 v[{vS + 4 * i}:{vS + 4 * i + 3}], v{vst}, s[16:19], 0 offen offset:{i * 32}")
    e.label("at_mergedone")
    e("s_barrier")
    e(f"s_add_u32 s{sPass}, s{sPass}, 1")
    e(f"s_mov_b32 s{sQB}, s{sJ}")
    e(f"s_cmp_eq_u32 s{sPass}, 1")
    e("s_cbranch_scc1 at_qblock")
    if 'wgt' in XP:
        e("s_memrealtime s[92:93]")
        e("s_waitcnt lgkmcnt(0)")
        e("s_lshl_b32 s3, s2, 3")
        e("s_add_u32 s3, s3, 0x6f00000")
        e("v_mov_b32 v2, s3")
        e("v_mov_b32 v4, s90")
        e("v_mov_b32 v5, s92")
        e("s_nop 1")
        e("global_store_dwordx2 v2, v[4:5], s[44:45]")
    e.label("at_end")
    e("s_endpgm")
    return name, VEND, 256, 163840


WS_PART = 0x6000000


def gen_final(e):
    name = "final_kernel"
    kernel_header(e, name)
    NT = 240
    e(f"s_cmp_ge_u32 s2, {NT}")
    e("s_cbranch_scc1 fi_end")
    e(f"s_load_dwordx2 s[34:35], s[0:1], {KA['wo']}")
    e(f"s_load_dwordx2 s[36:37], s[0:1], {KA['w2']}")
    e(f"s_load_dwordx2 s[44:45], s[0:1], {KA['ws']}")
    e(f"s_load_dwordx2 s[68:69], s[0:1], {KA['dbg']}")
    e(f"s_load_dwordx2 s[32:33], s[0:1], {KA['x']}")
    e(f"s_load_dwordx2 s[38:39], s[0:1], {KA['b2']}")
    e(f"s_load_dwordx2 s[40:41], s[0:1], {KA['out']}")
    e("s_waitcnt lgkmcnt(0)")
    make_srd(e, 72, 38, 4096)
    make_srd(e, 76, 32, 2048 * 1280)
    make_srd(e, 80, 40, 2048 * 1280)
    g = Gemm(e, "fi", 128, 128, 2, 4, NS=4)
    make_srd(e, 4, 34, 4096 * 1280)
    make_srd(e, 8, 44, 2048 * 8192, WS_CTX)
    make_srd(e, 12, 44, 3 * 2048 * 2560, WS_PART)
    make_srd(e, 56, 44, 640 * 3456, WS_U)
    make_srd(e, 60, 36, 1728 * 4096)
    e("s_and_b32 s47, s2, 7")
    e("s_lshr_b32 s52, s2, 3")
    e("s_lshl_b32 s47, s47, 1")
    e("s_and_b32 s46, s52, 1")
    e("s_add_u32 s47, s47, s46")
    e("s_lshr_b32 s52, s52, 1")
    e("s_mul_i32 s53, s52, 205")
    e("s_lshr_b32 s53, s53, 10")
    e("s_mul_i32 s46, s53, 5")
    e("s_sub_u32 s46, s52, s46")
    e("s_lshl_b32 s46, s46, 7")
    e("s_lshl_b32 s47, s47, 7")
    g.setup_common()
    g.zero_acc()
    e("s_cmp_eq_u32 s53, 2")
    e("s_cbranch_scc1 fi_seg2")
    e("s_mul_i32 s48, s53, %d" % (2048 * 1280))
    e("s_lshl_b32 s24, s46, 1")
    e("s_add_u32 s48, s48, s24")
    e("s_lshl_b32 s49, s47, 13")
    e("s_lshl_b32 s24, s53, 12")
    e("s_add_u32 s49, s49, s24")
    g.run_seg(Op('t', 4, 1280, 48, perm=True), Op('k', 8, 8192, 49), 32, True)
    e("s_branch fi_epi")
    e.label("fi_seg2")
    e("s_mul_i32 s50, s46, 3456")
    e("s_lshl_b32 s51, s47, 1")
    g.run_seg(Op('k', 56, 3456, 50), Op('t', 60, 4096, 51, perm=True), 27, True)
    e.label("fi_epi")
    va = g.v_t1
    L, t0, st = g.v_lane, g.v_t0, g.s_t
    e(f"s_mul_i32 s{st}, s{g.s_wb}, {g.TB * 32}")
    e(f"s_add_u32 s{st}, s{st}, s47")
    e(f"v_and_b32 v{t0}, 31, v{L}")
    e(f"v_add_u32 v{t0}, s{st}, v{t0}")
    vrow = g.v_t2
    e(f"v_mov_b32 v{vrow}, v{t0}")
    e(f"s_movk_i32 s{st + 1}, 2560")
    e(f"v_mul_lo_u32 v{t0}, v{t0}, s{st + 1}")
    e(f"s_mul_i32 s{st}, s{g.s_wa}, {g.TA * 32}")
    e(f"s_add_u32 s{st}, s{st}, s46")
    e(f"s_lshl_b32 s{st}, s{st}, 2")
    e(f"v_add_u32 v{t0}, s{st}, v{t0}")
    e(f"v_lshrrev_b32 v{va}, 5, v{L}")
    e(f"v_lshl_add_u32 v{va}, v{va}, 4, v{t0}")
    e(f"s_mul_i32 s54, s53, {2048 * 2560}")
    e("s_nop 15")
    e("s_nop 7")
    assert g.TB == 1
    for ta in range(g.TA):
        d = g.v_acc + 16 * ta
        for q in range(4):
            e(f"buffer_store_dwordx4 v[{d + 4 * q}:{d + 4 * q + 3}], v{va}, s[12:15], s54 offen offset:{ta * 128 + q * 32} sc1")
    e("s_waitcnt vmcnt(0)")
    e("s_barrier")
    e("s_lshr_b32 s24, s47, 7")
    e("s_mul_i32 s24, s24, 5")
    e("s_lshr_b32 s25, s46, 7")
    e("s_add_u32 s24, s24, s25")
    e("s_and_b32 s25, s24, 1")
    e("s_lshl_b32 s25, s25, 4")
    e("s_lshr_b32 s24, s24, 1")
    e("s_lshl_b32 s24, s24, 2")
    e("s_lshl_b32 s26, 1, s25")
    vf = g.v_fA
    e(f"s_cmp_lg_u32 s{g.s_wave}, 0")
    e("s_cbranch_scc1 fi_noatom")
    e(f"v_mov_b32 v{vf}, s24")
    e(f"v_mov_b32 v{vf + 1}, s26")
    e("s_mov_b64 s[70:71], exec")
    e("s_mov_b64 exec, 1")
    e(f"global_atomic_add v{vf + 2}, v{vf}, v{vf + 1}, s[68:69] sc0 sc1")
    e("s_waitcnt vmcnt(0)")
    e(f"v_mov_b32 v{vf}, 0")
    e(f"ds_write_b32 v{vf}, v{vf + 2}")
    e("s_waitcnt lgkmcnt(0)")
    e("s_mov_b64 exec, s[70:71]")
    e.label("fi_noatom")
    e("s_barrier")
    e(f"v_mov_b32 v{vf}, 0")
    e(f"ds_read_b32 v{vf + 2}, v{vf}")
    e("s_waitcnt lgkmcnt(0)")
    e(f"v_readfirstlane_b32 s27, v{vf + 2}")
    e("s_nop 3")
    e("s_lshr_b32 s27, s27, s25")
    e("s_and_b32 s27, s27, 0xffff")
    e("s_cmp_lg_u32 s27, 2")
    e("s_cbranch_scc1 fi_end")
    for k in (1, 2):
        e(f"s_add_u32 s24, s53, {k}")
        e("s_cmp_ge_u32 s24, 3")
        e("s_cselect_b32 s25, 3, 0")
        e("s_sub_u32 s24, s24, s25")
        e(f"s_mul_i32 s24, s24, {2048 * 2560}")
        for ta in range(g.TA):
            d = g.v_acc + 16 * ta
            for q in range(4):
                e(f"buffer_load_dwordx4 v[{vf + 4 * q}:{vf + 4 * q + 3}], v{va}, s[12:15], s24 offen offset:{ta * 128 + q * 32} sc1")
            e("s_waitcnt vmcnt(0)")
            for i in range(16):
                e(f"v_add_f32 v{d + i}, v{d + i}, v{vf + i}")
    vo = g.v_t0
    e("s_movk_i32 s25, 1280")
    e(f"v_mul_lo_u32 v{vo}, v{vrow}, s25")
    e(f"s_mul_i32 s24, s{g.s_wa}, {g.TA * 32}")
    e("s_add_u32 s24, s24, s46")
    e("s_lshl_b32 s24, s24, 1")
    e(f"v_add_u32 v{vo}, s24, v{vo}")
    e(f"v_lshrrev_b32 v{va}, 5, v{L}")
    e(f"v_lshl_add_u32 v{vo}, v{va}, 3, v{vo}")
    e(f"v_lshlrev_b32 v{vrow}, 1, v{vrow}")
    e(f"buffer_load_ushort v{va}, v{vrow}, s[72:75], 0 offen")
    e("s_mov_b32 s52, 0xffff0000")
    xb = vf
    for ta in range(g.TA):
        d = g.v_acc + 16 * ta
        for q in range(4):
            e(f"buffer_load_dwordx2 v[{xb + 2 * q}:{xb + 2 * q + 1}], v{vo}, s[76:79], 0 offen offset:{ta * 64 + q * 16}")
        e("s_waitcnt vmcnt(0)")
        if ta == 0:
            e(f"v_lshlrev_b32 v{va}, 16, v{va}")
        for i in range(8):
            t = xb + 8
            e(f"v_lshlrev_b32 v{t}, 16, v{xb + i}")
            e(f"v_and_b32 v{t + 1}, s52, v{xb + i}")
            e(f"v_add_f32 v{t}, v{t}, v{va}")
            e(f"v_add_f32 v{t + 1}, v{t + 1}, v{va}")
            e(f"v_add_f32 v{t}, v{t}, v{d + 2 * i}")
            e(f"v_add_f32 v{t + 1}, v{t + 1}, v{d + 2 * i + 1}")
            e(f"v_cvt_pk_bf16_f32 v{xb + i}, v{t}, v{t + 1}")
        for q in range(4):
            e(f"buffer_store_dwordx2 v[{xb + 2 * q}:{xb + 2 * q + 1}], v{vo}, s[80:83], 0 offen offset:{ta * 64 + q * 16}")
        e("s_nop 1")
    e.label("fi_end")
    e("s_endpgm")
    return name, g.v_end, NT, g.lds


def gen_reduce(e):
    name = "reduce_kernel"
    kernel_header(e, name)
    NT = 640
    e(f"s_cmp_ge_u32 s2, {NT}")
    e("s_cbranch_scc1 rd_end")
    e(f"s_load_dwordx2 s[32:33], s[0:1], {KA['x']}")
    e(f"s_load_dwordx2 s[38:39], s[0:1], {KA['b2']}")
    e(f"s_load_dwordx2 s[40:41], s[0:1], {KA['out']}")
    e(f"s_load_dwordx2 s[44:45], s[0:1], {KA['ws']}")
    e("s_lshl_b32 s3, s2, 8")
    e("v_add_u32 v1, s3, v0")
    e("v_lshlrev_b32 v2, 4, v1")
    e("v_lshlrev_b32 v3, 5, v1")
    e("s_mov_b32 s4, 0x3333334")
    e("v_mul_hi_u32 v4, v1, s4")
    e("v_lshlrev_b32 v4, 1, v4")
    e("s_waitcnt lgkmcnt(0)")
    make_srd(e, 8, 32, 2048 * 1280)
    make_srd(e, 12, 40, 2048 * 1280)
    make_srd(e, 16, 44, 3 * 2048 * 2560, WS_PART)
    make_srd(e, 20, 38, 4096)
    e("buffer_load_dwordx4 v[8:11], v2, s[8:11], 0 offen")
    e("buffer_load_ushort v5, v4, s[20:23], 0 offen")
    for sp in range(3):
        e(f"s_mov_b32 s24, {sp * 2048 * 2560}")
        e(f"buffer_load_dwordx4 v[{12 + 8 * sp}:{15 + 8 * sp}], v3, s[16:19], s24 offen")
        e(f"buffer_load_dwordx4 v[{16 + 8 * sp}:{19 + 8 * sp}], v3, s[16:19], s24 offen offset:16")
    e("s_mov_b32 s25, 0xffff0000")
    e("s_waitcnt vmcnt(0)")
    e("v_lshlrev_b32 v5, 16, v5")
    for i in range(8):
        e(f"v_add_f32 v{12 + i}, v{12 + i}, v{20 + i}")
        e(f"v_add_f32 v{12 + i}, v{12 + i}, v{28 + i}")
        e(f"v_add_f32 v{12 + i}, v{12 + i}, v5")
    for i in range(4):
        e(f"v_lshlrev_b32 v6, 16, v{8 + i}")
        e(f"v_and_b32 v7, s25, v{8 + i}")
        e(f"v_add_f32 v6, v6, v{12 + 2 * i}")
        e(f"v_add_f32 v7, v7, v{13 + 2 * i}")
        e(f"v_cvt_pk_bf16_f32 v{8 + i}, v6, v7")
    e("buffer_store_dwordx4 v[8:11], v2, s[12:15], 0 offen")
    e.label("rd_end")
    e("s_endpgm")
    return name, 40, NT, 0


def main():
    e = E()
    launches = []
    body = E()
    descs = E()
    n, v = gen_ln(body)
    kernel_desc(descs, n, v)
    launches.append((n, 512, 256, 0))
    n, v, g, lds = gen_p1(body)
    kernel_desc(descs, n, v)
    launches.append((n, g, 512, lds))
    n, v, g, lds = gen_attn(body)
    kernel_desc(descs, n, v)
    launches.append((n, g, 512, lds))
    n, v, g, lds = gen_final(body)
    kernel_desc(descs, n, v)
    launches.append((n, g, 512, lds))
    for (n, g, b, lds) in launches:
        e.raw(f"; @launch kernel={n} grid=({g},1,1) block=({b},1,1) lds={lds}")
    e.raw('.amdgcn_target "amdgcn-amd-amdhsa--gfx950"')
    out = e.text() + body.text() + descs.text()
    path = sys.argv[1] if len(sys.argv) > 1 else f"cdna_kernels/{KN}.s"
    open(path, "w").write(out)
    print("wrote", path, len(out))


if __name__ == "__main__":
    main()
```

```python
import sys
import math
import os
XP = os.environ.get('XP', '')

KN = "parallel_sum__compressed_kv_cla__mixer_token_mlp__prompt"

WS_XN = 0x0000000
WS_H = 0x0280000
WS_Q = 0x1000000
WS_K = 0x2000000
WS_VT = 0x3000000
WS_U = 0x4000000
WS_CTX = 0x5000000

KA = dict(x=0, ckv=8, wq=16, wuk=24, wuv=32, wo=40, bx=48, w1=56, b1=64, w2=72, b2=80, out=88, dbg=96, ws=104)


class E:
    def __init__(self):
        self.lines = []

    def __call__(self, s):
        self.lines.append("    " + s)

    def label(self, l):
        self.lines.append(l + ":")

    def raw(self, s):
        self.lines.append(s)

    def text(self):
        return "\n".join(self.lines) + "\n"


def vr(a, n=1):
    return f"v{a}" if n == 1 else f"v[{a}:{a + n - 1}]"


def sr(a, n=1):
    return f"s{a}" if n == 1 else f"s[{a}:{a + n - 1}]"


def kernel_header(e, name):
    e.raw(".text")
    e.raw(f".globl {name}")
    e.raw(".p2align 8")
    e.raw(f".type {name},@function")
    e.label(name)


def kernel_desc(e, name, vgpr, sgpr=96):
    acc = (vgpr + 3) // 4 * 4
    e.raw('.section .rodata,"a"')
    e.raw(".p2align 6")
    e.raw(f".amdhsa_kernel {name}")
    e.raw(f"  .amdhsa_next_free_vgpr {vgpr}")
    e.raw(f"  .amdhsa_next_free_sgpr {sgpr}")
    e.raw(f"  .amdhsa_accum_offset {acc}")
    e.raw("  .amdhsa_group_segment_fixed_size 0")
    e.raw("  .amdhsa_kernarg_size 112")
    e.raw("  .amdhsa_user_sgpr_count 2")
    e.raw("  .amdhsa_user_sgpr_kernarg_segment_ptr 1")
    e.raw("  .amdhsa_system_sgpr_workgroup_id_x 1")
    e.raw(".end_amdhsa_kernel")


def make_srd(e, d, ptr, nbytes, off=0):
    if off:
        e(f"s_add_u32 s{d}, s{ptr}, 0x{off:x}")
        e(f"s_addc_u32 s{d + 1}, s{ptr + 1}, 0")
    else:
        e(f"s_mov_b32 s{d}, s{ptr}")
        e(f"s_mov_b32 s{d + 1}, s{ptr + 1}")
    e(f"s_mov_b32 s{d + 2}, 0x{nbytes:x}")
    e(f"s_mov_b32 s{d + 3}, 0x00020000")


def wave_sum(e, v, t):
    for off in (0x041F, 0x081F, 0x101F, 0x201F, 0x401F):
        e(f"ds_swizzle_b32 v{t}, v{v} offset:0x{off:04X}")
        e("s_waitcnt lgkmcnt(0)")
        e(f"v_add_f32 v{v}, v{v}, v{t}")
    e(f"v_mov_b32 v{t}, v{v}")
    e("s_nop 1")
    e(f"v_permlane32_swap_b32 v{t}, v{v}")
    e("s_nop 1")
    e(f"v_add_f32 v{v}, v{v}, v{t}")


def gen_ln(e):
    name = "ln_kernel"
    kernel_header(e, name)
    e("s_cmp_ge_u32 s2, 512")
    e("s_cbranch_scc1 ln_end")
    e(f"s_load_dwordx2 s[4:5], s[0:1], {KA['x']}")
    e(f"s_load_dwordx2 s[6:7], s[0:1], {KA['ws']}")
    e("v_lshrrev_b32 v1, 6, v0")
    e("v_and_b32 v2, 63, v0")
    e("s_lshl_b32 s3, s2, 2")
    e("v_add_u32 v1, s3, v1")
    e("s_movk_i32 s16, 1280")
    e("v_mul_lo_u32 v1, v1, s16")
    e("v_lshl_add_u32 v1, v2, 2, v1")
    e("s_waitcnt lgkmcnt(0)")
    make_srd(e, 8, 4, 2048 * 1280)
    make_srd(e, 12, 6, 2 * 2048 * 1280)
    for i in range(5):
        e(f"buffer_load_dword v{4 + i}, v1, s[8:11], 0 offen offset:{i * 256}")
    e("s_waitcnt vmcnt(0)")
    e("s_mov_b32 s17, 0x3acccccd")
    e("s_mov_b32 s18, 0x3727c5ac")
    e("s_mov_b32 s19, 0xffff0000")

    def ln_pass(dst_off):
        for i in range(5):
            e(f"v_lshlrev_b32 v{10 + 2 * i}, 16, v{4 + i}")
            e(f"v_and_b32 v{11 + 2 * i}, s19, v{4 + i}")
        e("v_add_f32 v20, v10, v11")
        for i in range(2, 10):
            e(f"v_add_f32 v20, v20, v{10 + i}")
        wave_sum(e, 20, 21)
        e("v_mul_f32 v20, s17, v20")
        for i in range(10):
            e(f"v_sub_f32 v{10 + i}, v{10 + i}, v20")
        e("v_mul_f32 v22, v10, v10")
        for i in range(1, 10):
            e(f"v_fmac_f32 v22, v{10 + i}, v{10 + i}")
        wave_sum(e, 22, 21)
        e("v_mov_b32 v23, s18")
        e("v_fmac_f32 v23, s17, v22")
        e("v_rsq_f32 v23, v23")
        e("s_nop 1")
        for i in range(10):
            e(f"v_mul_f32 v{10 + i}, v{10 + i}, v23")
        for i in range(5):
            e(f"v_cvt_pk_bf16_f32 v{4 + i}, v{10 + 2 * i}, v{11 + 2 * i}")
        e("s_mov_b32 s20, 0x%x" % dst_off)
        for i in range(5):
            e(f"buffer_store_dword v{4 + i}, v1, s[12:15], s20 offen offset:{i * 256}")

    ln_pass(WS_XN)
    e("s_nop 4")
    ln_pass(WS_H)
    e.label("ln_end")
    e("s_endpgm")
    return name, 32


class Op:
    def __init__(self, mode, srd, ld, base, perm=False):
        self.mode = mode
        self.srd = srd
        self.ld = ld
        self.base = base
        self.perm = perm


class Gemm:
    def __init__(self, e, tag, BA, BB, WA, WB, vbase=2, NS=2):
        self.e = e
        self.tag = tag
        self.BA, self.BB, self.WA, self.WB = BA, BB, WA, WB
        self.NW = WA * WB
        self.TA = BA // WA // 32
        self.TB = BB // WB // 32
        self.SA = BA * 128
        self.SB = BB * 128
        st = self.SA + self.SB
        self.NS = NS
        self.stage = st
        self.lds = st * NS
        self.nA = self.SA // 1024 // self.NW
        self.nB = self.SB // 1024 // self.NW
        assert self.nA * 1024 * self.NW == self.SA and self.nB * 1024 * self.NW == self.SB
        v = vbase
        self.v_lane = v; v += 1
        self.v_t0 = v; v += 1
        self.v_t1 = v; v += 1
        self.v_t2 = v; v += 1
        self.v_dmaA = v; v += self.nA
        self.v_dmaB = v; v += self.nB
        self.v_adrA = v; v += 4
        self.v_adrB = v; v += 4
        v = (v + 3) // 4 * 4
        self.v_fA = v; v += 2 * 4 * self.TA
        self.v_fB = v; v += 2 * 4 * self.TB
        self.v_acc = v; v += 16 * self.TA * self.TB
        self.v_end = v
        self.s_wave = 20
        self.s_cnt = 21
        self.s_offA = 22
        self.s_offB = 23
        self.s_t = 24
        self.s_wa = 28
        self.s_wb = 29
        self.s_stage = 30
        self.s_rd = 31

    def setup_common(self):
        e = self.e
        e(f"v_and_b32 v{self.v_lane}, 63, v0")
        e(f"v_lshrrev_b32 v{self.v_t0}, 6, v0")
        e("s_nop 0")
        e(f"v_readfirstlane_b32 s{self.s_wave}, v{self.v_t0}")
        e("s_nop 3")
        lw = int(math.log2(self.WA))
        e(f"s_and_b32 s{self.s_wa}, s{self.s_wave}, {self.WA - 1}")
        e(f"s_lshr_b32 s{self.s_wb}, s{self.s_wave}, {lw}")

    def setup_op(self, op, R, n, v_dma, v_adr, s_wcoord, T, lds_base):
        e = self.e
        L, t0, t1, t2 = self.v_lane, self.v_t0, self.v_t1, self.v_t2
        st = self.s_t
        if op.mode == 'k':
            for jj in range(n):
                e(f"s_mul_i32 s{st}, s{self.s_wave}, {n * 8}")
                e(f"s_add_u32 s{st}, s{st}, {jj * 8}")
                e(f"v_lshrrev_b32 v{t0}, 3, v{L}")
                e(f"v_add_u32 v{t0}, s{st}, v{t0}")
                e(f"v_bfe_u32 v{t1}, v{t0}, 1, 3")
                e(f"v_and_b32 v{t2}, 7, v{L}")
                e(f"v_xor_b32 v{t1}, v{t1}, v{t2}")
                e(f"s_mov_b32 s{st + 1}, {op.ld}")
                e(f"v_mul_lo_u32 v{t0}, v{t0}, s{st + 1}")
                e(f"v_lshl_add_u32 v{v_dma + jj}, v{t1}, 4, v{t0}")
            e(f"s_mul_i32 s{st}, s{s_wcoord}, {T * 32}")
            e(f"v_and_b32 v{t0}, 31, v{L}")
            e(f"v_add_u32 v{t0}, s{st}, v{t0}")
            e(f"v_bfe_u32 v{t1}, v{t0}, 1, 3")
            e(f"v_lshrrev_b32 v{t2}, 5, v{L}")
            e(f"v_lshlrev_b32 v{t0}, 7, v{t0}")
            for kk in range(4):
                e(f"v_add_u32 v{v_adr + kk}, {2 * kk}, v{t2}")
                e(f"v_xor_b32 v{v_adr + kk}, v{v_adr + kk}, v{t1}")
                e(f"v_lshl_add_u32 v{v_adr + kk}, v{v_adr + kk}, 4, v{t0}")
                if lds_base:
                    e(f"v_add_u32 v{v_adr + kk}, {lds_base}, v{v_adr + kk}")
        else:
            rb = 2 * R
            lrb = int(math.log2(rb))
            for jj in range(n):
                e(f"s_mul_i32 s{st}, s{self.s_wave}, {n * 1024}")
                e(f"s_add_u32 s{st}, s{st}, {jj * 1024}")
                e(f"v_lshlrev_b32 v{t0}, 4, v{L}")
                e(f"v_add_u32 v{t0}, s{st}, v{t0}")
                e(f"v_lshrrev_b32 v{t1}, {lrb}, v{t0}")
                e(f"v_and_b32 v{t0}, {rb - 1}, v{t0}")
                if rb >= 256:
                    e(f"v_and_b32 v{t2}, 3, v{t1}")
                else:
                    e(f"v_bfe_u32 v{t2}, v{t1}, 1, 1")
                e(f"v_lshlrev_b32 v{t2}, 6, v{t2}")
                e(f"v_xor_b32 v{t0}, v{t0}, v{t2}")
                e(f"s_mov_b32 s{st + 1}, {op.ld}")
                e(f"v_mul_lo_u32 v{t1}, v{t1}, s{st + 1}")
                e(f"v_add_u32 v{v_dma + jj}, v{t0}, v{t1}")
            e(f"v_lshrrev_b32 v{t0}, 5, v{L}")
            e(f"v_lshlrev_b32 v{t0}, {2 if op.perm else 3}, v{t0}")
            e(f"v_bfe_u32 v{t1}, v{L}, 2, 2")
            e(f"v_add_u32 v{t0}, v{t0}, v{t1}")
            e(f"v_lshlrev_b32 v{t0}, {lrb}, v{t0}")
            e(f"v_bfe_u32 v{t2}, v{L}, 4, 1")
            e(f"v_lshlrev_b32 v{t2}, 5, v{t2}")
            e(f"v_add_u32 v{t0}, v{t0}, v{t2}")
            e(f"v_and_b32 v{t2}, 3, v{L}")
            e(f"v_lshl_add_u32 v{t0}, v{t2}, 3, v{t0}")
            if rb < 256:
                e(f"v_bfe_u32 v{t1}, v{L}, 3, 1")
            for t in range(T):
                e(f"s_mul_i32 s{st}, s{s_wcoord}, {T}")
                e(f"s_add_u32 s{st}, s{st}, {t}")
                e(f"v_xor_b32 v{t2}, s{st}, v{t1}")
                e(f"v_lshl_add_u32 v{v_adr + t}, v{t2}, 6, v{t0}")
                if lds_base:
                    e(f"v_add_u32 v{v_adr + t}, {lds_base}, v{v_adr + t}")

    def n_adr(self, op, T):
        return 4 if op.mode == 'k' else T

    def issue_dma(self, op, n, v_dma, lds_base, s_off):
        e = self.e
        st = self.s_t
        for jj in range(n):
            e(f"s_mul_i32 s{st}, s{self.s_wave}, {n * 1024}")
            e(f"s_add_u32 s{st}, s{st}, s{self.s_stage}")
            e(f"s_add_u32 m0, s{st}, {lds_base + jj * 1024}")
            e("s_nop 0")
            e(f"buffer_load_dwordx4 v{v_dma + jj}, s[{op.srd}:{op.srd + 3}], s{s_off} offen lds")

    def read_frags(self, op, R, T, v_adr, v_f, kk):
        e = self.e
        cnt = 0
        if op.mode == 'k':
            for t in range(T):
                e(f"ds_read_b128 v[{v_f + 4 * t}:{v_f + 4 * t + 3}], v{v_adr + kk} offset:{t * 4096}")
                cnt += 1
        else:
            rb = 2 * R
            hstep = 8 if op.perm else 4
            for t in range(T):
                for half in range(2):
                    off = (kk * 16 + half * hstep) * rb
                    e(f"ds_read_b64_tr_b16 v[{v_f + 4 * t + 2 * half}:{v_f + 4 * t + 2 * half + 1}], v{v_adr + t} offset:{off}")
                    cnt += 1
        return cnt

    def zero_acc(self):
        for i in range(16 * self.TA * self.TB):
            self.e(f"v_mov_b32 v{self.v_acc + i}, 0")

    def run_seg(self, A, B, nk, first):
        e = self.e
        tag = self.tag
        NS = self.NS
        self.seg = getattr(self, "seg", 0) + 1
        lab = f"{tag}_s{self.seg}"
        self.setup_op(A, self.BA, self.nA, self.v_dmaA, self.v_adrA, self.s_wa, self.TA, 0)
        self.setup_op(B, self.BB, self.nB, self.v_dmaB, self.v_adrB, self.s_wb, self.TB, self.SA)
        stepA = 128 if A.mode == 'k' else 64 * A.ld
        stepB = 128 if B.mode == 'k' else 64 * B.ld
        nd = self.nA + self.nB
        assert nk >= NS
        e(f"s_mov_b32 s{self.s_offA}, s{A.base}")
        e(f"s_mov_b32 s{self.s_offB}, s{B.base}")
        e(f"s_mov_b32 s{self.s_stage}, 0")
        e(f"s_mov_b32 s{self.s_rd}, 0")
        if not first:
            e("s_barrier")

        st4 = self.s_t + 3

        def pieces():
            out = []

            def first():
                e(f"s_mul_i32 s{st4}, s{self.s_wave}, {self.nA * 1024}")
                e(f"s_add_u32 s{st4}, s{st4}, s{self.s_stage}")
            for jj in range(self.nA):
                def f(jj=jj):
                    if jj == 0:
                        first()
                    e(f"s_add_u32 m0, s{st4}, {jj * 1024}")
                    e("s_nop 0")
                    e(f"buffer_load_dwordx4 v{self.v_dmaA + jj}, s[{A.srd}:{A.srd + 3}], s{self.s_offA} offen lds")
                out.append(f)
            for jj in range(self.nB):
                def f(jj=jj):
                    if jj == 0:
                        e(f"s_mul_i32 s{st4}, s{self.s_wave}, {self.nB * 1024}")
                        e(f"s_add_u32 s{st4}, s{st4}, s{self.s_stage}")
                    e(f"s_add_u32 m0, s{st4}, {self.SA + jj * 1024}")
                    e("s_nop 0")
                    e(f"buffer_load_dwordx4 v{self.v_dmaB + jj}, s[{B.srd}:{B.srd + 3}], s{self.s_offB} offen lds")
                    if jj == self.nB - 1:
                        e(f"s_add_u32 s{self.s_offA}, s{self.s_offA}, {stepA}")
                        e(f"s_add_u32 s{self.s_offB}, s{self.s_offB}, {stepB}")
                        e(f"s_add_u32 s{self.s_stage}, s{self.s_stage}, {self.stage}")
                        e(f"s_cmp_eq_u32 s{self.s_stage}, {self.stage * NS}")
                        e(f"s_cselect_b32 s{self.s_stage}, 0, s{self.s_stage}")
                out.append(f)
            return out

        for i in range(NS - 1):
            for f in pieces():
                f()
        szA = 4 * self.TA
        szB = 4 * self.TB

        def reads(kk):
            buf = kk & 1
            c = self.read_frags(A, self.BA, self.TA, self.v_adrA, self.v_fA + buf * szA, kk)
            c += self.read_frags(B, self.BB, self.TB, self.v_adrB, self.v_fB + buf * szB, kk)
            return c

        early = NS >= 3

        def compute(pcs, last=False):
            pcs = list(pcs)
            nm = self.TA * self.TB
            per = -(-len(pcs) // 3) if pcs else 0
            gap = max(1, nm // max(per, 1))
            if not early:
                reads(0)
            for kk in range(4):
                nxt = reads(kk + 1) if kk < 3 else 0
                e(f"s_waitcnt lgkmcnt({nxt})")
                buf = kk & 1
                i = 0
                used = 0
                for ta in range(self.TA):
                    for tb in range(self.TB):
                        d = self.v_acc + 16 * (ta * self.TB + tb)
                        a = self.v_fA + buf * szA + 4 * ta
                        b = self.v_fB + buf * szB + 4 * tb
                        e(f"v_mfma_f32_32x32x16_bf16 v[{d}:{d + 15}], v[{a}:{a + 3}], v[{b}:{b + 3}], v[{d}:{d + 15}]")
                        i += 1
                        if pcs and used < per and (i % gap == 0):
                            pcs.pop(0)()
                            used += 1
                if kk == 2:
                    while pcs:
                        pcs.pop(0)()
            st = self.s_t
            e(f"s_add_u32 s{st}, s{self.s_rd}, {self.stage}")
            e(f"s_cmp_eq_u32 s{st}, {self.stage * NS}")
            e(f"s_cselect_b32 s{st}, 0, s{st}")
            e(f"s_sub_u32 s{st + 1}, s{st}, s{self.s_rd}")
            e(f"s_mov_b32 s{self.s_rd}, s{st}")
            for i in range(self.n_adr(A, self.TA)):
                e(f"v_add_u32 v{self.v_adrA + i}, s{st + 1}, v{self.v_adrA + i}")
            for i in range(self.n_adr(B, self.TB)):
                e(f"v_add_u32 v{self.v_adrB + i}, s{st + 1}, v{self.v_adrB + i}")
            if early and not last:
                reads(0)

        if early:
            e(f"s_waitcnt vmcnt({(NS - 2) * nd})")
            e("s_barrier")
            reads(0)
        lag = 1 if early else 0
        e(f"s_mov_b32 s{self.s_cnt}, {nk - (NS - 1)}")
        e.label(f"{lab}_loop")
        e(f"s_waitcnt vmcnt({(NS - 2 - lag) * nd})")
        e("s_barrier")
        compute(pieces())
        e(f"s_sub_u32 s{self.s_cnt}, s{self.s_cnt}, 1")
        e(f"s_cmp_lg_u32 s{self.s_cnt}, 0")
        e(f"s_cbranch_scc1 {lab}_loop")
        for i in range(NS - 1):
            e(f"s_waitcnt vmcnt({max(NS - 2 - i - lag, 0) * nd})")
            e("s_barrier")
            compute([], last=(i == NS - 2))

    def out_addr(self, v_dst, s_rowA0, s_colB0, ld_out):
        e = self.e
        L, t0, st = self.v_lane, self.v_t0, self.s_t
        e(f"s_mul_i32 s{st}, s{self.s_wb}, {self.TB * 32}")
        e(f"s_add_u32 s{st}, s{st}, s{s_colB0}")
        e(f"v_and_b32 v{t0}, 31, v{L}")
        e(f"v_add_u32 v{t0}, s{st}, v{t0}")
        e(f"s_mov_b32 s{st + 1}, {ld_out}")
        e(f"v_mul_lo_u32 v{t0}, v{t0}, s{st + 1}")
        e(f"s_mul_i32 s{st}, s{self.s_wa}, {self.TA * 32}")
        e(f"s_add_u32 s{st}, s{st}, s{s_rowA0}")
        e(f"s_lshl_b32 s{st}, s{st}, 1")
        e(f"v_add_u32 v{t0}, s{st}, v{t0}")
        e(f"v_lshrrev_b32 v{v_dst}, 5, v{L}")
        return t0

    def epi_tile(self, srd_out, s_base):
        e = self.e
        va, t0, L = self.v_t1, self.v_t0, self.v_lane
        e(f"v_and_b32 v{t0}, 31, v{L}")
        e(f"v_lshlrev_b32 v{t0}, 8, v{t0}")
        e(f"v_add_u32 v{t0}, s{s_base}, v{t0}")
        e(f"v_lshrrev_b32 v{va}, 5, v{L}")
        e(f"v_lshl_add_u32 v{va}, v{va}, 4, v{t0}")
        e("s_nop 15")
        e("s_nop 7")
        pk = self.v_fA
        nb = 0
        for tb in range(self.TB):
            e(f"s_mov_b32 s{self.s_t}, {tb * 8192}")
            for ta in range(self.TA):
                d = self.v_acc + 16 * (ta * self.TB + tb)
                p = pk + 8 * (nb & 1)
                nb += 1
                for i in range(8):
                    e(f"v_cvt_pk_bf16_f32 v{p + i}, v{d + 2 * i}, v{d + 2 * i + 1}")
                e(f"buffer_store_dwordx4 v[{p}:{p + 3}], v{va}, s[{srd_out}:{srd_out + 3}], s{self.s_t} offen offset:{ta * 64}")
                e(f"buffer_store_dwordx4 v[{p + 4}:{p + 7}], v{va}, s[{srd_out}:{srd_out + 3}], s{self.s_t} offen offset:{ta * 64 + 32}")
                e("s_nop 1")

    def epi_perm(self, srd_out, s_rowA0, s_colB0, ld_out):
        e = self.e
        va = self.v_t1
        t0 = self.out_addr(va, s_rowA0, s_colB0, ld_out)
        e(f"v_lshl_add_u32 v{va}, v{va}, 4, v{t0}")
        e("s_nop 15")
        e("s_nop 7")
        pk = self.v_fA
        nb = 0
        for ta in range(self.TA):
            for tb in range(self.TB):
                d = self.v_acc + 16 * (ta * self.TB + tb)
                p = pk + 8 * (nb & 1)
                nb += 1
                for i in range(8):
                    e(f"v_cvt_pk_bf16_f32 v{p + i}, v{d + 2 * i}, v{d + 2 * i + 1}")
                off = tb * 32 * ld_out + ta * 64
                assert off + 32 < 4096 or True
                if off + 32 < 4096:
                    e(f"buffer_store_dwordx4 v[{p}:{p + 3}], v{va}, s[{srd_out}:{srd_out + 3}], 0 offen offset:{off}")
                    e(f"buffer_store_dwordx4 v[{p + 4}:{p + 7}], v{va}, s[{srd_out}:{srd_out + 3}], 0 offen offset:{off + 32}")
                else:
                    e(f"s_mov_b32 s{self.s_t}, {tb * 32 * ld_out}")
                    e(f"buffer_store_dwordx4 v[{p}:{p + 3}], v{va}, s[{srd_out}:{srd_out + 3}], s{self.s_t} offen offset:{ta * 64}")
                    e(f"buffer_store_dwordx4 v[{p + 4}:{p + 7}], v{va}, s[{srd_out}:{srd_out + 3}], s{self.s_t} offen offset:{ta * 64 + 32}")
                e("s_nop 1")


P1_NU = 35
P1_NQ = 128


def gen_p1(e):
    name = "proj_kernel"
    kernel_header(e, name)
    ntot = P1_NU + 3 * P1_NQ
    e(f"s_cmp_ge_u32 s2, {ntot}")
    e("s_cbranch_scc1 p1_end")
    e(f"s_load_dwordx2 s[32:33], s[0:1], {KA['ckv']}")
    e(f"s_load_dwordx2 s[34:35], s[0:1], {KA['wq']}")
    e(f"s_load_dwordx2 s[36:37], s[0:1], {KA['wuk']}")
    e(f"s_load_dwordx2 s[38:39], s[0:1], {KA['wuv']}")
    e(f"s_load_dwordx2 s[40:41], s[0:1], {KA['w1']}")
    e(f"s_load_dwordx2 s[42:43], s[0:1], {KA['b1']}")
    e(f"s_load_dwordx2 s[44:45], s[0:1], {KA['ws']}")
    e("s_waitcnt lgkmcnt(0)")
    e(f"s_cmp_lt_u32 s2, {P1_NU}")
    e("s_cbranch_scc1 p1_u")
    e(f"s_cmp_lt_u32 s2, {P1_NU + P1_NQ}")
    e("s_cbranch_scc1 p1_q")
    e(f"s_cmp_lt_u32 s2, {P1_NU + 2 * P1_NQ}")
    e("s_cbranch_scc1 p1_k")
    e("s_branch p1_v")
    vmax = 0

    for tag, wptr, K, xsrc, xld, wsoff, id0 in (("p1_q", 34, 640, 'xn', 1280, WS_Q, P1_NU),
                                                 ("p1_k", 36, 512, 'ckv', 1024, WS_K, P1_NU + P1_NQ)):
        e.label(tag)
        g = Gemm(e, tag, 256, 256, 2, 4)
        vmax = max(vmax, g.v_end)
        make_srd(e, 4, wptr, K * 8192)
        if xsrc == 'xn':
            make_srd(e, 8, 44, 2048 * 1280, WS_XN)
        else:
            make_srd(e, 8, 32, 2048 * 1024)
        make_srd(e, 12, 44, 2048 * 8192, wsoff)
        e(f"s_sub_u32 s3, s2, {id0}")
        e("s_and_b32 s46, s3, 15")
        e("s_lshr_b32 s47, s3, 4")
        e("s_lshl_b32 s46, s46, 8")
        e("s_lshl_b32 s47, s47, 8")
        e("s_lshl_b32 s48, s46, 1")
        e(f"s_mul_i32 s49, s47, {xld}")
        g.setup_common()
        g.zero_acc()
        g.run_seg(Op('t', 4, 8192, 48), Op('k', 8, xld, 49), K // 64, True)
        e(f"s_lshr_b32 s50, s46, 7")
        e(f"s_add_u32 s50, s50, s{g.s_wa}")
        e("s_lshl_b32 s50, s50, 19")
        e(f"s_lshl_b32 s51, s{g.s_wb}, 6")
        e("s_add_u32 s51, s51, s47")
        e("s_lshl_b32 s51, s51, 8")
        e("s_add_u32 s50, s50, s51")
        g.epi_tile(12, 50)
        e("s_endpgm")

    e.label("p1_v")
    g = Gemm(e, "p1_v", 256, 256, 2, 4)
    vmax = max(vmax, g.v_end)
    make_srd(e, 4, 32, 2048 * 1024)
    make_srd(e, 8, 38, 512 * 8192)
    make_srd(e, 12, 44, 4096 * 4096, WS_VT)
    e(f"s_sub_u32 s3, s2, {P1_NU + 2 * P1_NQ}")
    e("s_and_b32 s46, s3, 7")
    e("s_lshr_b32 s47, s3, 3")
    e("s_lshl_b32 s46, s46, 8")
    e("s_lshl_b32 s47, s47, 8")
    e("s_mul_i32 s48, s46, 1024")
    e("s_lshl_b32 s49, s47, 1")
    g.setup_common()
    g.zero_acc()
    g.run_seg(Op('k', 4, 1024, 48), Op('t', 8, 8192, 49), 8, True)
    e("s_lshr_b32 s50, s47, 7")
    e(f"s_lshr_b32 s51, s{g.s_wb}, 1")
    e("s_add_u32 s50, s50, s51")
    e("s_lshl_b32 s50, s50, 19")
    e("s_lshr_b32 s51, s46, 7")
    e(f"s_add_u32 s51, s51, s{g.s_wa}")
    e("s_lshl_b32 s51, s51, 15")
    e("s_add_u32 s50, s50, s51")
    e(f"s_and_b32 s51, s{g.s_wb}, 1")
    e("s_lshl_b32 s51, s51, 14")
    e("s_add_u32 s50, s50, s51")
    g.epi_tile(12, 50)
    e("s_endpgm")

    e.label("p1_u")
    g = Gemm(e, "p1_u", 256, 128, 4, 2)
    vmax = max(vmax, g.v_end)
    make_srd(e, 4, 40, 2048 * 3456)
    make_srd(e, 8, 44, 2048 * 1280, WS_H)
    make_srd(e, 12, 44, 640 * 3456, WS_U)
    make_srd(e, 16, 42, 3456)
    e("s_mul_i32 s46, s2, 37")
    e("s_lshr_b32 s47, s46, 8")
    e("s_mul_i32 s46, s47, 7")
    e("s_sub_u32 s46, s2, s46")
    e("s_lshl_b32 s46, s46, 8")
    e("s_lshl_b32 s47, s47, 7")
    e("s_lshl_b32 s48, s46, 1")
    e("s_lshl_b32 s49, s47, 1")
    g.setup_common()
    g.zero_acc()
    g.run_seg(Op('t', 4, 3456, 48), Op('t', 8, 1280, 49), 32, True)
    va = g.v_t1
    t0 = g.out_addr(va, 46, 47, 3456)
    e(f"v_lshl_add_u32 v{va}, v{va}, 4, v{t0}")
    vb = g.v_t2
    e(f"s_mul_i32 s24, s{g.s_wa}, {g.TA * 32}")
    e("s_add_u32 s50, s24, s46")
    e("s_lshl_b32 s24, s50, 1")
    e(f"v_lshrrev_b32 v{vb}, 5, v{g.v_lane}")
    e(f"v_lshlrev_b32 v{vb}, 3, v{vb}")
    e(f"v_add_u32 v{vb}, s24, v{vb}")
    e("s_nop 15")
    e("s_nop 7")
    e("s_mov_b32 s51, 0xffff0000")
    e("s_mov_b32 s52, 0x3d372713")
    e("s_mov_b32 s53, 0xc0135761")
    bias = g.v_fA
    bf = g.v_fA + 8
    tmp = g.v_fA + 24
    for ta in range(g.TA):
        e(f"s_add_u32 s24, s50, {ta * 32}")
        e("s_cmp_ge_u32 s24, 1728")
        e(f"s_cbranch_scc1 p1_u_skip{ta}")
        for q in range(4):
            e(f"buffer_load_dwordx2 v[{bias + 2 * q}:{bias + 2 * q + 1}], v{vb}, s[16:19], 0 offen offset:{ta * 64 + q * 16}")
        e("s_waitcnt vmcnt(0)")
        for i in range(8):
            e(f"v_lshlrev_b32 v{bf + 2 * i}, 16, v{bias + i}")
            e(f"v_and_b32 v{bf + 2 * i + 1}, s51, v{bias + i}")
        for tb in range(g.TB):
            d = g.v_acc + 16 * (ta * g.TB + tb)
            for i in range(16):
                x = d + i
                e(f"v_add_f32 v{x}, v{x}, v{bf + i}")
                e(f"v_mul_f32 v{tmp}, v{x}, v{x}")
                e(f"v_fma_f32 v{tmp}, v{tmp}, s52, 1.0")
                e(f"v_mul_f32 v{tmp}, v{tmp}, v{x}")
                e(f"v_mul_f32 v{tmp}, s53, v{tmp}")
                e(f"v_exp_f32 v{tmp}, v{tmp}")
                e("s_nop 0")
                e(f"v_add_f32 v{tmp}, 1.0, v{tmp}")
                e(f"v_rcp_f32 v{tmp}, v{tmp}")
                e("s_nop 0")
                e(f"v_mul_f32 v{x}, v{x}, v{tmp}")
            p = bias
            for i in range(8):
                e(f"v_cvt_pk_bf16_f32 v{p + i}, v{d + 2 * i}, v{d + 2 * i + 1}")
            e(f"s_mov_b32 s24, {tb * 32 * 3456}")
            e(f"buffer_store_dwordx4 v[{p}:{p + 3}], v{va}, s[12:15], s24 offen offset:{ta * 64}")
            e(f"buffer_store_dwordx4 v[{p + 4}:{p + 7}], v{va}, s[12:15], s24 offen offset:{ta * 64 + 32}")
            e("s_nop 1")
        e.label(f"p1_u_skip{ta}")
    e.label("p1_end")
    e("s_endpgm")
    return name, vmax, ntot, 131072


def gen_attn(e):
    name = "attn_kernel"
    kernel_header(e, name)
    e("s_cmp_ge_u32 s2, 256")
    e("s_cbranch_scc1 at_end")
    e(f"s_load_dwordx2 s[44:45], s[0:1], {KA['ws']}")
    e(f"s_load_dwordx2 s[60:61], s[0:1], {KA['dbg']}")
    nst = [0]
    if 'wgt' in XP:
        e("s_memrealtime s[90:91]")

    def stamp():
        if 'stamp' in XP and nst[0] < 12:
            e(f"s_memtime s[{64 + 2 * nst[0]}:{65 + 2 * nst[0]}]")
            nst[0] += 1
    vL, vt0, vt1, vt2 = 1, 2, 3, 4
    vdK, vdV = 6, 10
    vaK, vaV = 14, 22
    vm, vl, vmask, vst = 26, 27, 28, 29
    valpha, vmc, vx0, vx1 = 30, 31, 32, 33
    vcc2 = 34
    vQ = 36
    vS = 68
    vP = 100
    vF0 = 116
    vF1 = 148
    vO = 180
    VEND = 244
    sW, sG, sQS, sH, sJ, sQB, sIT, sKoff, sVoff, sStage, sT, sC, sPass, sQ0 = 20, 21, 22, 23, 24, 25, 26, 27, 28, 29, 30, 34, 35, 36
    sVst, sKrd, sVrd = 37, 38, 39
    e(f"v_and_b32 v{vL}, 63, v0")
    e(f"v_lshrrev_b32 v{vt0}, 6, v0")
    e("s_nop 0")
    e(f"v_readfirstlane_b32 s{sW}, v{vt0}")
    e("s_nop 3")
    e(f"s_lshr_b32 s{sG}, s{sW}, 2")
    e(f"s_and_b32 s{sQS}, s{sW}, 3")
    e("s_and_b32 s3, s2, 7")
    e(f"s_lshr_b32 s{sT}, s2, 3")
    e(f"s_lshr_b32 s{sH}, s{sT}, 3")
    e(f"s_lshl_b32 s3, s3, 2")
    e(f"s_add_u32 s{sH}, s{sH}, s3")
    e(f"s_and_b32 s{sJ}, s{sT}, 7")
    e("s_waitcnt lgkmcnt(0)")
    make_srd(e, 4, 44, 2048 * 8192, WS_Q)
    make_srd(e, 8, 44, 2048 * 8192, WS_K)
    make_srd(e, 12, 44, 4096 * 4096, WS_VT)
    make_srd(e, 16, 44, 2048 * 8192, WS_CTX)
    e(f"s_mov_b32 s{sC}, 0x3e0293ee")
    for jj in range(4):
        e(f"s_lshl_b32 s{sT}, s{sW}, 4")
        e(f"s_add_u32 s{sT}, s{sT}, {jj * 4}")
        e(f"v_lshrrev_b32 v{vt0}, 4, v{vL}")
        e(f"v_add_u32 v{vt0}, s{sT}, v{vt0}")
        e(f"v_xor_b32 v{vt1}, v{vt0}, v{vL}")
        e(f"v_and_b32 v{vt1}, 15, v{vt1}")
        e(f"v_lshlrev_b32 v{vt1}, 4, v{vt1}")
        e(f"v_lshl_add_u32 v{vdK + jj}, v{vt0}, 8, v{vt1}")
        if jj:
            e(f"v_subrev_u32 v{vdK + jj}, {jj * 1024}, v{vdK + jj}")
        e(f"v_mov_b32 v{vdV + jj}, v{vdK + jj}")
    e(f"v_and_b32 v{vt0}, 31, v{vL}")
    e(f"v_lshrrev_b32 v{vt1}, 5, v{vL}")
    e(f"v_and_b32 v{vt2}, 15, v{vL}")
    e(f"v_xor_b32 v{vt2}, v{vt2}, v{vt1}")
    e(f"v_lshlrev_b32 v{vt2}, 4, v{vt2}")
    e(f"s_lshl_b32 s{sT}, s{sG}, 6")
    e(f"v_add_u32 v{vx0}, s{sT}, v{vt0}")
    e(f"v_lshl_add_u32 v{vx0}, v{vx0}, 8, v{vt2}")
    for kk in range(8):
        e(f"v_xor_b32 v{vaK + kk}, {kk * 32}, v{vx0}")
    e(f"v_lshl_add_u32 v{vx0}, v{vt0}, 8, v{vt2}")
    e(f"v_add_u32 v{vx0}, 65536, v{vx0}")
    e(f"s_lshl_b32 s{sT}, s{sG}, 7")
    e(f"v_xor_b32 v{vx0}, s{sT}, v{vx0}")
    for kk in range(4):
        e(f"v_xor_b32 v{vaV + kk}, {kk * 32}, v{vx0}")
    e(f"s_lshl_b32 s{sT}, s{sQS}, 5")
    e(f"s_lshl_b32 s{sT + 1}, s{sG}, 6")
    e(f"s_sub_u32 s{sT}, s{sT}, s{sT + 1}")
    e(f"v_add_u32 v{vmask}, s{sT}, v{vt0}")
    e(f"v_lshlrev_b32 v{vt1}, 2, v{vt1}")
    e(f"v_sub_u32 v{vmask}, v{vmask}, v{vt1}")
    e(f"s_mov_b32 s{sPass}, 0")
    e(f"v_mov_b32 v{vcc2}, s{sC}")
    e(f"v_mov_b32 v{vcc2 + 1}, s{sC}")
    e(f"s_sub_u32 s{sQB}, 15, s{sJ}")
    e.label("at_qblock")
    e(f"s_lshl_b32 s{sQ0}, s{sQB}, 7")
    e(f"s_lshl_b32 s{sT}, s{sQS}, 5")
    e(f"s_add_u32 s{sT}, s{sT}, s{sQ0}")
    e(f"v_and_b32 v{vt0}, 31, v{vL}")
    e(f"v_add_u32 v{vt0}, s{sT}, v{vt0}")
    e(f"v_lshrrev_b32 v{vt1}, 5, v{vL}")
    e(f"v_lshlrev_b32 v{vt1}, 4, v{vt1}")
    e(f"v_lshl_add_u32 v{vt2}, v{vt0}, 8, v{vt1}")
    e(f"v_lshl_add_u32 v{vt0}, v{vt0}, 13, v{vt1}")
    e(f"s_lshl_b32 s{sT}, s{sH}, 8")
    e(f"v_add_u32 v{vst}, s{sT}, v{vt0}")
    e(f"s_lshl_b32 s{sT}, s{sH}, 19")
    for kk in range(8):
        e(f"buffer_load_dwordx4 v[{vQ + 4 * kk}:{vQ + 4 * kk + 3}], v{vt2}, s[4:7], s{sT} offen offset:{kk * 32}")
    e(f"v_mov_b32 v{vm}, 0xf149f2ca")
    e(f"v_mov_b32 v{vl}, 0")
    for i in range(64):
        e(f"v_mov_b32 v{vO + i}, 0")
    e(f"s_lshl_b32 s{sKoff}, s{sH}, 19")
    e(f"s_lshl_b32 s{sVoff}, s{sH}, 19")
    e(f"s_mov_b32 s{sStage}, 0")
    e(f"s_mov_b32 s{sVst}, 0")
    e(f"s_mov_b32 s{sKrd}, 0")
    e(f"s_mov_b32 s{sVrd}, 0")
    e(f"s_mov_b32 s{sIT}, 0")

    sDK, sDV, sD = 40, 41, 42

    def dma_setup():
        e(f"s_lshl_b32 s{sT}, s{sW}, 12")
        e(f"s_add_u32 s{sDK}, s{sT}, s{sStage}")
        e(f"s_add_u32 s{sDV}, s{sT}, s{sVst}")
        e(f"s_add_u32 s{sDV}, s{sDV}, 65536")

    def dma_piece(i):
        jj = i & 3
        if i == 0:
            e(f"s_mov_b32 m0, s{sDK}")
            e("s_nop 0")
        if i == 4:
            e(f"s_mov_b32 m0, s{sDV}")
            e("s_nop 0")
        if i < 4:
            e(f"buffer_load_dwordx4 v{vdK + jj}, s[8:11], s{sKoff} offen offset:{jj * 1024} lds")
        else:
            e(f"buffer_load_dwordx4 v{vdV + jj}, s[12:15], s{sVoff} offen offset:{jj * 1024} lds")

    def dma_advance():
        e(f"s_add_u32 s{sKoff}, s{sKoff}, 32768")
        e(f"s_add_u32 s{sVoff}, s{sVoff}, 32768")
        e(f"s_xor_b32 s{sStage}, s{sStage}, 32768")
        e(f"s_add_u32 s{sVst}, s{sVst}, 32768")
        e(f"s_cmp_eq_u32 s{sVst}, 98304")
        e(f"s_cselect_b32 s{sVst}, 0, s{sVst}")

    def dma():
        dma_setup()
        for i in range(8):
            dma_piece(i)
        dma_advance()

    pcnt = [0]

    def cond_piece(i):
        pcnt[0] += 1
        lab = f"at_np{pcnt[0]}"
        e(f"s_cmp_eq_u32 s{sD}, 0")
        e(f"s_cbranch_scc1 {lab}")
        dma_piece(i)
        if i == 7:
            dma_advance()
        e.label(lab)

    def top(tag):
        e("s_waitcnt vmcnt(0)")
        e("s_barrier")
        e(f"s_cmp_lg_u32 s{sIT}, s{sQB}")
        e(f"s_cselect_b32 s{sD}, 1, 0")
        dma_setup()

    def kreads(t):
        F = vF0 if t == 0 else vF1
        for kk in range(8):
            e(f"ds_read_b128 v[{F + 4 * kk}:{F + 4 * kk + 3}], v{vaK + kk} offset:{t * 8192}")

    def qk_mfma(t, pieces=()):
        F = vF0 if t == 0 else vF1
        d = vS + 16 * t
        pieces = list(pieces)
        for kk in range(8):
            c = "0" if kk == 0 else f"v[{d}:{d + 15}]"
            e(f"v_mfma_f32_32x32x16_bf16 v[{d}:{d + 15}], v[{F + 4 * kk}:{F + 4 * kk + 3}], v[{vQ + 4 * kk}:{vQ + 4 * kk + 3}], {c}")
            if pieces and kk & 1:
                cond_piece(pieces.pop(0))

    def k_adv():
        for i in range(8):
            e(f"v_xor_b32 v{vaK + i}, 0x8000, v{vaK + i}")
        e(f"s_xor_b32 s{sKrd}, s{sKrd}, 32768")

    def vreads():
        for dt in range(4):
            F = (vF0 if dt < 2 else vF1) + 16 * (dt & 1)
            for kk in range(4):
                e(f"ds_read_b128 v[{F + 4 * kk}:{F + 4 * kk + 3}], v{vaV + kk} offset:{dt * 8192}")
        e(f"s_add_u32 s{sT}, s{sVrd}, 32768")
        e(f"s_cmp_eq_u32 s{sT}, 98304")
        e(f"s_cselect_b32 s{sT}, 0, s{sT}")
        e(f"s_sub_u32 s{sT + 1}, s{sT}, s{sVrd}")
        e(f"s_mov_b32 s{sVrd}, s{sT}")
        for i in range(4):
            e(f"v_add_u32 v{vaV + i}, s{sT + 1}, v{vaV + i}")

    def pv_mfma(dts, pieces=()):
        pieces = list(pieces)
        for dt in dts:
            F = (vF0 if dt < 2 else vF1) + 16 * (dt & 1)
            d = vO + 16 * dt
            for kk in range(4):
                e(f"v_mfma_f32_32x32x16_bf16 v[{d}:{d + 15}], v[{F + 4 * kk}:{F + 4 * kk + 3}], v[{vP + 4 * kk}:{vP + 4 * kk + 3}], v[{d}:{d + 15}]")
                if pieces and kk & 1:
                    cond_piece(pieces.pop(0))

    def mask():
        e(f"v_mov_b32 v{vx0}, 0xf149f2ca")
        for t in range(2):
            for r in range(16):
                cst = t * 32 + (r & 3) + 8 * (r >> 2)
                e(f"v_cmp_gt_i32 vcc, {cst}, v{vmask}")
                e("s_nop 1")
                e(f"v_cndmask_b32 v{vS + 16 * t + r}, v{vS + 16 * t + r}, v{vx0}, vcc")

    def softmax(tag, with_dma=False):
        e("s_nop 0" if "noprio" in XP else ("s_setprio 0" if "invprio" in XP else "s_setprio 1"))
        e(f"v_max3_f32 v{vx0}, v{vS}, v{vS + 1}, v{vS + 2}")
        for i in range(3, 31, 2):
            e(f"v_max3_f32 v{vx0}, v{vx0}, v{vS + i}, v{vS + i + 1}")
        e(f"v_max_f32 v{vx0}, v{vx0}, v{vS + 31}")
        e(f"v_mov_b32 v{vx1}, v{vx0}")
        e("s_nop 1")
        e(f"v_permlane32_swap_b32 v{vx0}, v{vx1}")
        e("s_nop 1")
        e(f"v_max3_f32 v{vx0}, v{vx0}, v{vx1}, v{vm}")
        e(f"v_sub_f32 v{valpha}, v{vm}, v{vx0}")
        e(f"v_mul_f32 v{valpha}, s{sC}, v{valpha}")
        e(f"v_cmp_gt_f32 vcc, -8.0, v{valpha}")
        e("s_nop 4")
        e(f"s_cbranch_vccz {tag}_norescale")
        e(f"v_exp_f32 v{valpha}, v{valpha}")
        e(f"v_mov_b32 v{vm}, v{vx0}")
        e(f"v_mul_f32 v{vl}, v{vl}, v{valpha}")
        for i in range(64):
            e(f"v_mul_f32 v{vO + i}, v{vO + i}, v{valpha}")
        e.label(f"{tag}_norescale")
        e(f"v_mul_f32 v{vx0}, s{sC}, v{vm}")
        e(f"v_sub_f32 v{vx0}, 0, v{vx0}")
        e(f"v_mov_b32 v{vx1}, v{vx0}")
        for i in range(16):
            r = vS + 2 * i
            e(f"v_pk_fma_f32 v[{r}:{r + 1}], v[{r}:{r + 1}], v[{vcc2}:{vcc2 + 1}], v[{vx0}:{vx1}]")
            e(f"v_exp_f32 v{r}, v{r}")
            e(f"v_exp_f32 v{r + 1}, v{r + 1}")
        vreads()
        e(f"v_pk_add_f32 v[{vx0}:{vx1}], v[{vS}:{vS + 1}], v[{vS + 2}:{vS + 3}]")
        for i in range(2, 16):
            e(f"v_pk_add_f32 v[{vx0}:{vx1}], v[{vx0}:{vx1}], v[{vS + 2 * i}:{vS + 2 * i + 1}]")
        e(f"v_add_f32 v{vl}, v{vl}, v{vx0}")
        e(f"v_add_f32 v{vl}, v{vl}, v{vx1}")
        for i in range(16):
            e(f"v_cvt_pk_bf16_f32 v{vP + i}, v{vS + 2 * i}, v{vS + 2 * i + 1}")
        e("s_nop 0" if "noprio" in XP else ("s_setprio 1" if "invprio" in XP else "s_setprio 0"))

    def pv_qk(with_pv, with_dma):
        pc = list(range(8)) if with_dma else []
        if with_pv:
            e("s_waitcnt lgkmcnt(0)")
            e("s_nop 1")
            pv_mfma((0, 1), pc[0:4])
            kreads(0)
            pv_mfma((2, 3), pc[4:8])
            kreads(1)
            e("s_waitcnt lgkmcnt(8)")
            qk_mfma(0)
            e("s_waitcnt lgkmcnt(0)")
            qk_mfma(1)
        else:
            kreads(0)
            kreads(1)
            e("s_waitcnt lgkmcnt(8)")
            qk_mfma(0, pc[0:4])
            e("s_waitcnt lgkmcnt(0)")
            qk_mfma(1, pc[4:8])
        k_adv()

    def pv_only():
        e("s_waitcnt lgkmcnt(0)")
        e("s_nop 1")
        pv_mfma((0, 1, 2, 3))

    dma()
    e(f"s_cmp_eq_u32 s{sG}, 1")
    e("s_cbranch_scc1 at1_loop")
    e.label("at0_loop")
    stamp()
    top("at0")
    stamp()
    e(f"s_cmp_eq_u32 s{sIT}, 0")
    e("s_cbranch_scc1 at0_first")
    pv_qk(True, True)
    e("s_branch at0_sm")
    e.label("at0_first")
    pv_qk(False, True)
    e.label("at0_sm")
    stamp()
    e("s_nop 15")
    e(f"s_cmp_lg_u32 s{sIT}, s{sQB}")
    e("s_cbranch_scc1 at0_nomask")
    mask()
    e.label("at0_nomask")
    softmax("at0")
    stamp()
    if 'stamp' in XP:
        e("s_waitcnt lgkmcnt(0)")
        e(f"s_cmp_eq_u32 s{sIT}, 5")
        e("s_cbranch_scc0 at0_nost")
        e("s_cmp_eq_u32 s2, 0")
        e("s_cbranch_scc0 at0_nost")
        e(f"s_cmp_eq_u32 s{sW}, 0")
        e("s_cbranch_scc0 at0_nost")
        e(f"v_mov_b32 v{vx0}, 0")
        for i in range(6):
            e(f"v_mov_b32 v{vx1}, s{64 + 2 * i}")
            e(f"global_store_dword v{vx0}, v{vx1}, s[60:61] offset:{4 * i}")
            e("s_nop 1")
        e.label("at0_nost")
    e(f"s_add_u32 s{sIT}, s{sIT}, 1")
    e(f"s_cmp_le_u32 s{sIT}, s{sQB}")
    e("s_cbranch_scc1 at0_loop")
    pv_only()
    e("s_branch at_done")
    e.label("at1_loop")
    nst[0] = 0
    stamp()
    top("at1")
    stamp()
    e(f"s_cmp_eq_u32 s{sIT}, 0")
    e("s_cbranch_scc1 at1_first")
    softmax("at1", with_dma=False)
    stamp()
    e(f"s_cmp_lg_u32 s{sIT}, s{sQB}")
    e("s_cbranch_scc1 at1_doqk")
    e(f"s_cmp_lt_u32 s{sQS}, 2")
    e("s_cbranch_scc0 at1_doqk")
    pv_only()
    e("s_branch at_done")
    e.label("at1_doqk")
    pv_qk(True, True)
    e("s_branch at1_next")
    e.label("at1_first")
    for i in range(8):
        cond_piece(i)
    e(f"s_cmp_lg_u32 s{sIT}, s{sQB}")
    e("s_cbranch_scc1 at1_doqk0")
    e(f"s_cmp_lt_u32 s{sQS}, 2")
    e("s_cbranch_scc1 at_done")
    e.label("at1_doqk0")
    pv_qk(False, False)
    e.label("at1_next")
    stamp()
    if 'stamp' in XP:
        e("s_waitcnt lgkmcnt(0)")
        e(f"s_cmp_eq_u32 s{sIT}, 5")
        e("s_cbranch_scc0 at1_nost")
        e("s_cmp_eq_u32 s2, 0")
        e("s_cbranch_scc0 at1_nost")
        e(f"s_cmp_eq_u32 s{sW}, 4")
        e("s_cbranch_scc0 at1_nost")
        e(f"v_mov_b32 v{vx0}, 0")
        for i in range(6):
            e(f"v_mov_b32 v{vx1}, s{64 + 2 * i}")
            e(f"global_store_dword v{vx0}, v{vx1}, s[60:61] offset:{24 + 4 * i}")
            e("s_nop 1")
        e.label("at1_nost")
    e(f"s_add_u32 s{sIT}, s{sIT}, 1")
    e(f"s_cmp_le_u32 s{sIT}, s{sQB}")
    e("s_cbranch_scc1 at1_loop")
    e("s_nop 15")
    mask()
    softmax("at1b")
    pv_only()
    e.label("at_done")
    e(f"s_sub_u32 s{sT}, 0, s{sKrd}")
    for i in range(8):
        e(f"v_add_u32 v{vaK + i}, s{sT}, v{vaK + i}")
    e(f"s_sub_u32 s{sT}, 0, s{sVrd}")
    for i in range(4):
        e(f"v_add_u32 v{vaV + i}, s{sT}, v{vaV + i}")
    e("s_nop 15")
    e("s_nop 7")
    e(f"v_mov_b32 v{vx1}, v{vl}")
    e("s_nop 1")
    e(f"v_permlane32_swap_b32 v{vl}, v{vx1}")
    e("s_nop 1")
    e(f"v_add_f32 v{vl}, v{vl}, v{vx1}")
    e("s_barrier")
    e(f"s_lshl_b32 s{sT}, s{sQS}, 14")
    e(f"v_lshlrev_b32 v{vx0}, 4, v{vL}")
    e(f"v_add_u32 v{vx0}, s{sT}, v{vx0}")
    e(f"s_lshl_b32 s{sT}, s{sQS}, 9")
    e(f"v_lshlrev_b32 v{vx1}, 3, v{vL}")
    e(f"v_add_u32 v{vx1}, s{sT}, v{vx1}")
    e(f"v_add_u32 v{vx1}, 65536, v{vx1}")
    e(f"s_cmp_eq_u32 s{sG}, 0")
    e("s_cbranch_scc1 at_merge0")
    for i in range(16):
        e(f"ds_write_b128 v{vx0}, v[{vO + 4 * i}:{vO + 4 * i + 3}] offset:{i * 1024}")
    e(f"ds_write_b64 v{vx1}, v[{vm}:{vl}]")
    e("s_waitcnt lgkmcnt(0)")
    e("s_barrier")
    e("s_branch at_mergedone")
    e.label("at_merge0")
    e("s_barrier")
    e(f"ds_read_b64 v[{vS}:{vS + 1}], v{vx1}")
    for i in range(16):
        e(f"ds_read_b128 v[{vF0 + 4 * i}:{vF0 + 4 * i + 3}], v{vx0} offset:{i * 1024}")
    e("s_waitcnt lgkmcnt(0)")
    e(f"v_max_f32 v{vt0}, v{vm}, v{vS}")
    e(f"v_sub_f32 v{vt1}, v{vm}, v{vt0}")
    e(f"v_sub_f32 v{vt2}, v{vS}, v{vt0}")
    e(f"v_mul_f32 v{vt1}, s{sC}, v{vt1}")
    e(f"v_mul_f32 v{vt2}, s{sC}, v{vt2}")
    e(f"v_exp_f32 v{vt1}, v{vt1}")
    e(f"v_exp_f32 v{vt2}, v{vt2}")
    e("s_nop 0")
    e(f"v_mul_f32 v{vl}, v{vl}, v{vt1}")
    e(f"v_fmac_f32 v{vl}, v{vS + 1}, v{vt2}")
    e(f"v_rcp_f32 v{vl}, v{vl}")
    e("s_nop 0")
    e(f"v_mul_f32 v{vt1}, v{vt1}, v{vl}")
    e(f"v_mul_f32 v{vt2}, v{vt2}, v{vl}")
    for i in range(64):
        e(f"v_mul_f32 v{vO + i}, v{vO + i}, v{vt1}")
        e(f"v_fmac_f32 v{vO + i}, v{vF0 + i}, v{vt2}")
    for i in range(32):
        e(f"v_cvt_pk_bf16_f32 v{vS + i}, v{vO + 2 * i}, v{vO + 2 * i + 1}")
    for i in range(8):
        e(f"buffer_store_dwordx4 v[{vS + 4 * i}:{vS + 4 * i + 3}], v{vst}, s[16:19], 0 offen offset:{i * 32}")
    e.label("at_mergedone")
    e("s_barrier")
    e(f"s_add_u32 s{sPass}, s{sPass}, 1")
    e(f"s_mov_b32 s{sQB}, s{sJ}")
    e(f"s_cmp_eq_u32 s{sPass}, 1")
    e("s_cbranch_scc1 at_qblock")
    if 'wgt' in XP:
        e("s_memrealtime s[92:93]")
        e("s_waitcnt lgkmcnt(0)")
        e("s_lshl_b32 s3, s2, 3")
        e("s_add_u32 s3, s3, 0x6f00000")
        e("v_mov_b32 v2, s3")
        e("v_mov_b32 v4, s90")
        e("v_mov_b32 v5, s92")
        e("s_nop 1")
        e("global_store_dwordx2 v2, v[4:5], s[44:45]")
    e.label("at_end")
    e("s_endpgm")
    return name, VEND, 256, 163840


WS_PART = 0x6000000


def gen_final(e):
    name = "final_kernel"
    kernel_header(e, name)
    NT = 240
    e(f"s_cmp_ge_u32 s2, {NT}")
    e("s_cbranch_scc1 fi_end")
    e(f"s_load_dwordx2 s[34:35], s[0:1], {KA['wo']}")
    e(f"s_load_dwordx2 s[36:37], s[0:1], {KA['w2']}")
    e(f"s_load_dwordx2 s[44:45], s[0:1], {KA['ws']}")
    e("s_waitcnt lgkmcnt(0)")
    g = Gemm(e, "fi", 128, 128, 2, 4, NS=4)
    make_srd(e, 4, 34, 4096 * 1280)
    make_srd(e, 8, 44, 2048 * 8192, WS_CTX)
    make_srd(e, 12, 44, 3 * 2048 * 2560, WS_PART)
    make_srd(e, 56, 44, 640 * 3456, WS_U)
    make_srd(e, 60, 36, 1728 * 4096)
    e("s_and_b32 s47, s2, 7")
    e("s_lshr_b32 s52, s2, 3")
    e("s_lshl_b32 s47, s47, 1")
    e("s_and_b32 s46, s52, 1")
    e("s_add_u32 s47, s47, s46")
    e("s_lshr_b32 s52, s52, 1")
    e("s_mul_i32 s53, s52, 205")
    e("s_lshr_b32 s53, s53, 10")
    e("s_mul_i32 s46, s53, 5")
    e("s_sub_u32 s46, s52, s46")
    e("s_lshl_b32 s46, s46, 7")
    e("s_lshl_b32 s47, s47, 7")
    g.setup_common()
    g.zero_acc()
    e("s_cmp_eq_u32 s53, 2")
    e("s_cbranch_scc1 fi_seg2")
    e("s_mul_i32 s48, s53, %d" % (2048 * 1280))
    e("s_lshl_b32 s24, s46, 1")
    e("s_add_u32 s48, s48, s24")
    e("s_lshl_b32 s49, s47, 13")
    e("s_lshl_b32 s24, s53, 12")
    e("s_add_u32 s49, s49, s24")
    g.run_seg(Op('t', 4, 1280, 48, perm=True), Op('k', 8, 8192, 49), 32, True)
    e("s_branch fi_epi")
    e.label("fi_seg2")
    e("s_mul_i32 s50, s46, 3456")
    e("s_lshl_b32 s51, s47, 1")
    g.run_seg(Op('k', 56, 3456, 50), Op('t', 60, 4096, 51, perm=True), 27, True)
    e.label("fi_epi")
    va = g.v_t1
    L, t0, st = g.v_lane, g.v_t0, g.s_t
    e(f"s_mul_i32 s{st}, s{g.s_wb}, {g.TB * 32}")
    e(f"s_add_u32 s{st}, s{st}, s47")
    e(f"v_and_b32 v{t0}, 31, v{L}")
    e(f"v_add_u32 v{t0}, s{st}, v{t0}")
    e(f"s_movk_i32 s{st + 1}, 2560")
    e(f"v_mul_lo_u32 v{t0}, v{t0}, s{st + 1}")
    e(f"s_mul_i32 s{st}, s{g.s_wa}, {g.TA * 32}")
    e(f"s_add_u32 s{st}, s{st}, s46")
    e(f"s_lshl_b32 s{st}, s{st}, 2")
    e(f"s_mul_i32 s{st + 1}, s53, {2048 * 2560}")
    e(f"s_add_u32 s{st}, s{st}, s{st + 1}")
    e(f"v_add_u32 v{t0}, s{st}, v{t0}")
    e(f"v_lshrrev_b32 v{va}, 5, v{L}")
    e(f"v_lshl_add_u32 v{va}, v{va}, 4, v{t0}")
    e("s_nop 15")
    e("s_nop 7")
    for ta in range(g.TA):
        for tb in range(g.TB):
            d = g.v_acc + 16 * (ta * g.TB + tb)
            e(f"s_mov_b32 s24, {tb * 32 * 2560}")
            for q in range(4):
                e(f"buffer_store_dwordx4 v[{d + 4 * q}:{d + 4 * q + 3}], v{va}, s[12:15], s24 offen offset:{ta * 128 + q * 32}")
    e.label("fi_end")
    e("s_endpgm")
    return name, g.v_end, NT, g.lds


def gen_reduce(e):
    name = "reduce_kernel"
    kernel_header(e, name)
    NT = 640
    e(f"s_cmp_ge_u32 s2, {NT}")
    e("s_cbranch_scc1 rd_end")
    e(f"s_load_dwordx2 s[32:33], s[0:1], {KA['x']}")
    e(f"s_load_dwordx2 s[38:39], s[0:1], {KA['b2']}")
    e(f"s_load_dwordx2 s[40:41], s[0:1], {KA['out']}")
    e(f"s_load_dwordx2 s[44:45], s[0:1], {KA['ws']}")
    e("s_lshl_b32 s3, s2, 8")
    e("v_add_u32 v1, s3, v0")
    e("v_lshlrev_b32 v2, 4, v1")
    e("v_lshlrev_b32 v3, 5, v1")
    e("s_mov_b32 s4, 0x3333334")
    e("v_mul_hi_u32 v4, v1, s4")
    e("v_lshlrev_b32 v4, 1, v4")
    e("s_waitcnt lgkmcnt(0)")
    make_srd(e, 8, 32, 2048 * 1280)
    make_srd(e, 12, 40, 2048 * 1280)
    make_srd(e, 16, 44, 3 * 2048 * 2560, WS_PART)
    make_srd(e, 20, 38, 4096)
    e("buffer_load_dwordx4 v[8:11], v2, s[8:11], 0 offen")
    e("buffer_load_ushort v5, v4, s[20:23], 0 offen")
    for sp in range(3):
        e(f"s_mov_b32 s24, {sp * 2048 * 2560}")
        e(f"buffer_load_dwordx4 v[{12 + 8 * sp}:{15 + 8 * sp}], v3, s[16:19], s24 offen")
        e(f"buffer_load_dwordx4 v[{16 + 8 * sp}:{19 + 8 * sp}], v3, s[16:19], s24 offen offset:16")
    e("s_mov_b32 s25, 0xffff0000")
    e("s_waitcnt vmcnt(0)")
    e("v_lshlrev_b32 v5, 16, v5")
    for i in range(8):
        e(f"v_add_f32 v{12 + i}, v{12 + i}, v{20 + i}")
        e(f"v_add_f32 v{12 + i}, v{12 + i}, v{28 + i}")
        e(f"v_add_f32 v{12 + i}, v{12 + i}, v5")
    for i in range(4):
        e(f"v_lshlrev_b32 v6, 16, v{8 + i}")
        e(f"v_and_b32 v7, s25, v{8 + i}")
        e(f"v_add_f32 v6, v6, v{12 + 2 * i}")
        e(f"v_add_f32 v7, v7, v{13 + 2 * i}")
        e(f"v_cvt_pk_bf16_f32 v{8 + i}, v6, v7")
    e("buffer_store_dwordx4 v[8:11], v2, s[12:15], 0 offen")
    e.label("rd_end")
    e("s_endpgm")
    return name, 40, NT, 0


def main():
    e = E()
    launches = []
    body = E()
    descs = E()
    n, v = gen_ln(body)
    kernel_desc(descs, n, v)
    launches.append((n, 512, 256, 0))
    n, v, g, lds = gen_p1(body)
    kernel_desc(descs, n, v)
    launches.append((n, g, 512, lds))
    n, v, g, lds = gen_attn(body)
    kernel_desc(descs, n, v)
    launches.append((n, g, 512, lds))
    n, v, g, lds = gen_final(body)
    kernel_desc(descs, n, v)
    launches.append((n, g, 512, lds))
    n, v, g, lds = gen_reduce(body)
    kernel_desc(descs, n, v)
    launches.append((n, g, 256, lds))
    for (n, g, b, lds) in launches:
        e.raw(f"; @launch kernel={n} grid=({g},1,1) block=({b},1,1) lds={lds}")
    e.raw('.amdgcn_target "amdgcn-amd-amdhsa--gfx950"')
    out = e.text() + body.text() + descs.text()
    path = sys.argv[1] if len(sys.argv) > 1 else f"cdna_kernels/{KN}.s"
    open(path, "w").write(out)
    print("wrote", path, len(out))


if __name__ == "__main__":
    main()
```

```python
import sys
import math
import os
XP = os.environ.get('XP', '')

KN = "parallel_sum__compressed_kv_cla__mixer_token_mlp__prompt"

WS_XN = 0x0000000
WS_H = 0x0280000
WS_Q = 0x1000000
WS_K = 0x2000000
WS_VT = 0x3000000
WS_U = 0x4000000
WS_CTX = 0x5000000

KA = dict(x=0, ckv=8, wq=16, wuk=24, wuv=32, wo=40, bx=48, w1=56, b1=64, w2=72, b2=80, out=88, dbg=96, ws=104)


class E:
    def __init__(self):
        self.lines = []

    def __call__(self, s):
        self.lines.append("    " + s)

    def label(self, l):
        self.lines.append(l + ":")

    def raw(self, s):
        self.lines.append(s)

    def text(self):
        return "\n".join(self.lines) + "\n"


def vr(a, n=1):
    return f"v{a}" if n == 1 else f"v[{a}:{a + n - 1}]"


def sr(a, n=1):
    return f"s{a}" if n == 1 else f"s[{a}:{a + n - 1}]"


def kernel_header(e, name):
    e.raw(".text")
    e.raw(f".globl {name}")
    e.raw(".p2align 8")
    e.raw(f".type {name},@function")
    e.label(name)


def kernel_desc(e, name, vgpr, sgpr=96):
    acc = (vgpr + 3) // 4 * 4
    e.raw('.section .rodata,"a"')
    e.raw(".p2align 6")
    e.raw(f".amdhsa_kernel {name}")
    e.raw(f"  .amdhsa_next_free_vgpr {vgpr}")
    e.raw(f"  .amdhsa_next_free_sgpr {sgpr}")
    e.raw(f"  .amdhsa_accum_offset {acc}")
    e.raw("  .amdhsa_group_segment_fixed_size 0")
    e.raw("  .amdhsa_kernarg_size 112")
    e.raw("  .amdhsa_user_sgpr_count 2")
    e.raw("  .amdhsa_user_sgpr_kernarg_segment_ptr 1")
    e.raw("  .amdhsa_system_sgpr_workgroup_id_x 1")
    e.raw(".end_amdhsa_kernel")


def make_srd(e, d, ptr, nbytes, off=0):
    if off:
        e(f"s_add_u32 s{d}, s{ptr}, 0x{off:x}")
        e(f"s_addc_u32 s{d + 1}, s{ptr + 1}, 0")
    else:
        e(f"s_mov_b32 s{d}, s{ptr}")
        e(f"s_mov_b32 s{d + 1}, s{ptr + 1}")
    e(f"s_mov_b32 s{d + 2}, 0x{nbytes:x}")
    e(f"s_mov_b32 s{d + 3}, 0x00020000")


def wave_sum(e, v, t):
    for off in (0x041F, 0x081F, 0x101F, 0x201F, 0x401F):
        e(f"ds_swizzle_b32 v{t}, v{v} offset:0x{off:04X}")
        e("s_waitcnt lgkmcnt(0)")
        e(f"v_add_f32 v{v}, v{v}, v{t}")
    e(f"v_mov_b32 v{t}, v{v}")
    e("s_nop 1")
    e(f"v_permlane32_swap_b32 v{t}, v{v}")
    e("s_nop 1")
    e(f"v_add_f32 v{v}, v{v}, v{t}")


def gen_ln(e):
    name = "ln_kernel"
    kernel_header(e, name)
    e("s_cmp_ge_u32 s2, 512")
    e("s_cbranch_scc1 ln_end")
    e(f"s_load_dwordx2 s[4:5], s[0:1], {KA['x']}")
    e(f"s_load_dwordx2 s[6:7], s[0:1], {KA['ws']}")
    e("v_lshrrev_b32 v1, 6, v0")
    e("v_and_b32 v2, 63, v0")
    e("s_lshl_b32 s3, s2, 2")
    e("v_add_u32 v1, s3, v1")
    e("s_movk_i32 s16, 1280")
    e("v_mul_lo_u32 v1, v1, s16")
    e("v_lshl_add_u32 v1, v2, 2, v1")
    e("s_waitcnt lgkmcnt(0)")
    make_srd(e, 8, 4, 2048 * 1280)
    make_srd(e, 12, 6, 2 * 2048 * 1280)
    for i in range(5):
        e(f"buffer_load_dword v{4 + i}, v1, s[8:11], 0 offen offset:{i * 256}")
    e("s_waitcnt vmcnt(0)")
    e("s_mov_b32 s17, 0x3acccccd")
    e("s_mov_b32 s18, 0x3727c5ac")
    e("s_mov_b32 s19, 0xffff0000")

    def ln_pass(dst_off):
        for i in range(5):
            e(f"v_lshlrev_b32 v{10 + 2 * i}, 16, v{4 + i}")
            e(f"v_and_b32 v{11 + 2 * i}, s19, v{4 + i}")
        e("v_add_f32 v20, v10, v11")
        for i in range(2, 10):
            e(f"v_add_f32 v20, v20, v{10 + i}")
        wave_sum(e, 20, 21)
        e("v_mul_f32 v20, s17, v20")
        for i in range(10):
            e(f"v_sub_f32 v{10 + i}, v{10 + i}, v20")
        e("v_mul_f32 v22, v10, v10")
        for i in range(1, 10):
            e(f"v_fmac_f32 v22, v{10 + i}, v{10 + i}")
        wave_sum(e, 22, 21)
        e("v_mov_b32 v23, s18")
        e("v_fmac_f32 v23, s17, v22")
        e("v_rsq_f32 v23, v23")
        e("s_nop 1")
        for i in range(10):
            e(f"v_mul_f32 v{10 + i}, v{10 + i}, v23")
        for i in range(5):
            e(f"v_cvt_pk_bf16_f32 v{4 + i}, v{10 + 2 * i}, v{11 + 2 * i}")
        e("s_mov_b32 s20, 0x%x" % dst_off)
        for i in range(5):
            e(f"buffer_store_dword v{4 + i}, v1, s[12:15], s20 offen offset:{i * 256}")

    ln_pass(WS_XN)
    e("s_nop 4")
    ln_pass(WS_H)
    e.label("ln_end")
    e("s_endpgm")
    return name, 32


class Op:
    def __init__(self, mode, srd, ld, base, perm=False):
        self.mode = mode
        self.srd = srd
        self.ld = ld
        self.base = base
        self.perm = perm


class Gemm:
    def __init__(self, e, tag, BA, BB, WA, WB, vbase=2, NS=2):
        self.e = e
        self.tag = tag
        self.BA, self.BB, self.WA, self.WB = BA, BB, WA, WB
        self.NW = WA * WB
        self.TA = BA // WA // 32
        self.TB = BB // WB // 32
        self.SA = BA * 128
        self.SB = BB * 128
        st = self.SA + self.SB
        self.NS = NS
        self.stage = st
        self.lds = st * NS
        self.nA = self.SA // 1024 // self.NW
        self.nB = self.SB // 1024 // self.NW
        assert self.nA * 1024 * self.NW == self.SA and self.nB * 1024 * self.NW == self.SB
        v = vbase
        self.v_lane = v; v += 1
        self.v_t0 = v; v += 1
        self.v_t1 = v; v += 1
        self.v_t2 = v; v += 1
        self.v_dmaA = v; v += self.nA
        self.v_dmaB = v; v += self.nB
        self.v_adrA = v; v += 4
        self.v_adrB = v; v += 4
        v = (v + 3) // 4 * 4
        self.v_fA = v; v += 2 * 4 * self.TA
        self.v_fB = v; v += 2 * 4 * self.TB
        self.v_acc = v; v += 16 * self.TA * self.TB
        self.v_end = v
        self.s_wave = 20
        self.s_cnt = 21
        self.s_offA = 22
        self.s_offB = 23
        self.s_t = 24
        self.s_wa = 28
        self.s_wb = 29
        self.s_stage = 30
        self.s_rd = 31

    def setup_common(self):
        e = self.e
        e(f"v_and_b32 v{self.v_lane}, 63, v0")
        e(f"v_lshrrev_b32 v{self.v_t0}, 6, v0")
        e("s_nop 0")
        e(f"v_readfirstlane_b32 s{self.s_wave}, v{self.v_t0}")
        e("s_nop 3")
        lw = int(math.log2(self.WA))
        e(f"s_and_b32 s{self.s_wa}, s{self.s_wave}, {self.WA - 1}")
        e(f"s_lshr_b32 s{self.s_wb}, s{self.s_wave}, {lw}")

    def setup_op(self, op, R, n, v_dma, v_adr, s_wcoord, T, lds_base):
        e = self.e
        L, t0, t1, t2 = self.v_lane, self.v_t0, self.v_t1, self.v_t2
        st = self.s_t
        if op.mode == 'k':
            for jj in range(n):
                e(f"s_mul_i32 s{st}, s{self.s_wave}, {n * 8}")
                e(f"s_add_u32 s{st}, s{st}, {jj * 8}")
                e(f"v_lshrrev_b32 v{t0}, 3, v{L}")
                e(f"v_add_u32 v{t0}, s{st}, v{t0}")
                e(f"v_bfe_u32 v{t1}, v{t0}, 1, 3")
                e(f"v_and_b32 v{t2}, 7, v{L}")
                e(f"v_xor_b32 v{t1}, v{t1}, v{t2}")
                e(f"s_mov_b32 s{st + 1}, {op.ld}")
                e(f"v_mul_lo_u32 v{t0}, v{t0}, s{st + 1}")
                e(f"v_lshl_add_u32 v{v_dma + jj}, v{t1}, 4, v{t0}")
            e(f"s_mul_i32 s{st}, s{s_wcoord}, {T * 32}")
            e(f"v_and_b32 v{t0}, 31, v{L}")
            e(f"v_add_u32 v{t0}, s{st}, v{t0}")
            e(f"v_bfe_u32 v{t1}, v{t0}, 1, 3")
            e(f"v_lshrrev_b32 v{t2}, 5, v{L}")
            e(f"v_lshlrev_b32 v{t0}, 7, v{t0}")
            for kk in range(4):
                e(f"v_add_u32 v{v_adr + kk}, {2 * kk}, v{t2}")
                e(f"v_xor_b32 v{v_adr + kk}, v{v_adr + kk}, v{t1}")
                e(f"v_lshl_add_u32 v{v_adr + kk}, v{v_adr + kk}, 4, v{t0}")
                if lds_base:
                    e(f"v_add_u32 v{v_adr + kk}, {lds_base}, v{v_adr + kk}")
        else:
            rb = 2 * R
            lrb = int(math.log2(rb))
            for jj in range(n):
                e(f"s_mul_i32 s{st}, s{self.s_wave}, {n * 1024}")
                e(f"s_add_u32 s{st}, s{st}, {jj * 1024}")
                e(f"v_lshlrev_b32 v{t0}, 4, v{L}")
                e(f"v_add_u32 v{t0}, s{st}, v{t0}")
                e(f"v_lshrrev_b32 v{t1}, {lrb}, v{t0}")
                e(f"v_and_b32 v{t0}, {rb - 1}, v{t0}")
                if rb >= 256:
                    e(f"v_and_b32 v{t2}, 3, v{t1}")
                else:
                    e(f"v_bfe_u32 v{t2}, v{t1}, 1, 1")
                e(f"v_lshlrev_b32 v{t2}, 6, v{t2}")
                e(f"v_xor_b32 v{t0}, v{t0}, v{t2}")
                e(f"s_mov_b32 s{st + 1}, {op.ld}")
                e(f"v_mul_lo_u32 v{t1}, v{t1}, s{st + 1}")
                e(f"v_add_u32 v{v_dma + jj}, v{t0}, v{t1}")
            e(f"v_lshrrev_b32 v{t0}, 5, v{L}")
            e(f"v_lshlrev_b32 v{t0}, {2 if op.perm else 3}, v{t0}")
            e(f"v_bfe_u32 v{t1}, v{L}, 2, 2")
            e(f"v_add_u32 v{t0}, v{t0}, v{t1}")
            e(f"v_lshlrev_b32 v{t0}, {lrb}, v{t0}")
            e(f"v_bfe_u32 v{t2}, v{L}, 4, 1")
            e(f"v_lshlrev_b32 v{t2}, 5, v{t2}")
            e(f"v_add_u32 v{t0}, v{t0}, v{t2}")
            e(f"v_and_b32 v{t2}, 3, v{L}")
            e(f"v_lshl_add_u32 v{t0}, v{t2}, 3, v{t0}")
            if rb < 256:
                e(f"v_bfe_u32 v{t1}, v{L}, 3, 1")
            for t in range(T):
                e(f"s_mul_i32 s{st}, s{s_wcoord}, {T}")
                e(f"s_add_u32 s{st}, s{st}, {t}")
                e(f"v_xor_b32 v{t2}, s{st}, v{t1}")
                e(f"v_lshl_add_u32 v{v_adr + t}, v{t2}, 6, v{t0}")
                if lds_base:
                    e(f"v_add_u32 v{v_adr + t}, {lds_base}, v{v_adr + t}")

    def n_adr(self, op, T):
        return 4 if op.mode == 'k' else T

    def issue_dma(self, op, n, v_dma, lds_base, s_off):
        e = self.e
        st = self.s_t
        for jj in range(n):
            e(f"s_mul_i32 s{st}, s{self.s_wave}, {n * 1024}")
            e(f"s_add_u32 s{st}, s{st}, s{self.s_stage}")
            e(f"s_add_u32 m0, s{st}, {lds_base + jj * 1024}")
            e("s_nop 0")
            e(f"buffer_load_dwordx4 v{v_dma + jj}, s[{op.srd}:{op.srd + 3}], s{s_off} offen lds")

    def read_frags(self, op, R, T, v_adr, v_f, kk):
        e = self.e
        cnt = 0
        if op.mode == 'k':
            for t in range(T):
                e(f"ds_read_b128 v[{v_f + 4 * t}:{v_f + 4 * t + 3}], v{v_adr + kk} offset:{t * 4096}")
                cnt += 1
        else:
            rb = 2 * R
            hstep = 8 if op.perm else 4
            for t in range(T):
                for half in range(2):
                    off = (kk * 16 + half * hstep) * rb
                    e(f"ds_read_b64_tr_b16 v[{v_f + 4 * t + 2 * half}:{v_f + 4 * t + 2 * half + 1}], v{v_adr + t} offset:{off}")
                    cnt += 1
        return cnt

    def zero_acc(self):
        for i in range(16 * self.TA * self.TB):
            self.e(f"v_mov_b32 v{self.v_acc + i}, 0")

    def run_seg(self, A, B, nk, first):
        e = self.e
        tag = self.tag
        NS = self.NS
        self.seg = getattr(self, "seg", 0) + 1
        lab = f"{tag}_s{self.seg}"
        self.setup_op(A, self.BA, self.nA, self.v_dmaA, self.v_adrA, self.s_wa, self.TA, 0)
        self.setup_op(B, self.BB, self.nB, self.v_dmaB, self.v_adrB, self.s_wb, self.TB, self.SA)
        stepA = 128 if A.mode == 'k' else 64 * A.ld
        stepB = 128 if B.mode == 'k' else 64 * B.ld
        nd = self.nA + self.nB
        assert nk >= NS
        e(f"s_mov_b32 s{self.s_offA}, s{A.base}")
        e(f"s_mov_b32 s{self.s_offB}, s{B.base}")
        e(f"s_mov_b32 s{self.s_stage}, 0")
        e(f"s_mov_b32 s{self.s_rd}, 0")
        if not first:
            e("s_barrier")

        st4 = self.s_t + 3

        def pieces():
            out = []

            def first():
                e(f"s_mul_i32 s{st4}, s{self.s_wave}, {self.nA * 1024}")
                e(f"s_add_u32 s{st4}, s{st4}, s{self.s_stage}")
            for jj in range(self.nA):
                def f(jj=jj):
                    if jj == 0:
                        first()
                    e(f"s_add_u32 m0, s{st4}, {jj * 1024}")
                    e("s_nop 0")
                    e(f"buffer_load_dwordx4 v{self.v_dmaA + jj}, s[{A.srd}:{A.srd + 3}], s{self.s_offA} offen lds")
                out.append(f)
            for jj in range(self.nB):
                def f(jj=jj):
                    if jj == 0:
                        e(f"s_mul_i32 s{st4}, s{self.s_wave}, {self.nB * 1024}")
                        e(f"s_add_u32 s{st4}, s{st4}, s{self.s_stage}")
                    e(f"s_add_u32 m0, s{st4}, {self.SA + jj * 1024}")
                    e("s_nop 0")
                    e(f"buffer_load_dwordx4 v{self.v_dmaB + jj}, s[{B.srd}:{B.srd + 3}], s{self.s_offB} offen lds")
                    if jj == self.nB - 1:
                        e(f"s_add_u32 s{self.s_offA}, s{self.s_offA}, {stepA}")
                        e(f"s_add_u32 s{self.s_offB}, s{self.s_offB}, {stepB}")
                        e(f"s_add_u32 s{self.s_stage}, s{self.s_stage}, {self.stage}")
                        e(f"s_cmp_eq_u32 s{self.s_stage}, {self.stage * NS}")
                        e(f"s_cselect_b32 s{self.s_stage}, 0, s{self.s_stage}")
                out.append(f)
            return out

        for i in range(NS - 1):
            for f in pieces():
                f()
        szA = 4 * self.TA
        szB = 4 * self.TB

        def reads(kk):
            buf = kk & 1
            c = self.read_frags(A, self.BA, self.TA, self.v_adrA, self.v_fA + buf * szA, kk)
            c += self.read_frags(B, self.BB, self.TB, self.v_adrB, self.v_fB + buf * szB, kk)
            return c

        early = NS >= 3

        def compute(pcs, last=False):
            pcs = list(pcs)
            nm = self.TA * self.TB
            per = -(-len(pcs) // 3) if pcs else 0
            gap = max(1, nm // max(per, 1))
            if not early:
                reads(0)
            for kk in range(4):
                nxt = reads(kk + 1) if kk < 3 else 0
                e(f"s_waitcnt lgkmcnt({nxt})")
                buf = kk & 1
                i = 0
                used = 0
                for ta in range(self.TA):
                    for tb in range(self.TB):
                        d = self.v_acc + 16 * (ta * self.TB + tb)
                        a = self.v_fA + buf * szA + 4 * ta
                        b = self.v_fB + buf * szB + 4 * tb
                        e(f"v_mfma_f32_32x32x16_bf16 v[{d}:{d + 15}], v[{a}:{a + 3}], v[{b}:{b + 3}], v[{d}:{d + 15}]")
                        i += 1
                        if pcs and used < per and (i % gap == 0):
                            pcs.pop(0)()
                            used += 1
                if kk == 2:
                    while pcs:
                        pcs.pop(0)()
            st = self.s_t
            e(f"s_add_u32 s{st}, s{self.s_rd}, {self.stage}")
            e(f"s_cmp_eq_u32 s{st}, {self.stage * NS}")
            e(f"s_cselect_b32 s{st}, 0, s{st}")
            e(f"s_sub_u32 s{st + 1}, s{st}, s{self.s_rd}")
            e(f"s_mov_b32 s{self.s_rd}, s{st}")
            for i in range(self.n_adr(A, self.TA)):
                e(f"v_add_u32 v{self.v_adrA + i}, s{st + 1}, v{self.v_adrA + i}")
            for i in range(self.n_adr(B, self.TB)):
                e(f"v_add_u32 v{self.v_adrB + i}, s{st + 1}, v{self.v_adrB + i}")
            if early and not last:
                reads(0)

        if early:
            e(f"s_waitcnt vmcnt({(NS - 2) * nd})")
            e("s_barrier")
            reads(0)
        lag = 1 if early else 0
        e(f"s_mov_b32 s{self.s_cnt}, {nk - (NS - 1)}")
        e.label(f"{lab}_loop")
        e(f"s_waitcnt vmcnt({(NS - 2 - lag) * nd})")
        e("s_barrier")
        compute(pieces())
        e(f"s_sub_u32 s{self.s_cnt}, s{self.s_cnt}, 1")
        e(f"s_cmp_lg_u32 s{self.s_cnt}, 0")
        e(f"s_cbranch_scc1 {lab}_loop")
        for i in range(NS - 1):
            e(f"s_waitcnt vmcnt({max(NS - 2 - i - lag, 0) * nd})")
            e("s_barrier")
            compute([], last=(i == NS - 2))

    def out_addr(self, v_dst, s_rowA0, s_colB0, ld_out):
        e = self.e
        L, t0, st = self.v_lane, self.v_t0, self.s_t
        e(f"s_mul_i32 s{st}, s{self.s_wb}, {self.TB * 32}")
        e(f"s_add_u32 s{st}, s{st}, s{s_colB0}")
        e(f"v_and_b32 v{t0}, 31, v{L}")
        e(f"v_add_u32 v{t0}, s{st}, v{t0}")
        e(f"s_mov_b32 s{st + 1}, {ld_out}")
        e(f"v_mul_lo_u32 v{t0}, v{t0}, s{st + 1}")
        e(f"s_mul_i32 s{st}, s{self.s_wa}, {self.TA * 32}")
        e(f"s_add_u32 s{st}, s{st}, s{s_rowA0}")
        e(f"s_lshl_b32 s{st}, s{st}, 1")
        e(f"v_add_u32 v{t0}, s{st}, v{t0}")
        e(f"v_lshrrev_b32 v{v_dst}, 5, v{L}")
        return t0

    def epi_tile(self, srd_out, s_base):
        e = self.e
        va, t0, L = self.v_t1, self.v_t0, self.v_lane
        e(f"v_and_b32 v{t0}, 31, v{L}")
        e(f"v_lshlrev_b32 v{t0}, 8, v{t0}")
        e(f"v_add_u32 v{t0}, s{s_base}, v{t0}")
        e(f"v_lshrrev_b32 v{va}, 5, v{L}")
        e(f"v_lshl_add_u32 v{va}, v{va}, 4, v{t0}")
        e("s_nop 15")
        e("s_nop 7")
        pk = self.v_fA
        nb = 0
        for tb in range(self.TB):
            e(f"s_mov_b32 s{self.s_t}, {tb * 8192}")
            for ta in range(self.TA):
                d = self.v_acc + 16 * (ta * self.TB + tb)
                p = pk + 8 * (nb & 1)
                nb += 1
                for i in range(8):
                    e(f"v_cvt_pk_bf16_f32 v{p + i}, v{d + 2 * i}, v{d + 2 * i + 1}")
                e(f"buffer_store_dwordx4 v[{p}:{p + 3}], v{va}, s[{srd_out}:{srd_out + 3}], s{self.s_t} offen offset:{ta * 64}")
                e(f"buffer_store_dwordx4 v[{p + 4}:{p + 7}], v{va}, s[{srd_out}:{srd_out + 3}], s{self.s_t} offen offset:{ta * 64 + 32}")
                e("s_nop 1")

    def epi_perm(self, srd_out, s_rowA0, s_colB0, ld_out):
        e = self.e
        va = self.v_t1
        t0 = self.out_addr(va, s_rowA0, s_colB0, ld_out)
        e(f"v_lshl_add_u32 v{va}, v{va}, 4, v{t0}")
        e("s_nop 15")
        e("s_nop 7")
        pk = self.v_fA
        nb = 0
        for ta in range(self.TA):
            for tb in range(self.TB):
                d = self.v_acc + 16 * (ta * self.TB + tb)
                p = pk + 8 * (nb & 1)
                nb += 1
                for i in range(8):
                    e(f"v_cvt_pk_bf16_f32 v{p + i}, v{d + 2 * i}, v{d + 2 * i + 1}")
                off = tb * 32 * ld_out + ta * 64
                assert off + 32 < 4096 or True
                if off + 32 < 4096:
                    e(f"buffer_store_dwordx4 v[{p}:{p + 3}], v{va}, s[{srd_out}:{srd_out + 3}], 0 offen offset:{off}")
                    e(f"buffer_store_dwordx4 v[{p + 4}:{p + 7}], v{va}, s[{srd_out}:{srd_out + 3}], 0 offen offset:{off + 32}")
                else:
                    e(f"s_mov_b32 s{self.s_t}, {tb * 32 * ld_out}")
                    e(f"buffer_store_dwordx4 v[{p}:{p + 3}], v{va}, s[{srd_out}:{srd_out + 3}], s{self.s_t} offen offset:{ta * 64}")
                    e(f"buffer_store_dwordx4 v[{p + 4}:{p + 7}], v{va}, s[{srd_out}:{srd_out + 3}], s{self.s_t} offen offset:{ta * 64 + 32}")
                e("s_nop 1")


P1_NU = 35
P1_NQ = 128


def gen_p1(e):
    name = "proj_kernel"
    kernel_header(e, name)
    ntot = P1_NU + 3 * P1_NQ
    e(f"s_cmp_ge_u32 s2, {ntot}")
    e("s_cbranch_scc1 p1_end")
    e(f"s_load_dwordx2 s[32:33], s[0:1], {KA['ckv']}")
    e(f"s_load_dwordx2 s[34:35], s[0:1], {KA['wq']}")
    e(f"s_load_dwordx2 s[36:37], s[0:1], {KA['wuk']}")
    e(f"s_load_dwordx2 s[38:39], s[0:1], {KA['wuv']}")
    e(f"s_load_dwordx2 s[40:41], s[0:1], {KA['w1']}")
    e(f"s_load_dwordx2 s[42:43], s[0:1], {KA['b1']}")
    e(f"s_load_dwordx2 s[44:45], s[0:1], {KA['ws']}")
    e("s_waitcnt lgkmcnt(0)")
    e(f"s_cmp_lt_u32 s2, {P1_NU}")
    e("s_cbranch_scc1 p1_u")
    e(f"s_cmp_lt_u32 s2, {P1_NU + P1_NQ}")
    e("s_cbranch_scc1 p1_q")
    e(f"s_cmp_lt_u32 s2, {P1_NU + 2 * P1_NQ}")
    e("s_cbranch_scc1 p1_k")
    e("s_branch p1_v")
    vmax = 0

    for tag, wptr, K, xsrc, xld, wsoff, id0 in (("p1_q", 34, 640, 'xn', 1280, WS_Q, P1_NU),
                                                 ("p1_k", 36, 512, 'ckv', 1024, WS_K, P1_NU + P1_NQ)):
        e.label(tag)
        g = Gemm(e, tag, 256, 256, 2, 4)
        vmax = max(vmax, g.v_end)
        make_srd(e, 4, wptr, K * 8192)
        if xsrc == 'xn':
            make_srd(e, 8, 44, 2048 * 1280, WS_XN)
        else:
            make_srd(e, 8, 32, 2048 * 1024)
        make_srd(e, 12, 44, 2048 * 8192, wsoff)
        e(f"s_sub_u32 s3, s2, {id0}")
        e("s_and_b32 s46, s3, 15")
        e("s_lshr_b32 s47, s3, 4")
        e("s_lshl_b32 s46, s46, 8")
        e("s_lshl_b32 s47, s47, 8")
        e("s_lshl_b32 s48, s46, 1")
        e(f"s_mul_i32 s49, s47, {xld}")
        g.setup_common()
        g.zero_acc()
        g.run_seg(Op('t', 4, 8192, 48), Op('k', 8, xld, 49), K // 64, True)
        e(f"s_lshr_b32 s50, s46, 7")
        e(f"s_add_u32 s50, s50, s{g.s_wa}")
        e("s_lshl_b32 s50, s50, 19")
        e(f"s_lshl_b32 s51, s{g.s_wb}, 6")
        e("s_add_u32 s51, s51, s47")
        e("s_lshl_b32 s51, s51, 8")
        e("s_add_u32 s50, s50, s51")
        g.epi_tile(12, 50)
        e("s_endpgm")

    e.label("p1_v")
    g = Gemm(e, "p1_v", 256, 256, 2, 4)
    vmax = max(vmax, g.v_end)
    make_srd(e, 4, 32, 2048 * 1024)
    make_srd(e, 8, 38, 512 * 8192)
    make_srd(e, 12, 44, 4096 * 4096, WS_VT)
    e(f"s_sub_u32 s3, s2, {P1_NU + 2 * P1_NQ}")
    e("s_and_b32 s46, s3, 7")
    e("s_lshr_b32 s47, s3, 3")
    e("s_lshl_b32 s46, s46, 8")
    e("s_lshl_b32 s47, s47, 8")
    e("s_mul_i32 s48, s46, 1024")
    e("s_lshl_b32 s49, s47, 1")
    g.setup_common()
    g.zero_acc()
    g.run_seg(Op('k', 4, 1024, 48), Op('t', 8, 8192, 49), 8, True)
    e("s_lshr_b32 s50, s47, 7")
    e(f"s_lshr_b32 s51, s{g.s_wb}, 1")
    e("s_add_u32 s50, s50, s51")
    e("s_lshl_b32 s50, s50, 19")
    e("s_lshr_b32 s51, s46, 7")
    e(f"s_add_u32 s51, s51, s{g.s_wa}")
    e("s_lshl_b32 s51, s51, 15")
    e("s_add_u32 s50, s50, s51")
    e(f"s_and_b32 s51, s{g.s_wb}, 1")
    e("s_lshl_b32 s51, s51, 14")
    e("s_add_u32 s50, s50, s51")
    g.epi_tile(12, 50)
    e("s_endpgm")

    e.label("p1_u")
    g = Gemm(e, "p1_u", 256, 128, 4, 2, NS=3)
    vmax = max(vmax, g.v_end)
    make_srd(e, 4, 40, 2048 * 3456)
    make_srd(e, 8, 44, 2048 * 1280, WS_H)
    make_srd(e, 12, 44, 640 * 3456, WS_U)
    make_srd(e, 16, 42, 3456)
    e("s_mul_i32 s46, s2, 37")
    e("s_lshr_b32 s47, s46, 8")
    e("s_mul_i32 s46, s47, 7")
    e("s_sub_u32 s46, s2, s46")
    e("s_lshl_b32 s46, s46, 8")
    e("s_lshl_b32 s47, s47, 7")
    e("s_lshl_b32 s48, s46, 1")
    e("s_lshl_b32 s49, s47, 1")
    g.setup_common()
    g.zero_acc()
    g.run_seg(Op('t', 4, 3456, 48), Op('t', 8, 1280, 49), 32, True)
    va = g.v_t1
    t0 = g.out_addr(va, 46, 47, 3456)
    e(f"v_lshl_add_u32 v{va}, v{va}, 4, v{t0}")
    vb = g.v_t2
    e(f"s_mul_i32 s24, s{g.s_wa}, {g.TA * 32}")
    e("s_add_u32 s50, s24, s46")
    e("s_lshl_b32 s24, s50, 1")
    e(f"v_lshrrev_b32 v{vb}, 5, v{g.v_lane}")
    e(f"v_lshlrev_b32 v{vb}, 3, v{vb}")
    e(f"v_add_u32 v{vb}, s24, v{vb}")
    e("s_nop 15")
    e("s_nop 7")
    e("s_mov_b32 s51, 0xffff0000")
    e("s_mov_b32 s52, 0x3d372713")
    e("s_mov_b32 s53, 0xc0135761")
    bias = g.v_fA
    bf = g.v_fA + 8
    tmp = g.v_fA + 24
    for ta in range(g.TA):
        e(f"s_add_u32 s24, s50, {ta * 32}")
        e("s_cmp_ge_u32 s24, 1728")
        e(f"s_cbranch_scc1 p1_u_skip{ta}")
        for q in range(4):
            e(f"buffer_load_dwordx2 v[{bias + 2 * q}:{bias + 2 * q + 1}], v{vb}, s[16:19], 0 offen offset:{ta * 64 + q * 16}")
        e("s_waitcnt vmcnt(0)")
        for i in range(8):
            e(f"v_lshlrev_b32 v{bf + 2 * i}, 16, v{bias + i}")
            e(f"v_and_b32 v{bf + 2 * i + 1}, s51, v{bias + i}")
        for tb in range(g.TB):
            d = g.v_acc + 16 * (ta * g.TB + tb)
            for i in range(16):
                x = d + i
                e(f"v_add_f32 v{x}, v{x}, v{bf + i}")
                e(f"v_mul_f32 v{tmp}, v{x}, v{x}")
                e(f"v_fma_f32 v{tmp}, v{tmp}, s52, 1.0")
                e(f"v_mul_f32 v{tmp}, v{tmp}, v{x}")
                e(f"v_mul_f32 v{tmp}, s53, v{tmp}")
                e(f"v_exp_f32 v{tmp}, v{tmp}")
                e("s_nop 0")
                e(f"v_add_f32 v{tmp}, 1.0, v{tmp}")
                e(f"v_rcp_f32 v{tmp}, v{tmp}")
                e("s_nop 0")
                e(f"v_mul_f32 v{x}, v{x}, v{tmp}")
            p = bias
            for i in range(8):
                e(f"v_cvt_pk_bf16_f32 v{p + i}, v{d + 2 * i}, v{d + 2 * i + 1}")
            e(f"s_mov_b32 s24, {tb * 32 * 3456}")
            e(f"buffer_store_dwordx4 v[{p}:{p + 3}], v{va}, s[12:15], s24 offen offset:{ta * 64}")
            e(f"buffer_store_dwordx4 v[{p + 4}:{p + 7}], v{va}, s[12:15], s24 offen offset:{ta * 64 + 32}")
            e("s_nop 1")
        e.label(f"p1_u_skip{ta}")
    e.label("p1_end")
    e("s_endpgm")
    return name, vmax, ntot, 147456


def gen_attn(e):
    name = "attn_kernel"
    kernel_header(e, name)
    e("s_cmp_ge_u32 s2, 256")
    e("s_cbranch_scc1 at_end")
    e(f"s_load_dwordx2 s[44:45], s[0:1], {KA['ws']}")
    e(f"s_load_dwordx2 s[60:61], s[0:1], {KA['dbg']}")
    nst = [0]
    if 'wgt' in XP:
        e("s_memrealtime s[90:91]")

    def stamp():
        if 'stamp' in XP and nst[0] < 12:
            e(f"s_memtime s[{64 + 2 * nst[0]}:{65 + 2 * nst[0]}]")
            nst[0] += 1
    vL, vt0, vt1, vt2 = 1, 2, 3, 4
    vdK, vdV = 6, 10
    vaK, vaV = 14, 22
    vm, vl, vmask, vst = 26, 27, 28, 29
    valpha, vmc, vx0, vx1 = 30, 31, 32, 33
    vcc2 = 34
    vQ = 36
    vS = 68
    vP = 100
    vF0 = 116
    vF1 = 148
    vO = 180
    VEND = 244
    sW, sG, sQS, sH, sJ, sQB, sIT, sKoff, sVoff, sStage, sT, sC, sPass, sQ0 = 20, 21, 22, 23, 24, 25, 26, 27, 28, 29, 30, 34, 35, 36
    sVst, sKrd, sVrd = 37, 38, 39
    e(f"v_and_b32 v{vL}, 63, v0")
    e(f"v_lshrrev_b32 v{vt0}, 6, v0")
    e("s_nop 0")
    e(f"v_readfirstlane_b32 s{sW}, v{vt0}")
    e("s_nop 3")
    e(f"s_lshr_b32 s{sG}, s{sW}, 2")
    e(f"s_and_b32 s{sQS}, s{sW}, 3")
    e("s_and_b32 s3, s2, 7")
    e(f"s_lshr_b32 s{sT}, s2, 3")
    e(f"s_lshr_b32 s{sH}, s{sT}, 3")
    e(f"s_lshl_b32 s3, s3, 2")
    e(f"s_add_u32 s{sH}, s{sH}, s3")
    e(f"s_and_b32 s{sJ}, s{sT}, 7")
    e("s_waitcnt lgkmcnt(0)")
    make_srd(e, 4, 44, 2048 * 8192, WS_Q)
    make_srd(e, 8, 44, 2048 * 8192, WS_K)
    make_srd(e, 12, 44, 4096 * 4096, WS_VT)
    make_srd(e, 16, 44, 2048 * 8192, WS_CTX)
    e(f"s_mov_b32 s{sC}, 0x3e0293ee")
    for jj in range(4):
        e(f"s_lshl_b32 s{sT}, s{sW}, 4")
        e(f"s_add_u32 s{sT}, s{sT}, {jj * 4}")
        e(f"v_lshrrev_b32 v{vt0}, 4, v{vL}")
        e(f"v_add_u32 v{vt0}, s{sT}, v{vt0}")
        e(f"v_xor_b32 v{vt1}, v{vt0}, v{vL}")
        e(f"v_and_b32 v{vt1}, 15, v{vt1}")
        e(f"v_lshlrev_b32 v{vt1}, 4, v{vt1}")
        e(f"v_lshl_add_u32 v{vdK + jj}, v{vt0}, 8, v{vt1}")
        if jj:
            e(f"v_subrev_u32 v{vdK + jj}, {jj * 1024}, v{vdK + jj}")
        e(f"v_mov_b32 v{vdV + jj}, v{vdK + jj}")
    e(f"v_and_b32 v{vt0}, 31, v{vL}")
    e(f"v_lshrrev_b32 v{vt1}, 5, v{vL}")
    e(f"v_and_b32 v{vt2}, 15, v{vL}")
    e(f"v_xor_b32 v{vt2}, v{vt2}, v{vt1}")
    e(f"v_lshlrev_b32 v{vt2}, 4, v{vt2}")
    e(f"s_lshl_b32 s{sT}, s{sG}, 6")
    e(f"v_add_u32 v{vx0}, s{sT}, v{vt0}")
    e(f"v_lshl_add_u32 v{vx0}, v{vx0}, 8, v{vt2}")
    for kk in range(8):
        e(f"v_xor_b32 v{vaK + kk}, {kk * 32}, v{vx0}")
    e(f"v_lshl_add_u32 v{vx0}, v{vt0}, 8, v{vt2}")
    e(f"v_add_u32 v{vx0}, 65536, v{vx0}")
    e(f"s_lshl_b32 s{sT}, s{sG}, 7")
    e(f"v_xor_b32 v{vx0}, s{sT}, v{vx0}")
    for kk in range(4):
        e(f"v_xor_b32 v{vaV + kk}, {kk * 32}, v{vx0}")
    e(f"s_lshl_b32 s{sT}, s{sQS}, 5")
    e(f"s_lshl_b32 s{sT + 1}, s{sG}, 6")
    e(f"s_sub_u32 s{sT}, s{sT}, s{sT + 1}")
    e(f"v_add_u32 v{vmask}, s{sT}, v{vt0}")
    e(f"v_lshlrev_b32 v{vt1}, 2, v{vt1}")
    e(f"v_sub_u32 v{vmask}, v{vmask}, v{vt1}")
    e(f"s_mov_b32 s{sPass}, 0")
    e(f"v_mov_b32 v{vcc2}, s{sC}")
    e(f"v_mov_b32 v{vcc2 + 1}, s{sC}")
    e(f"s_sub_u32 s{sQB}, 15, s{sJ}")
    e.label("at_qblock")
    e(f"s_lshl_b32 s{sQ0}, s{sQB}, 7")
    e(f"s_lshl_b32 s{sT}, s{sQS}, 5")
    e(f"s_add_u32 s{sT}, s{sT}, s{sQ0}")
    e(f"v_and_b32 v{vt0}, 31, v{vL}")
    e(f"v_add_u32 v{vt0}, s{sT}, v{vt0}")
    e(f"v_lshrrev_b32 v{vt1}, 5, v{vL}")
    e(f"v_lshlrev_b32 v{vt1}, 4, v{vt1}")
    e(f"v_lshl_add_u32 v{vt2}, v{vt0}, 8, v{vt1}")
    e(f"v_lshl_add_u32 v{vt0}, v{vt0}, 13, v{vt1}")
    e(f"s_lshl_b32 s{sT}, s{sH}, 8")
    e(f"v_add_u32 v{vst}, s{sT}, v{vt0}")
    e(f"s_lshl_b32 s{sT}, s{sH}, 19")
    for kk in range(8):
        e(f"buffer_load_dwordx4 v[{vQ + 4 * kk}:{vQ + 4 * kk + 3}], v{vt2}, s[4:7], s{sT} offen offset:{kk * 32}")
    e(f"v_mov_b32 v{vm}, 0xf149f2ca")
    e(f"v_mov_b32 v{vl}, 0")
    for i in range(64):
        e(f"v_mov_b32 v{vO + i}, 0")
    e(f"s_lshl_b32 s{sKoff}, s{sH}, 19")
    e(f"s_lshl_b32 s{sVoff}, s{sH}, 19")
    e(f"s_mov_b32 s{sStage}, 0")
    e(f"s_mov_b32 s{sVst}, 0")
    e(f"s_mov_b32 s{sKrd}, 0")
    e(f"s_mov_b32 s{sVrd}, 0")
    e(f"s_mov_b32 s{sIT}, 0")

    sDK, sDV, sD = 40, 41, 42

    def dma_setup():
        e(f"s_lshl_b32 s{sT}, s{sW}, 12")
        e(f"s_add_u32 s{sDK}, s{sT}, s{sStage}")
        e(f"s_add_u32 s{sDV}, s{sT}, s{sVst}")
        e(f"s_add_u32 s{sDV}, s{sDV}, 65536")

    def dma_piece(i):
        jj = i & 3
        if i == 0:
            e(f"s_mov_b32 m0, s{sDK}")
            e("s_nop 0")
        if i == 4:
            e(f"s_mov_b32 m0, s{sDV}")
            e("s_nop 0")
        if i < 4:
            e(f"buffer_load_dwordx4 v{vdK + jj}, s[8:11], s{sKoff} offen offset:{jj * 1024} lds")
        else:
            e(f"buffer_load_dwordx4 v{vdV + jj}, s[12:15], s{sVoff} offen offset:{jj * 1024} lds")

    def dma_advance():
        e(f"s_add_u32 s{sKoff}, s{sKoff}, 32768")
        e(f"s_add_u32 s{sVoff}, s{sVoff}, 32768")
        e(f"s_xor_b32 s{sStage}, s{sStage}, 32768")
        e(f"s_add_u32 s{sVst}, s{sVst}, 32768")
        e(f"s_cmp_eq_u32 s{sVst}, 98304")
        e(f"s_cselect_b32 s{sVst}, 0, s{sVst}")

    def dma():
        dma_setup()
        for i in range(8):
            dma_piece(i)
        dma_advance()

    pcnt = [0]

    def cond_piece(i):
        pcnt[0] += 1
        lab = f"at_np{pcnt[0]}"
        e(f"s_cmp_eq_u32 s{sD}, 0")
        e(f"s_cbranch_scc1 {lab}")
        dma_piece(i)
        if i == 7:
            dma_advance()
        e.label(lab)

    def top(tag):
        e("s_waitcnt vmcnt(0)")
        e("s_barrier")
        e(f"s_cmp_lg_u32 s{sIT}, s{sQB}")
        e(f"s_cselect_b32 s{sD}, 1, 0")
        dma_setup()

    def kreads(t):
        F = vF0 if t == 0 else vF1
        for kk in range(8):
            e(f"ds_read_b128 v[{F + 4 * kk}:{F + 4 * kk + 3}], v{vaK + kk} offset:{t * 8192}")

    def qk_mfma(t, pieces=()):
        F = vF0 if t == 0 else vF1
        d = vS + 16 * t
        pieces = list(pieces)
        for kk in range(8):
            c = "0" if kk == 0 else f"v[{d}:{d + 15}]"
            e(f"v_mfma_f32_32x32x16_bf16 v[{d}:{d + 15}], v[{F + 4 * kk}:{F + 4 * kk + 3}], v[{vQ + 4 * kk}:{vQ + 4 * kk + 3}], {c}")
            if pieces and kk & 1:
                cond_piece(pieces.pop(0))

    def k_adv():
        for i in range(8):
            e(f"v_xor_b32 v{vaK + i}, 0x8000, v{vaK + i}")
        e(f"s_xor_b32 s{sKrd}, s{sKrd}, 32768")

    def vreads():
        for dt in range(4):
            F = (vF0 if dt < 2 else vF1) + 16 * (dt & 1)
            for kk in range(4):
                e(f"ds_read_b128 v[{F + 4 * kk}:{F + 4 * kk + 3}], v{vaV + kk} offset:{dt * 8192}")
        e(f"s_add_u32 s{sT}, s{sVrd}, 32768")
        e(f"s_cmp_eq_u32 s{sT}, 98304")
        e(f"s_cselect_b32 s{sT}, 0, s{sT}")
        e(f"s_sub_u32 s{sT + 1}, s{sT}, s{sVrd}")
        e(f"s_mov_b32 s{sVrd}, s{sT}")
        for i in range(4):
            e(f"v_add_u32 v{vaV + i}, s{sT + 1}, v{vaV + i}")

    def pv_mfma(dts, pieces=()):
        pieces = list(pieces)
        for dt in dts:
            F = (vF0 if dt < 2 else vF1) + 16 * (dt & 1)
            d = vO + 16 * dt
            for kk in range(4):
                e(f"v_mfma_f32_32x32x16_bf16 v[{d}:{d + 15}], v[{F + 4 * kk}:{F + 4 * kk + 3}], v[{vP + 4 * kk}:{vP + 4 * kk + 3}], v[{d}:{d + 15}]")
                if pieces and kk & 1:
                    cond_piece(pieces.pop(0))

    def mask():
        e(f"v_mov_b32 v{vx0}, 0xf149f2ca")
        for t in range(2):
            for r in range(16):
                cst = t * 32 + (r & 3) + 8 * (r >> 2)
                e(f"v_cmp_gt_i32 vcc, {cst}, v{vmask}")
                e("s_nop 1")
                e(f"v_cndmask_b32 v{vS + 16 * t + r}, v{vS + 16 * t + r}, v{vx0}, vcc")

    def softmax(tag, with_dma=False):
        e("s_nop 0" if "noprio" in XP else ("s_setprio 0" if "invprio" in XP else "s_setprio 1"))
        e(f"v_max3_f32 v{vx0}, v{vS}, v{vS + 1}, v{vS + 2}")
        for i in range(3, 31, 2):
            e(f"v_max3_f32 v{vx0}, v{vx0}, v{vS + i}, v{vS + i + 1}")
        e(f"v_max_f32 v{vx0}, v{vx0}, v{vS + 31}")
        e(f"v_mov_b32 v{vx1}, v{vx0}")
        e("s_nop 1")
        e(f"v_permlane32_swap_b32 v{vx0}, v{vx1}")
        e("s_nop 1")
        e(f"v_max3_f32 v{vx0}, v{vx0}, v{vx1}, v{vm}")
        e(f"v_sub_f32 v{valpha}, v{vm}, v{vx0}")
        e(f"v_mul_f32 v{valpha}, s{sC}, v{valpha}")
        e(f"v_cmp_gt_f32 vcc, -8.0, v{valpha}")
        e("s_nop 4")
        e(f"s_cbranch_vccz {tag}_norescale")
        e(f"v_exp_f32 v{valpha}, v{valpha}")
        e(f"v_mov_b32 v{vm}, v{vx0}")
        e(f"v_mul_f32 v{vl}, v{vl}, v{valpha}")
        for i in range(64):
            e(f"v_mul_f32 v{vO + i}, v{vO + i}, v{valpha}")
        e.label(f"{tag}_norescale")
        e(f"v_mul_f32 v{vx0}, s{sC}, v{vm}")
        e(f"v_sub_f32 v{vx0}, 0, v{vx0}")
        e(f"v_mov_b32 v{vx1}, v{vx0}")
        for i in range(16):
            r = vS + 2 * i
            e(f"v_pk_fma_f32 v[{r}:{r + 1}], v[{r}:{r + 1}], v[{vcc2}:{vcc2 + 1}], v[{vx0}:{vx1}]")
            e(f"v_exp_f32 v{r}, v{r}")
            e(f"v_exp_f32 v{r + 1}, v{r + 1}")
        vreads()
        e(f"v_pk_add_f32 v[{vx0}:{vx1}], v[{vS}:{vS + 1}], v[{vS + 2}:{vS + 3}]")
        for i in range(2, 16):
            e(f"v_pk_add_f32 v[{vx0}:{vx1}], v[{vx0}:{vx1}], v[{vS + 2 * i}:{vS + 2 * i + 1}]")
        e(f"v_add_f32 v{vl}, v{vl}, v{vx0}")
        e(f"v_add_f32 v{vl}, v{vl}, v{vx1}")
        for i in range(16):
            e(f"v_cvt_pk_bf16_f32 v{vP + i}, v{vS + 2 * i}, v{vS + 2 * i + 1}")
        e("s_nop 0" if "noprio" in XP else ("s_setprio 1" if "invprio" in XP else "s_setprio 0"))

    def pv_qk(with_pv, with_dma):
        pc = list(range(8)) if with_dma else []
        if with_pv:
            e("s_waitcnt lgkmcnt(0)")
            e("s_nop 1")
            pv_mfma((0, 1), pc[0:4])
            kreads(0)
            pv_mfma((2, 3), pc[4:8])
            kreads(1)
            e("s_waitcnt lgkmcnt(8)")
            qk_mfma(0)
            e("s_waitcnt lgkmcnt(0)")
            qk_mfma(1)
        else:
            kreads(0)
            kreads(1)
            e("s_waitcnt lgkmcnt(8)")
            qk_mfma(0, pc[0:4])
            e("s_waitcnt lgkmcnt(0)")
            qk_mfma(1, pc[4:8])
        k_adv()

    def pv_only():
        e("s_waitcnt lgkmcnt(0)")
        e("s_nop 1")
        pv_mfma((0, 1, 2, 3))

    dma()
    e(f"s_cmp_eq_u32 s{sG}, 1")
    e("s_cbranch_scc1 at1_loop")
    e.label("at0_loop")
    stamp()
    top("at0")
    stamp()
    e(f"s_cmp_eq_u32 s{sIT}, 0")
    e("s_cbranch_scc1 at0_first")
    pv_qk(True, True)
    e("s_branch at0_sm")
    e.label("at0_first")
    pv_qk(False, True)
    e.label("at0_sm")
    stamp()
    e("s_nop 15")
    e(f"s_cmp_lg_u32 s{sIT}, s{sQB}")
    e("s_cbranch_scc1 at0_nomask")
    mask()
    e.label("at0_nomask")
    softmax("at0")
    stamp()
    if 'stamp' in XP:
        e("s_waitcnt lgkmcnt(0)")
        e(f"s_cmp_eq_u32 s{sIT}, 5")
        e("s_cbranch_scc0 at0_nost")
        e("s_cmp_eq_u32 s2, 0")
        e("s_cbranch_scc0 at0_nost")
        e(f"s_cmp_eq_u32 s{sW}, 0")
        e("s_cbranch_scc0 at0_nost")
        e(f"v_mov_b32 v{vx0}, 0")
        for i in range(6):
            e(f"v_mov_b32 v{vx1}, s{64 + 2 * i}")
            e(f"global_store_dword v{vx0}, v{vx1}, s[60:61] offset:{4 * i}")
            e("s_nop 1")
        e.label("at0_nost")
    e(f"s_add_u32 s{sIT}, s{sIT}, 1")
    e(f"s_cmp_le_u32 s{sIT}, s{sQB}")
    e("s_cbranch_scc1 at0_loop")
    pv_only()
    e("s_branch at_done")
    e.label("at1_loop")
    nst[0] = 0
    stamp()
    top("at1")
    stamp()
    e(f"s_cmp_eq_u32 s{sIT}, 0")
    e("s_cbranch_scc1 at1_first")
    softmax("at1", with_dma=False)
    stamp()
    e(f"s_cmp_lg_u32 s{sIT}, s{sQB}")
    e("s_cbranch_scc1 at1_doqk")
    e(f"s_cmp_lt_u32 s{sQS}, 2")
    e("s_cbranch_scc0 at1_doqk")
    pv_only()
    e("s_branch at_done")
    e.label("at1_doqk")
    pv_qk(True, True)
    e("s_branch at1_next")
    e.label("at1_first")
    for i in range(8):
        cond_piece(i)
    e(f"s_cmp_lg_u32 s{sIT}, s{sQB}")
    e("s_cbranch_scc1 at1_doqk0")
    e(f"s_cmp_lt_u32 s{sQS}, 2")
    e("s_cbranch_scc1 at_done")
    e.label("at1_doqk0")
    pv_qk(False, False)
    e.label("at1_next")
    stamp()
    if 'stamp' in XP:
        e("s_waitcnt lgkmcnt(0)")
        e(f"s_cmp_eq_u32 s{sIT}, 5")
        e("s_cbranch_scc0 at1_nost")
        e("s_cmp_eq_u32 s2, 0")
        e("s_cbranch_scc0 at1_nost")
        e(f"s_cmp_eq_u32 s{sW}, 4")
        e("s_cbranch_scc0 at1_nost")
        e(f"v_mov_b32 v{vx0}, 0")
        for i in range(6):
            e(f"v_mov_b32 v{vx1}, s{64 + 2 * i}")
            e(f"global_store_dword v{vx0}, v{vx1}, s[60:61] offset:{24 + 4 * i}")
            e("s_nop 1")
        e.label("at1_nost")
    e(f"s_add_u32 s{sIT}, s{sIT}, 1")
    e(f"s_cmp_le_u32 s{sIT}, s{sQB}")
    e("s_cbranch_scc1 at1_loop")
    e("s_nop 15")
    mask()
    softmax("at1b")
    pv_only()
    e.label("at_done")
    e(f"s_sub_u32 s{sT}, 0, s{sKrd}")
    for i in range(8):
        e(f"v_add_u32 v{vaK + i}, s{sT}, v{vaK + i}")
    e(f"s_sub_u32 s{sT}, 0, s{sVrd}")
    for i in range(4):
        e(f"v_add_u32 v{vaV + i}, s{sT}, v{vaV + i}")
    e("s_nop 15")
    e("s_nop 7")
    e(f"v_mov_b32 v{vx1}, v{vl}")
    e("s_nop 1")
    e(f"v_permlane32_swap_b32 v{vl}, v{vx1}")
    e("s_nop 1")
    e(f"v_add_f32 v{vl}, v{vl}, v{vx1}")
    e("s_barrier")
    e(f"s_lshl_b32 s{sT}, s{sQS}, 14")
    e(f"v_lshlrev_b32 v{vx0}, 4, v{vL}")
    e(f"v_add_u32 v{vx0}, s{sT}, v{vx0}")
    e(f"s_lshl_b32 s{sT}, s{sQS}, 9")
    e(f"v_lshlrev_b32 v{vx1}, 3, v{vL}")
    e(f"v_add_u32 v{vx1}, s{sT}, v{vx1}")
    e(f"v_add_u32 v{vx1}, 65536, v{vx1}")
    e(f"s_cmp_eq_u32 s{sG}, 0")
    e("s_cbranch_scc1 at_merge0")
    for i in range(16):
        e(f"ds_write_b128 v{vx0}, v[{vO + 4 * i}:{vO + 4 * i + 3}] offset:{i * 1024}")
    e(f"ds_write_b64 v{vx1}, v[{vm}:{vl}]")
    e("s_waitcnt lgkmcnt(0)")
    e("s_barrier")
    e("s_branch at_mergedone")
    e.label("at_merge0")
    e("s_barrier")
    e(f"ds_read_b64 v[{vS}:{vS + 1}], v{vx1}")
    for i in range(16):
        e(f"ds_read_b128 v[{vF0 + 4 * i}:{vF0 + 4 * i + 3}], v{vx0} offset:{i * 1024}")
    e("s_waitcnt lgkmcnt(0)")
    e(f"v_max_f32 v{vt0}, v{vm}, v{vS}")
    e(f"v_sub_f32 v{vt1}, v{vm}, v{vt0}")
    e(f"v_sub_f32 v{vt2}, v{vS}, v{vt0}")
    e(f"v_mul_f32 v{vt1}, s{sC}, v{vt1}")
    e(f"v_mul_f32 v{vt2}, s{sC}, v{vt2}")
    e(f"v_exp_f32 v{vt1}, v{vt1}")
    e(f"v_exp_f32 v{vt2}, v{vt2}")
    e("s_nop 0")
    e(f"v_mul_f32 v{vl}, v{vl}, v{vt1}")
    e(f"v_fmac_f32 v{vl}, v{vS + 1}, v{vt2}")
    e(f"v_rcp_f32 v{vl}, v{vl}")
    e("s_nop 0")
    e(f"v_mul_f32 v{vt1}, v{vt1}, v{vl}")
    e(f"v_mul_f32 v{vt2}, v{vt2}, v{vl}")
    for i in range(64):
        e(f"v_mul_f32 v{vO + i}, v{vO + i}, v{vt1}")
        e(f"v_fmac_f32 v{vO + i}, v{vF0 + i}, v{vt2}")
    for i in range(32):
        e(f"v_cvt_pk_bf16_f32 v{vS + i}, v{vO + 2 * i}, v{vO + 2 * i + 1}")
    for i in range(8):
        e(f"buffer_store_dwordx4 v[{vS + 4 * i}:{vS + 4 * i + 3}], v{vst}, s[16:19], 0 offen offset:{i * 32}")
    e.label("at_mergedone")
    e("s_barrier")
    e(f"s_add_u32 s{sPass}, s{sPass}, 1")
    e(f"s_mov_b32 s{sQB}, s{sJ}")
    e(f"s_cmp_eq_u32 s{sPass}, 1")
    e("s_cbranch_scc1 at_qblock")
    if 'wgt' in XP:
        e("s_memrealtime s[92:93]")
        e("s_waitcnt lgkmcnt(0)")
        e("s_lshl_b32 s3, s2, 3")
        e("s_add_u32 s3, s3, 0x6f00000")
        e("v_mov_b32 v2, s3")
        e("v_mov_b32 v4, s90")
        e("v_mov_b32 v5, s92")
        e("s_nop 1")
        e("global_store_dwordx2 v2, v[4:5], s[44:45]")
    e.label("at_end")
    e("s_endpgm")
    return name, VEND, 256, 163840


WS_PART = 0x6000000


def gen_final(e):
    name = "final_kernel"
    kernel_header(e, name)
    NT = 240
    e(f"s_cmp_ge_u32 s2, {NT}")
    e("s_cbranch_scc1 fi_end")
    e(f"s_load_dwordx2 s[34:35], s[0:1], {KA['wo']}")
    e(f"s_load_dwordx2 s[36:37], s[0:1], {KA['w2']}")
    e(f"s_load_dwordx2 s[44:45], s[0:1], {KA['ws']}")
    e("s_waitcnt lgkmcnt(0)")
    g = Gemm(e, "fi", 128, 128, 2, 4, NS=4)
    make_srd(e, 4, 34, 4096 * 1280)
    make_srd(e, 8, 44, 2048 * 8192, WS_CTX)
    make_srd(e, 12, 44, 3 * 2048 * 2560, WS_PART)
    make_srd(e, 56, 44, 640 * 3456, WS_U)
    make_srd(e, 60, 36, 1728 * 4096)
    e("s_and_b32 s47, s2, 7")
    e("s_lshr_b32 s52, s2, 3")
    e("s_lshl_b32 s47, s47, 1")
    e("s_and_b32 s46, s52, 1")
    e("s_add_u32 s47, s47, s46")
    e("s_lshr_b32 s52, s52, 1")
    e("s_mul_i32 s53, s52, 205")
    e("s_lshr_b32 s53, s53, 10")
    e("s_mul_i32 s46, s53, 5")
    e("s_sub_u32 s46, s52, s46")
    e("s_lshl_b32 s46, s46, 7")
    e("s_lshl_b32 s47, s47, 7")
    g.setup_common()
    g.zero_acc()
    e("s_cmp_eq_u32 s53, 2")
    e("s_cbranch_scc1 fi_seg2")
    e("s_mul_i32 s48, s53, %d" % (2048 * 1280))
    e("s_lshl_b32 s24, s46, 1")
    e("s_add_u32 s48, s48, s24")
    e("s_lshl_b32 s49, s47, 13")
    e("s_lshl_b32 s24, s53, 12")
    e("s_add_u32 s49, s49, s24")
    g.run_seg(Op('t', 4, 1280, 48, perm=True), Op('k', 8, 8192, 49), 32, True)
    e("s_branch fi_epi")
    e.label("fi_seg2")
    e("s_mul_i32 s50, s46, 3456")
    e("s_lshl_b32 s51, s47, 1")
    g.run_seg(Op('k', 56, 3456, 50), Op('t', 60, 4096, 51, perm=True), 27, True)
    e.label("fi_epi")
    va = g.v_t1
    L, t0, st = g.v_lane, g.v_t0, g.s_t
    e(f"s_mul_i32 s{st}, s{g.s_wb}, {g.TB * 32}")
    e(f"s_add_u32 s{st}, s{st}, s47")
    e(f"v_and_b32 v{t0}, 31, v{L}")
    e(f"v_add_u32 v{t0}, s{st}, v{t0}")
    e(f"s_movk_i32 s{st + 1}, 2560")
    e(f"v_mul_lo_u32 v{t0}, v{t0}, s{st + 1}")
    e(f"s_mul_i32 s{st}, s{g.s_wa}, {g.TA * 32}")
    e(f"s_add_u32 s{st}, s{st}, s46")
    e(f"s_lshl_b32 s{st}, s{st}, 2")
    e(f"s_mul_i32 s{st + 1}, s53, {2048 * 2560}")
    e(f"s_add_u32 s{st}, s{st}, s{st + 1}")
    e(f"v_add_u32 v{t0}, s{st}, v{t0}")
    e(f"v_lshrrev_b32 v{va}, 5, v{L}")
    e(f"v_lshl_add_u32 v{va}, v{va}, 4, v{t0}")
    e("s_nop 15")
    e("s_nop 7")
    for ta in range(g.TA):
        for tb in range(g.TB):
            d = g.v_acc + 16 * (ta * g.TB + tb)
            e(f"s_mov_b32 s24, {tb * 32 * 2560}")
            for q in range(4):
                e(f"buffer_store_dwordx4 v[{d + 4 * q}:{d + 4 * q + 3}], v{va}, s[12:15], s24 offen offset:{ta * 128 + q * 32}")
    e.label("fi_end")
    e("s_endpgm")
    return name, g.v_end, NT, g.lds


def gen_reduce(e):
    name = "reduce_kernel"
    kernel_header(e, name)
    NT = 640
    e(f"s_cmp_ge_u32 s2, {NT}")
    e("s_cbranch_scc1 rd_end")
    e(f"s_load_dwordx2 s[32:33], s[0:1], {KA['x']}")
    e(f"s_load_dwordx2 s[38:39], s[0:1], {KA['b2']}")
    e(f"s_load_dwordx2 s[40:41], s[0:1], {KA['out']}")
    e(f"s_load_dwordx2 s[44:45], s[0:1], {KA['ws']}")
    e("s_lshl_b32 s3, s2, 8")
    e("v_add_u32 v1, s3, v0")
    e("v_lshlrev_b32 v2, 4, v1")
    e("v_lshlrev_b32 v3, 5, v1")
    e("s_mov_b32 s4, 0x3333334")
    e("v_mul_hi_u32 v4, v1, s4")
    e("v_lshlrev_b32 v4, 1, v4")
    e("s_waitcnt lgkmcnt(0)")
    make_srd(e, 8, 32, 2048 * 1280)
    make_srd(e, 12, 40, 2048 * 1280)
    make_srd(e, 16, 44, 3 * 2048 * 2560, WS_PART)
    make_srd(e, 20, 38, 4096)
    e("buffer_load_dwordx4 v[8:11], v2, s[8:11], 0 offen")
    e("buffer_load_ushort v5, v4, s[20:23], 0 offen")
    for sp in range(3):
        e(f"s_mov_b32 s24, {sp * 2048 * 2560}")
        e(f"buffer_load_dwordx4 v[{12 + 8 * sp}:{15 + 8 * sp}], v3, s[16:19], s24 offen")
        e(f"buffer_load_dwordx4 v[{16 + 8 * sp}:{19 + 8 * sp}], v3, s[16:19], s24 offen offset:16")
    e("s_mov_b32 s25, 0xffff0000")
    e("s_waitcnt vmcnt(0)")
    e("v_lshlrev_b32 v5, 16, v5")
    for i in range(8):
        e(f"v_add_f32 v{12 + i}, v{12 + i}, v{20 + i}")
        e(f"v_add_f32 v{12 + i}, v{12 + i}, v{28 + i}")
        e(f"v_add_f32 v{12 + i}, v{12 + i}, v5")
    for i in range(4):
        e(f"v_lshlrev_b32 v6, 16, v{8 + i}")
        e(f"v_and_b32 v7, s25, v{8 + i}")
        e(f"v_add_f32 v6, v6, v{12 + 2 * i}")
        e(f"v_add_f32 v7, v7, v{13 + 2 * i}")
        e(f"v_cvt_pk_bf16_f32 v{8 + i}, v6, v7")
    e("buffer_store_dwordx4 v[8:11], v2, s[12:15], 0 offen")
    e.label("rd_end")
    e("s_endpgm")
    return name, 40, NT, 0


def main():
    e = E()
    launches = []
    body = E()
    descs = E()
    n, v = gen_ln(body)
    kernel_desc(descs, n, v)
    launches.append((n, 512, 256, 0))
    n, v, g, lds = gen_p1(body)
    kernel_desc(descs, n, v)
    launches.append((n, g, 512, lds))
    n, v, g, lds = gen_attn(body)
    kernel_desc(descs, n, v)
    launches.append((n, g, 512, lds))
    n, v, g, lds = gen_final(body)
    kernel_desc(descs, n, v)
    launches.append((n, g, 512, lds))
    n, v, g, lds = gen_reduce(body)
    kernel_desc(descs, n, v)
    launches.append((n, g, 256, lds))
    for (n, g, b, lds) in launches:
        e.raw(f"; @launch kernel={n} grid=({g},1,1) block=({b},1,1) lds={lds}")
    e.raw('.amdgcn_target "amdgcn-amd-amdhsa--gfx950"')
    out = e.text() + body.text() + descs.text()
    path = sys.argv[1] if len(sys.argv) > 1 else f"cdna_kernels/{KN}.s"
    open(path, "w").write(out)
    print("wrote", path, len(out))


if __name__ == "__main__":
    main()
```

```python
import sys
import math
import os
XP = os.environ.get('XP', '')

KN = "parallel_sum__compressed_kv_cla__mixer_token_mlp__prompt"

WS_XN = 0x0000000
WS_H = 0x0280000
WS_Q = 0x1000000
WS_K = 0x2000000
WS_VT = 0x3000000
WS_U = 0x4000000
WS_CTX = 0x5000000

KA = dict(x=0, ckv=8, wq=16, wuk=24, wuv=32, wo=40, bx=48, w1=56, b1=64, w2=72, b2=80, out=88, dbg=96, ws=104)


class E:
    def __init__(self):
        self.lines = []

    def __call__(self, s):
        self.lines.append("    " + s)

    def label(self, l):
        self.lines.append(l + ":")

    def raw(self, s):
        self.lines.append(s)

    def text(self):
        return "\n".join(self.lines) + "\n"


def vr(a, n=1):
    return f"v{a}" if n == 1 else f"v[{a}:{a + n - 1}]"


def sr(a, n=1):
    return f"s{a}" if n == 1 else f"s[{a}:{a + n - 1}]"


def kernel_header(e, name):
    e.raw(".text")
    e.raw(f".globl {name}")
    e.raw(".p2align 8")
    e.raw(f".type {name},@function")
    e.label(name)


def kernel_desc(e, name, vgpr, sgpr=96):
    acc = (vgpr + 3) // 4 * 4
    e.raw('.section .rodata,"a"')
    e.raw(".p2align 6")
    e.raw(f".amdhsa_kernel {name}")
    e.raw(f"  .amdhsa_next_free_vgpr {vgpr}")
    e.raw(f"  .amdhsa_next_free_sgpr {sgpr}")
    e.raw(f"  .amdhsa_accum_offset {acc}")
    e.raw("  .amdhsa_group_segment_fixed_size 0")
    e.raw("  .amdhsa_kernarg_size 112")
    e.raw("  .amdhsa_user_sgpr_count 2")
    e.raw("  .amdhsa_user_sgpr_kernarg_segment_ptr 1")
    e.raw("  .amdhsa_system_sgpr_workgroup_id_x 1")
    e.raw(".end_amdhsa_kernel")


def make_srd(e, d, ptr, nbytes, off=0):
    if off:
        e(f"s_add_u32 s{d}, s{ptr}, 0x{off:x}")
        e(f"s_addc_u32 s{d + 1}, s{ptr + 1}, 0")
    else:
        e(f"s_mov_b32 s{d}, s{ptr}")
        e(f"s_mov_b32 s{d + 1}, s{ptr + 1}")
    e(f"s_mov_b32 s{d + 2}, 0x{nbytes:x}")
    e(f"s_mov_b32 s{d + 3}, 0x00020000")


def wave_sum(e, v, t):
    for off in (0x041F, 0x081F, 0x101F, 0x201F, 0x401F):
        e(f"ds_swizzle_b32 v{t}, v{v} offset:0x{off:04X}")
        e("s_waitcnt lgkmcnt(0)")
        e(f"v_add_f32 v{v}, v{v}, v{t}")
    e(f"v_mov_b32 v{t}, v{v}")
    e("s_nop 1")
    e(f"v_permlane32_swap_b32 v{t}, v{v}")
    e("s_nop 1")
    e(f"v_add_f32 v{v}, v{v}, v{t}")


def gen_ln(e):
    name = "ln_kernel"
    kernel_header(e, name)
    e("s_cmp_ge_u32 s2, 1024")
    e("s_cbranch_scc1 ln_end")
    e("s_cmp_ge_u32 s2, 512")
    e("s_cbranch_scc1 ln_pf")
    e(f"s_load_dwordx2 s[4:5], s[0:1], {KA['x']}")
    e(f"s_load_dwordx2 s[6:7], s[0:1], {KA['ws']}")
    e("v_lshrrev_b32 v1, 6, v0")
    e("v_and_b32 v2, 63, v0")
    e("s_lshl_b32 s3, s2, 2")
    e("v_add_u32 v1, s3, v1")
    e("s_movk_i32 s16, 1280")
    e("v_mul_lo_u32 v1, v1, s16")
    e("v_lshl_add_u32 v1, v2, 2, v1")
    e("s_waitcnt lgkmcnt(0)")
    make_srd(e, 8, 4, 2048 * 1280)
    make_srd(e, 12, 6, 2 * 2048 * 1280)
    for i in range(5):
        e(f"buffer_load_dword v{4 + i}, v1, s[8:11], 0 offen offset:{i * 256}")
    e("s_waitcnt vmcnt(0)")
    e("s_mov_b32 s17, 0x3acccccd")
    e("s_mov_b32 s18, 0x3727c5ac")
    e("s_mov_b32 s19, 0xffff0000")

    def ln_pass(dst_off):
        for i in range(5):
            e(f"v_lshlrev_b32 v{10 + 2 * i}, 16, v{4 + i}")
            e(f"v_and_b32 v{11 + 2 * i}, s19, v{4 + i}")
        e("v_add_f32 v20, v10, v11")
        for i in range(2, 10):
            e(f"v_add_f32 v20, v20, v{10 + i}")
        wave_sum(e, 20, 21)
        e("v_mul_f32 v20, s17, v20")
        for i in range(10):
            e(f"v_sub_f32 v{10 + i}, v{10 + i}, v20")
        e("v_mul_f32 v22, v10, v10")
        for i in range(1, 10):
            e(f"v_fmac_f32 v22, v{10 + i}, v{10 + i}")
        wave_sum(e, 22, 21)
        e("v_mov_b32 v23, s18")
        e("v_fmac_f32 v23, s17, v22")
        e("v_rsq_f32 v23, v23")
        e("s_nop 1")
        for i in range(10):
            e(f"v_mul_f32 v{10 + i}, v{10 + i}, v23")
        for i in range(5):
            e(f"v_cvt_pk_bf16_f32 v{4 + i}, v{10 + 2 * i}, v{11 + 2 * i}")
        e("s_mov_b32 s20, 0x%x" % dst_off)
        for i in range(5):
            e(f"buffer_store_dword v{4 + i}, v1, s[12:15], s20 offen offset:{i * 256}")

    ln_pass(WS_XN)
    e("s_nop 4")
    ln_pass(WS_H)
    e("s_endpgm")
    e.label("ln_pf")
    tens = [('ckv', 2048 * 1024), ('wq', 640 * 8192), ('wuk', 512 * 8192), ('wuv', 512 * 8192),
            ('w1', 2048 * 3456), ('wo', 4096 * 1280), ('w2', 1728 * 4096)]
    for i, (nm, sz) in enumerate(tens):
        e(f"s_load_dwordx2 s[{32 + 2 * i}:{33 + 2 * i}], s[0:1], {KA[nm]}")
    e("s_sub_u32 s3, s2, 512")
    e("s_lshl_b32 s3, s3, 12")
    e("v_lshlrev_b32 v1, 4, v0")
    e("v_add_u32 v1, s3, v1")
    e("s_waitcnt lgkmcnt(0)")
    nld = 0
    for i, (nm, sz) in enumerate(tens):
        make_srd(e, 8, 32 + 2 * i, sz)
        for r in range(-(-sz // (2 << 20))):
            e(f"s_mov_b32 s20, {r * (2 << 20)}")
            vd = 4 + 4 * (nld % 6)
            e(f"buffer_load_dwordx4 v[{vd}:{vd + 3}], v1, s[8:11], s20 offen")
            nld += 1
    e("s_waitcnt vmcnt(0)")
    e.label("ln_end")
    e("s_endpgm")
    return name, 32


class Op:
    def __init__(self, mode, srd, ld, base, perm=False):
        self.mode = mode
        self.srd = srd
        self.ld = ld
        self.base = base
        self.perm = perm


class Gemm:
    def __init__(self, e, tag, BA, BB, WA, WB, vbase=2, NS=2):
        self.e = e
        self.tag = tag
        self.BA, self.BB, self.WA, self.WB = BA, BB, WA, WB
        self.NW = WA * WB
        self.TA = BA // WA // 32
        self.TB = BB // WB // 32
        self.SA = BA * 128
        self.SB = BB * 128
        st = self.SA + self.SB
        self.NS = NS
        self.stage = st
        self.lds = st * NS
        self.nA = self.SA // 1024 // self.NW
        self.nB = self.SB // 1024 // self.NW
        assert self.nA * 1024 * self.NW == self.SA and self.nB * 1024 * self.NW == self.SB
        v = vbase
        self.v_lane = v; v += 1
        self.v_t0 = v; v += 1
        self.v_t1 = v; v += 1
        self.v_t2 = v; v += 1
        self.v_dmaA = v; v += self.nA
        self.v_dmaB = v; v += self.nB
        self.v_adrA = v; v += 4
        self.v_adrB = v; v += 4
        v = (v + 3) // 4 * 4
        self.v_fA = v; v += 2 * 4 * self.TA
        self.v_fB = v; v += 2 * 4 * self.TB
        self.v_acc = v; v += 16 * self.TA * self.TB
        self.v_end = v
        self.s_wave = 20
        self.s_cnt = 21
        self.s_offA = 22
        self.s_offB = 23
        self.s_t = 24
        self.s_wa = 28
        self.s_wb = 29
        self.s_stage = 30
        self.s_rd = 31

    def setup_common(self):
        e = self.e
        e(f"v_and_b32 v{self.v_lane}, 63, v0")
        e(f"v_lshrrev_b32 v{self.v_t0}, 6, v0")
        e("s_nop 0")
        e(f"v_readfirstlane_b32 s{self.s_wave}, v{self.v_t0}")
        e("s_nop 3")
        lw = int(math.log2(self.WA))
        e(f"s_and_b32 s{self.s_wa}, s{self.s_wave}, {self.WA - 1}")
        e(f"s_lshr_b32 s{self.s_wb}, s{self.s_wave}, {lw}")

    def setup_op(self, op, R, n, v_dma, v_adr, s_wcoord, T, lds_base):
        e = self.e
        L, t0, t1, t2 = self.v_lane, self.v_t0, self.v_t1, self.v_t2
        st = self.s_t
        if op.mode == 'k':
            for jj in range(n):
                e(f"s_mul_i32 s{st}, s{self.s_wave}, {n * 8}")
                e(f"s_add_u32 s{st}, s{st}, {jj * 8}")
                e(f"v_lshrrev_b32 v{t0}, 3, v{L}")
                e(f"v_add_u32 v{t0}, s{st}, v{t0}")
                e(f"v_bfe_u32 v{t1}, v{t0}, 1, 3")
                e(f"v_and_b32 v{t2}, 7, v{L}")
                e(f"v_xor_b32 v{t1}, v{t1}, v{t2}")
                e(f"s_mov_b32 s{st + 1}, {op.ld}")
                e(f"v_mul_lo_u32 v{t0}, v{t0}, s{st + 1}")
                e(f"v_lshl_add_u32 v{v_dma + jj}, v{t1}, 4, v{t0}")
            e(f"s_mul_i32 s{st}, s{s_wcoord}, {T * 32}")
            e(f"v_and_b32 v{t0}, 31, v{L}")
            e(f"v_add_u32 v{t0}, s{st}, v{t0}")
            e(f"v_bfe_u32 v{t1}, v{t0}, 1, 3")
            e(f"v_lshrrev_b32 v{t2}, 5, v{L}")
            e(f"v_lshlrev_b32 v{t0}, 7, v{t0}")
            for kk in range(4):
                e(f"v_add_u32 v{v_adr + kk}, {2 * kk}, v{t2}")
                e(f"v_xor_b32 v{v_adr + kk}, v{v_adr + kk}, v{t1}")
                e(f"v_lshl_add_u32 v{v_adr + kk}, v{v_adr + kk}, 4, v{t0}")
                if lds_base:
                    e(f"v_add_u32 v{v_adr + kk}, {lds_base}, v{v_adr + kk}")
        else:
            rb = 2 * R
            lrb = int(math.log2(rb))
            for jj in range(n):
                e(f"s_mul_i32 s{st}, s{self.s_wave}, {n * 1024}")
                e(f"s_add_u32 s{st}, s{st}, {jj * 1024}")
                e(f"v_lshlrev_b32 v{t0}, 4, v{L}")
                e(f"v_add_u32 v{t0}, s{st}, v{t0}")
                e(f"v_lshrrev_b32 v{t1}, {lrb}, v{t0}")
                e(f"v_and_b32 v{t0}, {rb - 1}, v{t0}")
                if rb >= 256:
                    e(f"v_and_b32 v{t2}, 3, v{t1}")
                else:
                    e(f"v_bfe_u32 v{t2}, v{t1}, 1, 1")
                e(f"v_lshlrev_b32 v{t2}, 6, v{t2}")
                e(f"v_xor_b32 v{t0}, v{t0}, v{t2}")
                e(f"s_mov_b32 s{st + 1}, {op.ld}")
                e(f"v_mul_lo_u32 v{t1}, v{t1}, s{st + 1}")
                e(f"v_add_u32 v{v_dma + jj}, v{t0}, v{t1}")
            e(f"v_lshrrev_b32 v{t0}, 5, v{L}")
            e(f"v_lshlrev_b32 v{t0}, {2 if op.perm else 3}, v{t0}")
            e(f"v_bfe_u32 v{t1}, v{L}, 2, 2")
            e(f"v_add_u32 v{t0}, v{t0}, v{t1}")
            e(f"v_lshlrev_b32 v{t0}, {lrb}, v{t0}")
            e(f"v_bfe_u32 v{t2}, v{L}, 4, 1")
            e(f"v_lshlrev_b32 v{t2}, 5, v{t2}")
            e(f"v_add_u32 v{t0}, v{t0}, v{t2}")
            e(f"v_and_b32 v{t2}, 3, v{L}")
            e(f"v_lshl_add_u32 v{t0}, v{t2}, 3, v{t0}")
            if rb < 256:
                e(f"v_bfe_u32 v{t1}, v{L}, 3, 1")
            for t in range(T):
                e(f"s_mul_i32 s{st}, s{s_wcoord}, {T}")
                e(f"s_add_u32 s{st}, s{st}, {t}")
                e(f"v_xor_b32 v{t2}, s{st}, v{t1}")
                e(f"v_lshl_add_u32 v{v_adr + t}, v{t2}, 6, v{t0}")
                if lds_base:
                    e(f"v_add_u32 v{v_adr + t}, {lds_base}, v{v_adr + t}")

    def n_adr(self, op, T):
        return 4 if op.mode == 'k' else T

    def issue_dma(self, op, n, v_dma, lds_base, s_off):
        e = self.e
        st = self.s_t
        for jj in range(n):
            e(f"s_mul_i32 s{st}, s{self.s_wave}, {n * 1024}")
            e(f"s_add_u32 s{st}, s{st}, s{self.s_stage}")
            e(f"s_add_u32 m0, s{st}, {lds_base + jj * 1024}")
            e("s_nop 0")
            e(f"buffer_load_dwordx4 v{v_dma + jj}, s[{op.srd}:{op.srd + 3}], s{s_off} offen lds")

    def read_frags(self, op, R, T, v_adr, v_f, kk):
        e = self.e
        cnt = 0
        if op.mode == 'k':
            for t in range(T):
                e(f"ds_read_b128 v[{v_f + 4 * t}:{v_f + 4 * t + 3}], v{v_adr + kk} offset:{t * 4096}")
                cnt += 1
        else:
            rb = 2 * R
            hstep = 8 if op.perm else 4
            for t in range(T):
                for half in range(2):
                    off = (kk * 16 + half * hstep) * rb
                    e(f"ds_read_b64_tr_b16 v[{v_f + 4 * t + 2 * half}:{v_f + 4 * t + 2 * half + 1}], v{v_adr + t} offset:{off}")
                    cnt += 1
        return cnt

    def zero_acc(self):
        for i in range(16 * self.TA * self.TB):
            self.e(f"v_mov_b32 v{self.v_acc + i}, 0")

    def run_seg(self, A, B, nk, first):
        e = self.e
        tag = self.tag
        NS = self.NS
        self.seg = getattr(self, "seg", 0) + 1
        lab = f"{tag}_s{self.seg}"
        self.setup_op(A, self.BA, self.nA, self.v_dmaA, self.v_adrA, self.s_wa, self.TA, 0)
        self.setup_op(B, self.BB, self.nB, self.v_dmaB, self.v_adrB, self.s_wb, self.TB, self.SA)
        stepA = 128 if A.mode == 'k' else 64 * A.ld
        stepB = 128 if B.mode == 'k' else 64 * B.ld
        nd = self.nA + self.nB
        assert nk >= NS
        e(f"s_mov_b32 s{self.s_offA}, s{A.base}")
        e(f"s_mov_b32 s{self.s_offB}, s{B.base}")
        e(f"s_mov_b32 s{self.s_stage}, 0")
        e(f"s_mov_b32 s{self.s_rd}, 0")
        if not first:
            e("s_barrier")

        st4 = self.s_t + 3

        def pieces():
            out = []

            def first():
                e(f"s_mul_i32 s{st4}, s{self.s_wave}, {self.nA * 1024}")
                e(f"s_add_u32 s{st4}, s{st4}, s{self.s_stage}")
            for jj in range(self.nA):
                def f(jj=jj):
                    if jj == 0:
                        first()
                    e(f"s_add_u32 m0, s{st4}, {jj * 1024}")
                    e("s_nop 0")
                    e(f"buffer_load_dwordx4 v{self.v_dmaA + jj}, s[{A.srd}:{A.srd + 3}], s{self.s_offA} offen lds")
                out.append(f)
            for jj in range(self.nB):
                def f(jj=jj):
                    if jj == 0:
                        e(f"s_mul_i32 s{st4}, s{self.s_wave}, {self.nB * 1024}")
                        e(f"s_add_u32 s{st4}, s{st4}, s{self.s_stage}")
                    e(f"s_add_u32 m0, s{st4}, {self.SA + jj * 1024}")
                    e("s_nop 0")
                    e(f"buffer_load_dwordx4 v{self.v_dmaB + jj}, s[{B.srd}:{B.srd + 3}], s{self.s_offB} offen lds")
                    if jj == self.nB - 1:
                        e(f"s_add_u32 s{self.s_offA}, s{self.s_offA}, {stepA}")
                        e(f"s_add_u32 s{self.s_offB}, s{self.s_offB}, {stepB}")
                        e(f"s_add_u32 s{self.s_stage}, s{self.s_stage}, {self.stage}")
                        e(f"s_cmp_eq_u32 s{self.s_stage}, {self.stage * NS}")
                        e(f"s_cselect_b32 s{self.s_stage}, 0, s{self.s_stage}")
                out.append(f)
            return out

        for i in range(NS - 1):
            for f in pieces():
                f()
        szA = 4 * self.TA
        szB = 4 * self.TB

        def reads(kk):
            buf = kk & 1
            c = self.read_frags(A, self.BA, self.TA, self.v_adrA, self.v_fA + buf * szA, kk)
            c += self.read_frags(B, self.BB, self.TB, self.v_adrB, self.v_fB + buf * szB, kk)
            return c

        early = NS >= 3

        def compute(pcs, last=False):
            pcs = list(pcs)
            nm = self.TA * self.TB
            per = -(-len(pcs) // 3) if pcs else 0
            gap = max(1, nm // max(per, 1))
            if not early:
                reads(0)
            for kk in range(4):
                nxt = reads(kk + 1) if kk < 3 else 0
                e(f"s_waitcnt lgkmcnt({nxt})")
                buf = kk & 1
                i = 0
                used = 0
                for ta in range(self.TA):
                    for tb in range(self.TB):
                        d = self.v_acc + 16 * (ta * self.TB + tb)
                        a = self.v_fA + buf * szA + 4 * ta
                        b = self.v_fB + buf * szB + 4 * tb
                        e(f"v_mfma_f32_32x32x16_bf16 v[{d}:{d + 15}], v[{a}:{a + 3}], v[{b}:{b + 3}], v[{d}:{d + 15}]")
                        i += 1
                        if pcs and used < per and (i % gap == 0):
                            pcs.pop(0)()
                            used += 1
                if kk == 2:
                    while pcs:
                        pcs.pop(0)()
            st = self.s_t
            e(f"s_add_u32 s{st}, s{self.s_rd}, {self.stage}")
            e(f"s_cmp_eq_u32 s{st}, {self.stage * NS}")
            e(f"s_cselect_b32 s{st}, 0, s{st}")
            e(f"s_sub_u32 s{st + 1}, s{st}, s{self.s_rd}")
            e(f"s_mov_b32 s{self.s_rd}, s{st}")
            for i in range(self.n_adr(A, self.TA)):
                e(f"v_add_u32 v{self.v_adrA + i}, s{st + 1}, v{self.v_adrA + i}")
            for i in range(self.n_adr(B, self.TB)):
                e(f"v_add_u32 v{self.v_adrB + i}, s{st + 1}, v{self.v_adrB + i}")
            if early and not last:
                reads(0)

        if early:
            e(f"s_waitcnt vmcnt({(NS - 2) * nd})")
            e("s_barrier")
            reads(0)
        lag = 1 if early else 0
        e(f"s_mov_b32 s{self.s_cnt}, {nk - (NS - 1)}")
        e.label(f"{lab}_loop")
        e(f"s_waitcnt vmcnt({(NS - 2 - lag) * nd})")
        e("s_barrier")
        compute(pieces())
        e(f"s_sub_u32 s{self.s_cnt}, s{self.s_cnt}, 1")
        e(f"s_cmp_lg_u32 s{self.s_cnt}, 0")
        e(f"s_cbranch_scc1 {lab}_loop")
        for i in range(NS - 1):
            e(f"s_waitcnt vmcnt({max(NS - 2 - i - lag, 0) * nd})")
            e("s_barrier")
            compute([], last=(i == NS - 2))

    def out_addr(self, v_dst, s_rowA0, s_colB0, ld_out):
        e = self.e
        L, t0, st = self.v_lane, self.v_t0, self.s_t
        e(f"s_mul_i32 s{st}, s{self.s_wb}, {self.TB * 32}")
        e(f"s_add_u32 s{st}, s{st}, s{s_colB0}")
        e(f"v_and_b32 v{t0}, 31, v{L}")
        e(f"v_add_u32 v{t0}, s{st}, v{t0}")
        e(f"s_mov_b32 s{st + 1}, {ld_out}")
        e(f"v_mul_lo_u32 v{t0}, v{t0}, s{st + 1}")
        e(f"s_mul_i32 s{st}, s{self.s_wa}, {self.TA * 32}")
        e(f"s_add_u32 s{st}, s{st}, s{s_rowA0}")
        e(f"s_lshl_b32 s{st}, s{st}, 1")
        e(f"v_add_u32 v{t0}, s{st}, v{t0}")
        e(f"v_lshrrev_b32 v{v_dst}, 5, v{L}")
        return t0

    def epi_tile(self, srd_out, s_base):
        e = self.e
        va, t0, L = self.v_t1, self.v_t0, self.v_lane
        e(f"v_and_b32 v{t0}, 31, v{L}")
        e(f"v_lshlrev_b32 v{t0}, 8, v{t0}")
        e(f"v_add_u32 v{t0}, s{s_base}, v{t0}")
        e(f"v_lshrrev_b32 v{va}, 5, v{L}")
        e(f"v_lshl_add_u32 v{va}, v{va}, 4, v{t0}")
        e("s_nop 15")
        e("s_nop 7")
        pk = self.v_fA
        nb = 0
        for tb in range(self.TB):
            e(f"s_mov_b32 s{self.s_t}, {tb * 8192}")
            for ta in range(self.TA):
                d = self.v_acc + 16 * (ta * self.TB + tb)
                p = pk + 8 * (nb & 1)
                nb += 1
                for i in range(8):
                    e(f"v_cvt_pk_bf16_f32 v{p + i}, v{d + 2 * i}, v{d + 2 * i + 1}")
                e(f"buffer_store_dwordx4 v[{p}:{p + 3}], v{va}, s[{srd_out}:{srd_out + 3}], s{self.s_t} offen offset:{ta * 64}")
                e(f"buffer_store_dwordx4 v[{p + 4}:{p + 7}], v{va}, s[{srd_out}:{srd_out + 3}], s{self.s_t} offen offset:{ta * 64 + 32}")
                e("s_nop 1")

    def epi_perm(self, srd_out, s_rowA0, s_colB0, ld_out):
        e = self.e
        va = self.v_t1
        t0 = self.out_addr(va, s_rowA0, s_colB0, ld_out)
        e(f"v_lshl_add_u32 v{va}, v{va}, 4, v{t0}")
        e("s_nop 15")
        e("s_nop 7")
        pk = self.v_fA
        nb = 0
        for ta in range(self.TA):
            for tb in range(self.TB):
                d = self.v_acc + 16 * (ta * self.TB + tb)
                p = pk + 8 * (nb & 1)
                nb += 1
                for i in range(8):
                    e(f"v_cvt_pk_bf16_f32 v{p + i}, v{d + 2 * i}, v{d + 2 * i + 1}")
                off = tb * 32 * ld_out + ta * 64
                assert off + 32 < 4096 or True
                if off + 32 < 4096:
                    e(f"buffer_store_dwordx4 v[{p}:{p + 3}], v{va}, s[{srd_out}:{srd_out + 3}], 0 offen offset:{off}")
                    e(f"buffer_store_dwordx4 v[{p + 4}:{p + 7}], v{va}, s[{srd_out}:{srd_out + 3}], 0 offen offset:{off + 32}")
                else:
                    e(f"s_mov_b32 s{self.s_t}, {tb * 32 * ld_out}")
                    e(f"buffer_store_dwordx4 v[{p}:{p + 3}], v{va}, s[{srd_out}:{srd_out + 3}], s{self.s_t} offen offset:{ta * 64}")
                    e(f"buffer_store_dwordx4 v[{p + 4}:{p + 7}], v{va}, s[{srd_out}:{srd_out + 3}], s{self.s_t} offen offset:{ta * 64 + 32}")
                e("s_nop 1")


P1_NU = 35
P1_NQ = 128


def gen_p1(e):
    name = "proj_kernel"
    kernel_header(e, name)
    ntot = P1_NU + 3 * P1_NQ
    e(f"s_cmp_ge_u32 s2, {ntot}")
    e("s_cbranch_scc1 p1_end")
    e(f"s_load_dwordx2 s[32:33], s[0:1], {KA['ckv']}")
    e(f"s_load_dwordx2 s[34:35], s[0:1], {KA['wq']}")
    e(f"s_load_dwordx2 s[36:37], s[0:1], {KA['wuk']}")
    e(f"s_load_dwordx2 s[38:39], s[0:1], {KA['wuv']}")
    e(f"s_load_dwordx2 s[40:41], s[0:1], {KA['w1']}")
    e(f"s_load_dwordx2 s[42:43], s[0:1], {KA['b1']}")
    e(f"s_load_dwordx2 s[44:45], s[0:1], {KA['ws']}")
    e("s_waitcnt lgkmcnt(0)")
    e(f"s_cmp_lt_u32 s2, {P1_NU}")
    e("s_cbranch_scc1 p1_u")
    e(f"s_cmp_lt_u32 s2, {P1_NU + P1_NQ}")
    e("s_cbranch_scc1 p1_q")
    e(f"s_cmp_lt_u32 s2, {P1_NU + 2 * P1_NQ}")
    e("s_cbranch_scc1 p1_k")
    e("s_branch p1_v")
    vmax = 0

    for tag, wptr, K, xsrc, xld, wsoff, id0 in (("p1_q", 34, 640, 'xn', 1280, WS_Q, P1_NU),
                                                 ("p1_k", 36, 512, 'ckv', 1024, WS_K, P1_NU + P1_NQ)):
        e.label(tag)
        g = Gemm(e, tag, 256, 256, 2, 4)
        vmax = max(vmax, g.v_end)
        make_srd(e, 4, wptr, K * 8192)
        if xsrc == 'xn':
            make_srd(e, 8, 44, 2048 * 1280, WS_XN)
        else:
            make_srd(e, 8, 32, 2048 * 1024)
        make_srd(e, 12, 44, 2048 * 8192, wsoff)
        e(f"s_sub_u32 s3, s2, {id0}")
        e("s_and_b32 s46, s3, 15")
        e("s_lshr_b32 s47, s3, 4")
        e("s_lshl_b32 s46, s46, 8")
        e("s_lshl_b32 s47, s47, 8")
        e("s_lshl_b32 s48, s46, 1")
        e(f"s_mul_i32 s49, s47, {xld}")
        g.setup_common()
        g.zero_acc()
        g.run_seg(Op('t', 4, 8192, 48), Op('k', 8, xld, 49), K // 64, True)
        e(f"s_lshr_b32 s50, s46, 7")
        e(f"s_add_u32 s50, s50, s{g.s_wa}")
        e("s_lshl_b32 s50, s50, 19")
        e(f"s_lshl_b32 s51, s{g.s_wb}, 6")
        e("s_add_u32 s51, s51, s47")
        e("s_lshl_b32 s51, s51, 8")
        e("s_add_u32 s50, s50, s51")
        g.epi_tile(12, 50)
        e("s_endpgm")

    e.label("p1_v")
    g = Gemm(e, "p1_v", 256, 256, 2, 4)
    vmax = max(vmax, g.v_end)
    make_srd(e, 4, 32, 2048 * 1024)
    make_srd(e, 8, 38, 512 * 8192)
    make_srd(e, 12, 44, 4096 * 4096, WS_VT)
    e(f"s_sub_u32 s3, s2, {P1_NU + 2 * P1_NQ}")
    e("s_and_b32 s46, s3, 7")
    e("s_lshr_b32 s47, s3, 3")
    e("s_lshl_b32 s46, s46, 8")
    e("s_lshl_b32 s47, s47, 8")
    e("s_mul_i32 s48, s46, 1024")
    e("s_lshl_b32 s49, s47, 1")
    g.setup_common()
    g.zero_acc()
    g.run_seg(Op('k', 4, 1024, 48), Op('t', 8, 8192, 49), 8, True)
    e("s_lshr_b32 s50, s47, 7")
    e(f"s_lshr_b32 s51, s{g.s_wb}, 1")
    e("s_add_u32 s50, s50, s51")
    e("s_lshl_b32 s50, s50, 19")
    e("s_lshr_b32 s51, s46, 7")
    e(f"s_add_u32 s51, s51, s{g.s_wa}")
    e("s_lshl_b32 s51, s51, 15")
    e("s_add_u32 s50, s50, s51")
    e(f"s_and_b32 s51, s{g.s_wb}, 1")
    e("s_lshl_b32 s51, s51, 14")
    e("s_add_u32 s50, s50, s51")
    g.epi_tile(12, 50)
    e("s_endpgm")

    e.label("p1_u")
    g = Gemm(e, "p1_u", 256, 128, 4, 2)
    vmax = max(vmax, g.v_end)
    make_srd(e, 4, 40, 2048 * 3456)
    make_srd(e, 8, 44, 2048 * 1280, WS_H)
    make_srd(e, 12, 44, 640 * 3456, WS_U)
    make_srd(e, 16, 42, 3456)
    e("s_mul_i32 s46, s2, 37")
    e("s_lshr_b32 s47, s46, 8")
    e("s_mul_i32 s46, s47, 7")
    e("s_sub_u32 s46, s2, s46")
    e("s_lshl_b32 s46, s46, 8")
    e("s_lshl_b32 s47, s47, 7")
    e("s_lshl_b32 s48, s46, 1")
    e("s_lshl_b32 s49, s47, 1")
    g.setup_common()
    g.zero_acc()
    g.run_seg(Op('t', 4, 3456, 48), Op('t', 8, 1280, 49), 32, True)
    va = g.v_t1
    t0 = g.out_addr(va, 46, 47, 3456)
    e(f"v_lshl_add_u32 v{va}, v{va}, 4, v{t0}")
    vb = g.v_t2
    e(f"s_mul_i32 s24, s{g.s_wa}, {g.TA * 32}")
    e("s_add_u32 s50, s24, s46")
    e("s_lshl_b32 s24, s50, 1")
    e(f"v_lshrrev_b32 v{vb}, 5, v{g.v_lane}")
    e(f"v_lshlrev_b32 v{vb}, 3, v{vb}")
    e(f"v_add_u32 v{vb}, s24, v{vb}")
    e("s_nop 15")
    e("s_nop 7")
    e("s_mov_b32 s51, 0xffff0000")
    e("s_mov_b32 s52, 0x3d372713")
    e("s_mov_b32 s53, 0xc0135761")
    bias = g.v_fA
    bf = g.v_fA + 8
    tmp = g.v_fA + 24
    for ta in range(g.TA):
        e(f"s_add_u32 s24, s50, {ta * 32}")
        e("s_cmp_ge_u32 s24, 1728")
        e(f"s_cbranch_scc1 p1_u_skip{ta}")
        for q in range(4):
            e(f"buffer_load_dwordx2 v[{bias + 2 * q}:{bias + 2 * q + 1}], v{vb}, s[16:19], 0 offen offset:{ta * 64 + q * 16}")
        e("s_waitcnt vmcnt(0)")
        for i in range(8):
            e(f"v_lshlrev_b32 v{bf + 2 * i}, 16, v{bias + i}")
            e(f"v_and_b32 v{bf + 2 * i + 1}, s51, v{bias + i}")
        for tb in range(g.TB):
            d = g.v_acc + 16 * (ta * g.TB + tb)
            for i in range(16):
                x = d + i
                e(f"v_add_f32 v{x}, v{x}, v{bf + i}")
                e(f"v_mul_f32 v{tmp}, v{x}, v{x}")
                e(f"v_fma_f32 v{tmp}, v{tmp}, s52, 1.0")
                e(f"v_mul_f32 v{tmp}, v{tmp}, v{x}")
                e(f"v_mul_f32 v{tmp}, s53, v{tmp}")
                e(f"v_exp_f32 v{tmp}, v{tmp}")
                e("s_nop 0")
                e(f"v_add_f32 v{tmp}, 1.0, v{tmp}")
                e(f"v_rcp_f32 v{tmp}, v{tmp}")
                e("s_nop 0")
                e(f"v_mul_f32 v{x}, v{x}, v{tmp}")
            p = bias
            for i in range(8):
                e(f"v_cvt_pk_bf16_f32 v{p + i}, v{d + 2 * i}, v{d + 2 * i + 1}")
            e(f"s_mov_b32 s24, {tb * 32 * 3456}")
            e(f"buffer_store_dwordx4 v[{p}:{p + 3}], v{va}, s[12:15], s24 offen offset:{ta * 64}")
            e(f"buffer_store_dwordx4 v[{p + 4}:{p + 7}], v{va}, s[12:15], s24 offen offset:{ta * 64 + 32}")
            e("s_nop 1")
        e.label(f"p1_u_skip{ta}")
    e.label("p1_end")
    e("s_endpgm")
    return name, vmax, ntot, 131072


def gen_attn(e):
    name = "attn_kernel"
    kernel_header(e, name)
    e("s_cmp_ge_u32 s2, 256")
    e("s_cbranch_scc1 at_end")
    e(f"s_load_dwordx2 s[44:45], s[0:1], {KA['ws']}")
    e(f"s_load_dwordx2 s[60:61], s[0:1], {KA['dbg']}")
    nst = [0]
    if 'wgt' in XP:
        e("s_memrealtime s[90:91]")

    def stamp():
        if 'stamp' in XP and nst[0] < 12:
            e(f"s_memtime s[{64 + 2 * nst[0]}:{65 + 2 * nst[0]}]")
            nst[0] += 1
    vL, vt0, vt1, vt2 = 1, 2, 3, 4
    vdK, vdV = 6, 10
    vaK, vaV = 14, 22
    vm, vl, vmask, vst = 26, 27, 28, 29
    valpha, vmc, vx0, vx1 = 30, 31, 32, 33
    vcc2 = 34
    vQ = 36
    vS = 68
    vP = 100
    vF0 = 116
    vF1 = 148
    vO = 180
    VEND = 244
    sW, sG, sQS, sH, sJ, sQB, sIT, sKoff, sVoff, sStage, sT, sC, sPass, sQ0 = 20, 21, 22, 23, 24, 25, 26, 27, 28, 29, 30, 34, 35, 36
    sVst, sKrd, sVrd = 37, 38, 39
    e(f"v_and_b32 v{vL}, 63, v0")
    e(f"v_lshrrev_b32 v{vt0}, 6, v0")
    e("s_nop 0")
    e(f"v_readfirstlane_b32 s{sW}, v{vt0}")
    e("s_nop 3")
    e(f"s_lshr_b32 s{sG}, s{sW}, 2")
    e(f"s_and_b32 s{sQS}, s{sW}, 3")
    e("s_and_b32 s3, s2, 7")
    e(f"s_lshr_b32 s{sT}, s2, 3")
    e(f"s_lshr_b32 s{sH}, s{sT}, 3")
    e(f"s_lshl_b32 s3, s3, 2")
    e(f"s_add_u32 s{sH}, s{sH}, s3")
    e(f"s_and_b32 s{sJ}, s{sT}, 7")
    e("s_waitcnt lgkmcnt(0)")
    make_srd(e, 4, 44, 2048 * 8192, WS_Q)
    make_srd(e, 8, 44, 2048 * 8192, WS_K)
    make_srd(e, 12, 44, 4096 * 4096, WS_VT)
    make_srd(e, 16, 44, 2048 * 8192, WS_CTX)
    e(f"s_mov_b32 s{sC}, 0x3e0293ee")
    for jj in range(4):
        e(f"s_lshl_b32 s{sT}, s{sW}, 4")
        e(f"s_add_u32 s{sT}, s{sT}, {jj * 4}")
        e(f"v_lshrrev_b32 v{vt0}, 4, v{vL}")
        e(f"v_add_u32 v{vt0}, s{sT}, v{vt0}")
        e(f"v_xor_b32 v{vt1}, v{vt0}, v{vL}")
        e(f"v_and_b32 v{vt1}, 15, v{vt1}")
        e(f"v_lshlrev_b32 v{vt1}, 4, v{vt1}")
        e(f"v_lshl_add_u32 v{vdK + jj}, v{vt0}, 8, v{vt1}")
        if jj:
            e(f"v_subrev_u32 v{vdK + jj}, {jj * 1024}, v{vdK + jj}")
        e(f"v_mov_b32 v{vdV + jj}, v{vdK + jj}")
    e(f"v_and_b32 v{vt0}, 31, v{vL}")
    e(f"v_lshrrev_b32 v{vt1}, 5, v{vL}")
    e(f"v_and_b32 v{vt2}, 15, v{vL}")
    e(f"v_xor_b32 v{vt2}, v{vt2}, v{vt1}")
    e(f"v_lshlrev_b32 v{vt2}, 4, v{vt2}")
    e(f"s_lshl_b32 s{sT}, s{sG}, 6")
    e(f"v_add_u32 v{vx0}, s{sT}, v{vt0}")
    e(f"v_lshl_add_u32 v{vx0}, v{vx0}, 8, v{vt2}")
    for kk in range(8):
        e(f"v_xor_b32 v{vaK + kk}, {kk * 32}, v{vx0}")
    e(f"v_lshl_add_u32 v{vx0}, v{vt0}, 8, v{vt2}")
    e(f"v_add_u32 v{vx0}, 65536, v{vx0}")
    e(f"s_lshl_b32 s{sT}, s{sG}, 7")
    e(f"v_xor_b32 v{vx0}, s{sT}, v{vx0}")
    for kk in range(4):
        e(f"v_xor_b32 v{vaV + kk}, {kk * 32}, v{vx0}")
    e(f"s_lshl_b32 s{sT}, s{sQS}, 5")
    e(f"s_lshl_b32 s{sT + 1}, s{sG}, 6")
    e(f"s_sub_u32 s{sT}, s{sT}, s{sT + 1}")
    e(f"v_add_u32 v{vmask}, s{sT}, v{vt0}")
    e(f"v_lshlrev_b32 v{vt1}, 2, v{vt1}")
    e(f"v_sub_u32 v{vmask}, v{vmask}, v{vt1}")
    e(f"s_mov_b32 s{sPass}, 0")
    e(f"v_mov_b32 v{vcc2}, s{sC}")
    e(f"v_mov_b32 v{vcc2 + 1}, s{sC}")
    e(f"s_sub_u32 s{sQB}, 15, s{sJ}")
    e.label("at_qblock")
    e(f"s_lshl_b32 s{sQ0}, s{sQB}, 7")
    e(f"s_lshl_b32 s{sT}, s{sQS}, 5")
    e(f"s_add_u32 s{sT}, s{sT}, s{sQ0}")
    e(f"v_and_b32 v{vt0}, 31, v{vL}")
    e(f"v_add_u32 v{vt0}, s{sT}, v{vt0}")
    e(f"v_lshrrev_b32 v{vt1}, 5, v{vL}")
    e(f"v_lshlrev_b32 v{vt1}, 4, v{vt1}")
    e(f"v_lshl_add_u32 v{vt2}, v{vt0}, 8, v{vt1}")
    e(f"v_lshl_add_u32 v{vt0}, v{vt0}, 13, v{vt1}")
    e(f"s_lshl_b32 s{sT}, s{sH}, 8")
    e(f"v_add_u32 v{vst}, s{sT}, v{vt0}")
    e(f"s_lshl_b32 s{sT}, s{sH}, 19")
    for kk in range(8):
        e(f"buffer_load_dwordx4 v[{vQ + 4 * kk}:{vQ + 4 * kk + 3}], v{vt2}, s[4:7], s{sT} offen offset:{kk * 32}")
    e(f"v_mov_b32 v{vm}, 0xf149f2ca")
    e(f"v_mov_b32 v{vl}, 0")
    for i in range(64):
        e(f"v_mov_b32 v{vO + i}, 0")
    e(f"s_lshl_b32 s{sKoff}, s{sH}, 19")
    e(f"s_lshl_b32 s{sVoff}, s{sH}, 19")
    e(f"s_mov_b32 s{sStage}, 0")
    e(f"s_mov_b32 s{sVst}, 0")
    e(f"s_mov_b32 s{sKrd}, 0")
    e(f"s_mov_b32 s{sVrd}, 0")
    e(f"s_mov_b32 s{sIT}, 0")

    sDK, sDV, sD = 40, 41, 42

    def dma_setup():
        e(f"s_lshl_b32 s{sT}, s{sW}, 12")
        e(f"s_add_u32 s{sDK}, s{sT}, s{sStage}")
        e(f"s_add_u32 s{sDV}, s{sT}, s{sVst}")
        e(f"s_add_u32 s{sDV}, s{sDV}, 65536")

    def dma_piece(i):
        jj = i & 3
        if i == 0:
            e(f"s_mov_b32 m0, s{sDK}")
            e("s_nop 0")
        if i == 4:
            e(f"s_mov_b32 m0, s{sDV}")
            e("s_nop 0")
        if i < 4:
            e(f"buffer_load_dwordx4 v{vdK + jj}, s[8:11], s{sKoff} offen offset:{jj * 1024} lds")
        else:
            e(f"buffer_load_dwordx4 v{vdV + jj}, s[12:15], s{sVoff} offen offset:{jj * 1024} lds")

    def dma_advance():
        e(f"s_add_u32 s{sKoff}, s{sKoff}, 32768")
        e(f"s_add_u32 s{sVoff}, s{sVoff}, 32768")
        e(f"s_xor_b32 s{sStage}, s{sStage}, 32768")
        e(f"s_add_u32 s{sVst}, s{sVst}, 32768")
        e(f"s_cmp_eq_u32 s{sVst}, 98304")
        e(f"s_cselect_b32 s{sVst}, 0, s{sVst}")

    def dma():
        dma_setup()
        for i in range(8):
            dma_piece(i)
        dma_advance()

    pcnt = [0]

    def cond_piece(i):
        pcnt[0] += 1
        lab = f"at_np{pcnt[0]}"
        e(f"s_cmp_eq_u32 s{sD}, 0")
        e(f"s_cbranch_scc1 {lab}")
        dma_piece(i)
        if i == 7:
            dma_advance()
        e.label(lab)

    def top(tag):
        e("s_waitcnt vmcnt(0)")
        e("s_barrier")
        e(f"s_cmp_lg_u32 s{sIT}, s{sQB}")
        e(f"s_cselect_b32 s{sD}, 1, 0")
        dma_setup()

    def kreads(t):
        F = vF0 if t == 0 else vF1
        for kk in range(8):
            e(f"ds_read_b128 v[{F + 4 * kk}:{F + 4 * kk + 3}], v{vaK + kk} offset:{t * 8192}")

    def qk_mfma(t, pieces=()):
        F = vF0 if t == 0 else vF1
        d = vS + 16 * t
        pieces = list(pieces)
        for kk in range(8):
            c = "0" if kk == 0 else f"v[{d}:{d + 15}]"
            e(f"v_mfma_f32_32x32x16_bf16 v[{d}:{d + 15}], v[{F + 4 * kk}:{F + 4 * kk + 3}], v[{vQ + 4 * kk}:{vQ + 4 * kk + 3}], {c}")
            if pieces and kk & 1:
                cond_piece(pieces.pop(0))

    def k_adv():
        for i in range(8):
            e(f"v_xor_b32 v{vaK + i}, 0x8000, v{vaK + i}")
        e(f"s_xor_b32 s{sKrd}, s{sKrd}, 32768")

    def vreads():
        for dt in range(4):
            F = (vF0 if dt < 2 else vF1) + 16 * (dt & 1)
            for kk in range(4):
                e(f"ds_read_b128 v[{F + 4 * kk}:{F + 4 * kk + 3}], v{vaV + kk} offset:{dt * 8192}")
        e(f"s_add_u32 s{sT}, s{sVrd}, 32768")
        e(f"s_cmp_eq_u32 s{sT}, 98304")
        e(f"s_cselect_b32 s{sT}, 0, s{sT}")
        e(f"s_sub_u32 s{sT + 1}, s{sT}, s{sVrd}")
        e(f"s_mov_b32 s{sVrd}, s{sT}")
        for i in range(4):
            e(f"v_add_u32 v{vaV + i}, s{sT + 1}, v{vaV + i}")

    def pv_mfma(dts, pieces=()):
        pieces = list(pieces)
        for dt in dts:
            F = (vF0 if dt < 2 else vF1) + 16 * (dt & 1)
            d = vO + 16 * dt
            for kk in range(4):
                e(f"v_mfma_f32_32x32x16_bf16 v[{d}:{d + 15}], v[{F + 4 * kk}:{F + 4 * kk + 3}], v[{vP + 4 * kk}:{vP + 4 * kk + 3}], v[{d}:{d + 15}]")
                if pieces and kk & 1:
                    cond_piece(pieces.pop(0))

    def mask():
        e(f"v_mov_b32 v{vx0}, 0xf149f2ca")
        for t in range(2):
            for r in range(16):
                cst = t * 32 + (r & 3) + 8 * (r >> 2)
                e(f"v_cmp_gt_i32 vcc, {cst}, v{vmask}")
                e("s_nop 1")
                e(f"v_cndmask_b32 v{vS + 16 * t + r}, v{vS + 16 * t + r}, v{vx0}, vcc")

    def softmax(tag, with_dma=False):
        e("s_nop 0" if "noprio" in XP else ("s_setprio 0" if "invprio" in XP else "s_setprio 1"))
        e(f"v_max3_f32 v{vx0}, v{vS}, v{vS + 1}, v{vS + 2}")
        for i in range(3, 31, 2):
            e(f"v_max3_f32 v{vx0}, v{vx0}, v{vS + i}, v{vS + i + 1}")
        e(f"v_max_f32 v{vx0}, v{vx0}, v{vS + 31}")
        e(f"v_mov_b32 v{vx1}, v{vx0}")
        e("s_nop 1")
        e(f"v_permlane32_swap_b32 v{vx0}, v{vx1}")
        e("s_nop 1")
        e(f"v_max3_f32 v{vx0}, v{vx0}, v{vx1}, v{vm}")
        e(f"v_sub_f32 v{valpha}, v{vm}, v{vx0}")
        e(f"v_mul_f32 v{valpha}, s{sC}, v{valpha}")
        e(f"v_cmp_gt_f32 vcc, -8.0, v{valpha}")
        e("s_nop 4")
        e(f"s_cbranch_vccz {tag}_norescale")
        e(f"v_exp_f32 v{valpha}, v{valpha}")
        e(f"v_mov_b32 v{vm}, v{vx0}")
        e(f"v_mul_f32 v{vl}, v{vl}, v{valpha}")
        for i in range(64):
            e(f"v_mul_f32 v{vO + i}, v{vO + i}, v{valpha}")
        e.label(f"{tag}_norescale")
        e(f"v_mul_f32 v{vx0}, s{sC}, v{vm}")
        e(f"v_sub_f32 v{vx0}, 0, v{vx0}")
        e(f"v_mov_b32 v{vx1}, v{vx0}")
        for i in range(16):
            r = vS + 2 * i
            e(f"v_pk_fma_f32 v[{r}:{r + 1}], v[{r}:{r + 1}], v[{vcc2}:{vcc2 + 1}], v[{vx0}:{vx1}]")
            e(f"v_exp_f32 v{r}, v{r}")
            e(f"v_exp_f32 v{r + 1}, v{r + 1}")
        vreads()
        e(f"v_pk_add_f32 v[{vx0}:{vx1}], v[{vS}:{vS + 1}], v[{vS + 2}:{vS + 3}]")
        for i in range(2, 16):
            e(f"v_pk_add_f32 v[{vx0}:{vx1}], v[{vx0}:{vx1}], v[{vS + 2 * i}:{vS + 2 * i + 1}]")
        e(f"v_add_f32 v{vl}, v{vl}, v{vx0}")
        e(f"v_add_f32 v{vl}, v{vl}, v{vx1}")
        for i in range(16):
            e(f"v_cvt_pk_bf16_f32 v{vP + i}, v{vS + 2 * i}, v{vS + 2 * i + 1}")
        e("s_nop 0" if "noprio" in XP else ("s_setprio 1" if "invprio" in XP else "s_setprio 0"))

    def pv_qk(with_pv, with_dma):
        pc = list(range(8)) if with_dma else []
        if with_pv:
            e("s_waitcnt lgkmcnt(0)")
            e("s_nop 1")
            pv_mfma((0, 1), pc[0:4])
            kreads(0)
            pv_mfma((2, 3), pc[4:8])
            kreads(1)
            e("s_waitcnt lgkmcnt(8)")
            qk_mfma(0)
            e("s_waitcnt lgkmcnt(0)")
            qk_mfma(1)
        else:
            kreads(0)
            kreads(1)
            e("s_waitcnt lgkmcnt(8)")
            qk_mfma(0, pc[0:4])
            e("s_waitcnt lgkmcnt(0)")
            qk_mfma(1, pc[4:8])
        k_adv()

    def pv_only():
        e("s_waitcnt lgkmcnt(0)")
        e("s_nop 1")
        pv_mfma((0, 1, 2, 3))

    dma()
    e(f"s_cmp_eq_u32 s{sG}, 1")
    e("s_cbranch_scc1 at1_loop")
    e.label("at0_loop")
    stamp()
    top("at0")
    stamp()
    e(f"s_cmp_eq_u32 s{sIT}, 0")
    e("s_cbranch_scc1 at0_first")
    pv_qk(True, True)
    e("s_branch at0_sm")
    e.label("at0_first")
    pv_qk(False, True)
    e.label("at0_sm")
    stamp()
    e("s_nop 15")
    e(f"s_cmp_lg_u32 s{sIT}, s{sQB}")
    e("s_cbranch_scc1 at0_nomask")
    mask()
    e.label("at0_nomask")
    softmax("at0")
    stamp()
    if 'stamp' in XP:
        e("s_waitcnt lgkmcnt(0)")
        e(f"s_cmp_eq_u32 s{sIT}, 5")
        e("s_cbranch_scc0 at0_nost")
        e("s_cmp_eq_u32 s2, 0")
        e("s_cbranch_scc0 at0_nost")
        e(f"s_cmp_eq_u32 s{sW}, 0")
        e("s_cbranch_scc0 at0_nost")
        e(f"v_mov_b32 v{vx0}, 0")
        for i in range(6):
            e(f"v_mov_b32 v{vx1}, s{64 + 2 * i}")
            e(f"global_store_dword v{vx0}, v{vx1}, s[60:61] offset:{4 * i}")
            e("s_nop 1")
        e.label("at0_nost")
    e(f"s_add_u32 s{sIT}, s{sIT}, 1")
    e(f"s_cmp_le_u32 s{sIT}, s{sQB}")
    e("s_cbranch_scc1 at0_loop")
    pv_only()
    e("s_branch at_done")
    e.label("at1_loop")
    nst[0] = 0
    stamp()
    top("at1")
    stamp()
    e(f"s_cmp_eq_u32 s{sIT}, 0")
    e("s_cbranch_scc1 at1_first")
    softmax("at1", with_dma=False)
    stamp()
    e(f"s_cmp_lg_u32 s{sIT}, s{sQB}")
    e("s_cbranch_scc1 at1_doqk")
    e(f"s_cmp_lt_u32 s{sQS}, 2")
    e("s_cbranch_scc0 at1_doqk")
    pv_only()
    e("s_branch at_done")
    e.label("at1_doqk")
    pv_qk(True, True)
    e("s_branch at1_next")
    e.label("at1_first")
    for i in range(8):
        cond_piece(i)
    e(f"s_cmp_lg_u32 s{sIT}, s{sQB}")
    e("s_cbranch_scc1 at1_doqk0")
    e(f"s_cmp_lt_u32 s{sQS}, 2")
    e("s_cbranch_scc1 at_done")
    e.label("at1_doqk0")
    pv_qk(False, False)
    e.label("at1_next")
    stamp()
    if 'stamp' in XP:
        e("s_waitcnt lgkmcnt(0)")
        e(f"s_cmp_eq_u32 s{sIT}, 5")
        e("s_cbranch_scc0 at1_nost")
        e("s_cmp_eq_u32 s2, 0")
        e("s_cbranch_scc0 at1_nost")
        e(f"s_cmp_eq_u32 s{sW}, 4")
        e("s_cbranch_scc0 at1_nost")
        e(f"v_mov_b32 v{vx0}, 0")
        for i in range(6):
            e(f"v_mov_b32 v{vx1}, s{64 + 2 * i}")
            e(f"global_store_dword v{vx0}, v{vx1}, s[60:61] offset:{24 + 4 * i}")
            e("s_nop 1")
        e.label("at1_nost")
    e(f"s_add_u32 s{sIT}, s{sIT}, 1")
    e(f"s_cmp_le_u32 s{sIT}, s{sQB}")
    e("s_cbranch_scc1 at1_loop")
    e("s_nop 15")
    mask()
    softmax("at1b")
    pv_only()
    e.label("at_done")
    e(f"s_sub_u32 s{sT}, 0, s{sKrd}")
    for i in range(8):
        e(f"v_add_u32 v{vaK + i}, s{sT}, v{vaK + i}")
    e(f"s_sub_u32 s{sT}, 0, s{sVrd}")
    for i in range(4):
        e(f"v_add_u32 v{vaV + i}, s{sT}, v{vaV + i}")
    e("s_nop 15")
    e("s_nop 7")
    e(f"v_mov_b32 v{vx1}, v{vl}")
    e("s_nop 1")
    e(f"v_permlane32_swap_b32 v{vl}, v{vx1}")
    e("s_nop 1")
    e(f"v_add_f32 v{vl}, v{vl}, v{vx1}")
    e("s_barrier")
    e(f"s_lshl_b32 s{sT}, s{sQS}, 14")
    e(f"v_lshlrev_b32 v{vx0}, 4, v{vL}")
    e(f"v_add_u32 v{vx0}, s{sT}, v{vx0}")
    e(f"s_lshl_b32 s{sT}, s{sQS}, 9")
    e(f"v_lshlrev_b32 v{vx1}, 3, v{vL}")
    e(f"v_add_u32 v{vx1}, s{sT}, v{vx1}")
    e(f"v_add_u32 v{vx1}, 65536, v{vx1}")
    e(f"s_cmp_eq_u32 s{sG}, 0")
    e("s_cbranch_scc1 at_merge0")
    for i in range(16):
        e(f"ds_write_b128 v{vx0}, v[{vO + 4 * i}:{vO + 4 * i + 3}] offset:{i * 1024}")
    e(f"ds_write_b64 v{vx1}, v[{vm}:{vl}]")
    e("s_waitcnt lgkmcnt(0)")
    e("s_barrier")
    e("s_branch at_mergedone")
    e.label("at_merge0")
    e("s_barrier")
    e(f"ds_read_b64 v[{vS}:{vS + 1}], v{vx1}")
    for i in range(16):
        e(f"ds_read_b128 v[{vF0 + 4 * i}:{vF0 + 4 * i + 3}], v{vx0} offset:{i * 1024}")
    e("s_waitcnt lgkmcnt(0)")
    e(f"v_max_f32 v{vt0}, v{vm}, v{vS}")
    e(f"v_sub_f32 v{vt1}, v{vm}, v{vt0}")
    e(f"v_sub_f32 v{vt2}, v{vS}, v{vt0}")
    e(f"v_mul_f32 v{vt1}, s{sC}, v{vt1}")
    e(f"v_mul_f32 v{vt2}, s{sC}, v{vt2}")
    e(f"v_exp_f32 v{vt1}, v{vt1}")
    e(f"v_exp_f32 v{vt2}, v{vt2}")
    e("s_nop 0")
    e(f"v_mul_f32 v{vl}, v{vl}, v{vt1}")
    e(f"v_fmac_f32 v{vl}, v{vS + 1}, v{vt2}")
    e(f"v_rcp_f32 v{vl}, v{vl}")
    e("s_nop 0")
    e(f"v_mul_f32 v{vt1}, v{vt1}, v{vl}")
    e(f"v_mul_f32 v{vt2}, v{vt2}, v{vl}")
    for i in range(64):
        e(f"v_mul_f32 v{vO + i}, v{vO + i}, v{vt1}")
        e(f"v_fmac_f32 v{vO + i}, v{vF0 + i}, v{vt2}")
    for i in range(32):
        e(f"v_cvt_pk_bf16_f32 v{vS + i}, v{vO + 2 * i}, v{vO + 2 * i + 1}")
    for i in range(8):
        e(f"buffer_store_dwordx4 v[{vS + 4 * i}:{vS + 4 * i + 3}], v{vst}, s[16:19], 0 offen offset:{i * 32}")
    e.label("at_mergedone")
    e("s_barrier")
    e(f"s_add_u32 s{sPass}, s{sPass}, 1")
    e(f"s_mov_b32 s{sQB}, s{sJ}")
    e(f"s_cmp_eq_u32 s{sPass}, 1")
    e("s_cbranch_scc1 at_qblock")
    if 'wgt' in XP:
        e("s_memrealtime s[92:93]")
        e("s_waitcnt lgkmcnt(0)")
        e("s_lshl_b32 s3, s2, 3")
        e("s_add_u32 s3, s3, 0x6f00000")
        e("v_mov_b32 v2, s3")
        e("v_mov_b32 v4, s90")
        e("v_mov_b32 v5, s92")
        e("s_nop 1")
        e("global_store_dwordx2 v2, v[4:5], s[44:45]")
    e.label("at_end")
    e("s_endpgm")
    return name, VEND, 256, 163840


WS_PART = 0x6000000


def gen_final(e):
    name = "final_kernel"
    kernel_header(e, name)
    NT = 240
    e(f"s_cmp_ge_u32 s2, {NT}")
    e("s_cbranch_scc1 fi_end")
    e(f"s_load_dwordx2 s[34:35], s[0:1], {KA['wo']}")
    e(f"s_load_dwordx2 s[36:37], s[0:1], {KA['w2']}")
    e(f"s_load_dwordx2 s[44:45], s[0:1], {KA['ws']}")
    e("s_waitcnt lgkmcnt(0)")
    g = Gemm(e, "fi", 128, 128, 2, 4, NS=4)
    make_srd(e, 4, 34, 4096 * 1280)
    make_srd(e, 8, 44, 2048 * 8192, WS_CTX)
    make_srd(e, 12, 44, 3 * 2048 * 2560, WS_PART)
    make_srd(e, 56, 44, 640 * 3456, WS_U)
    make_srd(e, 60, 36, 1728 * 4096)
    e("s_and_b32 s47, s2, 7")
    e("s_lshr_b32 s52, s2, 3")
    e("s_lshl_b32 s47, s47, 1")
    e("s_and_b32 s46, s52, 1")
    e("s_add_u32 s47, s47, s46")
    e("s_lshr_b32 s52, s52, 1")
    e("s_mul_i32 s53, s52, 205")
    e("s_lshr_b32 s53, s53, 10")
    e("s_mul_i32 s46, s53, 5")
    e("s_sub_u32 s46, s52, s46")
    e("s_lshl_b32 s46, s46, 7")
    e("s_lshl_b32 s47, s47, 7")
    g.setup_common()
    g.zero_acc()
    e("s_cmp_eq_u32 s53, 2")
    e("s_cbranch_scc1 fi_seg2")
    e("s_mul_i32 s48, s53, %d" % (2048 * 1280))
    e("s_lshl_b32 s24, s46, 1")
    e("s_add_u32 s48, s48, s24")
    e("s_lshl_b32 s49, s47, 13")
    e("s_lshl_b32 s24, s53, 12")
    e("s_add_u32 s49, s49, s24")
    g.run_seg(Op('t', 4, 1280, 48, perm=True), Op('k', 8, 8192, 49), 32, True)
    e("s_branch fi_epi")
    e.label("fi_seg2")
    e("s_mul_i32 s50, s46, 3456")
    e("s_lshl_b32 s51, s47, 1")
    g.run_seg(Op('k', 56, 3456, 50), Op('t', 60, 4096, 51, perm=True), 27, True)
    e.label("fi_epi")
    va = g.v_t1
    L, t0, st = g.v_lane, g.v_t0, g.s_t
    e(f"s_mul_i32 s{st}, s{g.s_wb}, {g.TB * 32}")
    e(f"s_add_u32 s{st}, s{st}, s47")
    e(f"v_and_b32 v{t0}, 31, v{L}")
    e(f"v_add_u32 v{t0}, s{st}, v{t0}")
    e(f"s_movk_i32 s{st + 1}, 2560")
    e(f"v_mul_lo_u32 v{t0}, v{t0}, s{st + 1}")
    e(f"s_mul_i32 s{st}, s{g.s_wa}, {g.TA * 32}")
    e(f"s_add_u32 s{st}, s{st}, s46")
    e(f"s_lshl_b32 s{st}, s{st}, 2")
    e(f"s_mul_i32 s{st + 1}, s53, {2048 * 2560}")
    e(f"s_add_u32 s{st}, s{st}, s{st + 1}")
    e(f"v_add_u32 v{t0}, s{st}, v{t0}")
    e(f"v_lshrrev_b32 v{va}, 5, v{L}")
    e(f"v_lshl_add_u32 v{va}, v{va}, 4, v{t0}")
    e("s_nop 15")
    e("s_nop 7")
    for ta in range(g.TA):
        for tb in range(g.TB):
            d = g.v_acc + 16 * (ta * g.TB + tb)
            e(f"s_mov_b32 s24, {tb * 32 * 2560}")
            for q in range(4):
                e(f"buffer_store_dwordx4 v[{d + 4 * q}:{d + 4 * q + 3}], v{va}, s[12:15], s24 offen offset:{ta * 128 + q * 32}")
    e.label("fi_end")
    e("s_endpgm")
    return name, g.v_end, NT, g.lds


def gen_reduce(e):
    name = "reduce_kernel"
    kernel_header(e, name)
    NT = 640
    e(f"s_cmp_ge_u32 s2, {NT}")
    e("s_cbranch_scc1 rd_end")
    e(f"s_load_dwordx2 s[32:33], s[0:1], {KA['x']}")
    e(f"s_load_dwordx2 s[38:39], s[0:1], {KA['b2']}")
    e(f"s_load_dwordx2 s[40:41], s[0:1], {KA['out']}")
    e(f"s_load_dwordx2 s[44:45], s[0:1], {KA['ws']}")
    e("s_lshl_b32 s3, s2, 8")
    e("v_add_u32 v1, s3, v0")
    e("v_lshlrev_b32 v2, 4, v1")
    e("v_lshlrev_b32 v3, 5, v1")
    e("s_mov_b32 s4, 0x3333334")
    e("v_mul_hi_u32 v4, v1, s4")
    e("v_lshlrev_b32 v4, 1, v4")
    e("s_waitcnt lgkmcnt(0)")
    make_srd(e, 8, 32, 2048 * 1280)
    make_srd(e, 12, 40, 2048 * 1280)
    make_srd(e, 16, 44, 3 * 2048 * 2560, WS_PART)
    make_srd(e, 20, 38, 4096)
    e("buffer_load_dwordx4 v[8:11], v2, s[8:11], 0 offen")
    e("buffer_load_ushort v5, v4, s[20:23], 0 offen")
    for sp in range(3):
        e(f"s_mov_b32 s24, {sp * 2048 * 2560}")
        e(f"buffer_load_dwordx4 v[{12 + 8 * sp}:{15 + 8 * sp}], v3, s[16:19], s24 offen")
        e(f"buffer_load_dwordx4 v[{16 + 8 * sp}:{19 + 8 * sp}], v3, s[16:19], s24 offen offset:16")
    e("s_mov_b32 s25, 0xffff0000")
    e("s_waitcnt vmcnt(0)")
    e("v_lshlrev_b32 v5, 16, v5")
    for i in range(8):
        e(f"v_add_f32 v{12 + i}, v{12 + i}, v{20 + i}")
        e(f"v_add_f32 v{12 + i}, v{12 + i}, v{28 + i}")
        e(f"v_add_f32 v{12 + i}, v{12 + i}, v5")
    for i in range(4):
        e(f"v_lshlrev_b32 v6, 16, v{8 + i}")
        e(f"v_and_b32 v7, s25, v{8 + i}")
        e(f"v_add_f32 v6, v6, v{12 + 2 * i}")
        e(f"v_add_f32 v7, v7, v{13 + 2 * i}")
        e(f"v_cvt_pk_bf16_f32 v{8 + i}, v6, v7")
    e("buffer_store_dwordx4 v[8:11], v2, s[12:15], 0 offen")
    e.label("rd_end")
    e("s_endpgm")
    return name, 40, NT, 0


def main():
    e = E()
    launches = []
    body = E()
    descs = E()
    n, v = gen_ln(body)
    kernel_desc(descs, n, v)
    launches.append((n, 1024, 256, 0))
    n, v, g, lds = gen_p1(body)
    kernel_desc(descs, n, v)
    launches.append((n, g, 512, lds))
    n, v, g, lds = gen_attn(body)
    kernel_desc(descs, n, v)
    launches.append((n, g, 512, lds))
    n, v, g, lds = gen_final(body)
    kernel_desc(descs, n, v)
    launches.append((n, g, 512, lds))
    n, v, g, lds = gen_reduce(body)
    kernel_desc(descs, n, v)
    launches.append((n, g, 256, lds))
    for (n, g, b, lds) in launches:
        e.raw(f"; @launch kernel={n} grid=({g},1,1) block=({b},1,1) lds={lds}")
    e.raw('.amdgcn_target "amdgcn-amd-amdhsa--gfx950"')
    out = e.text() + body.text() + descs.text()
    path = sys.argv[1] if len(sys.argv) > 1 else f"cdna_kernels/{KN}.s"
    open(path, "w").write(out)
    print("wrote", path, len(out))


if __name__ == "__main__":
    main()
```

```python
import sys
import math
import os
XP = os.environ.get('XP', '')

KN = "parallel_sum__compressed_kv_cla__mixer_token_mlp__prompt"

WS_XN = 0x0000000
WS_H = 0x0280000
WS_Q = 0x1000000
WS_K = 0x2000000
WS_VT = 0x3000000
WS_U = 0x4000000
WS_CTX = 0x5000000

KA = dict(x=0, ckv=8, wq=16, wuk=24, wuv=32, wo=40, bx=48, w1=56, b1=64, w2=72, b2=80, out=88, dbg=96, ws=104)


class E:
    def __init__(self):
        self.lines = []

    def __call__(self, s):
        self.lines.append("    " + s)

    def label(self, l):
        self.lines.append(l + ":")

    def raw(self, s):
        self.lines.append(s)

    def text(self):
        return "\n".join(self.lines) + "\n"


def vr(a, n=1):
    return f"v{a}" if n == 1 else f"v[{a}:{a + n - 1}]"


def sr(a, n=1):
    return f"s{a}" if n == 1 else f"s[{a}:{a + n - 1}]"


def kernel_header(e, name):
    e.raw(".text")
    e.raw(f".globl {name}")
    e.raw(".p2align 8")
    e.raw(f".type {name},@function")
    e.label(name)


def kernel_desc(e, name, vgpr, sgpr=96):
    acc = (vgpr + 3) // 4 * 4
    e.raw('.section .rodata,"a"')
    e.raw(".p2align 6")
    e.raw(f".amdhsa_kernel {name}")
    e.raw(f"  .amdhsa_next_free_vgpr {vgpr}")
    e.raw(f"  .amdhsa_next_free_sgpr {sgpr}")
    e.raw(f"  .amdhsa_accum_offset {acc}")
    e.raw("  .amdhsa_group_segment_fixed_size 0")
    e.raw("  .amdhsa_kernarg_size 112")
    e.raw("  .amdhsa_user_sgpr_count 2")
    e.raw("  .amdhsa_user_sgpr_kernarg_segment_ptr 1")
    e.raw("  .amdhsa_system_sgpr_workgroup_id_x 1")
    e.raw(".end_amdhsa_kernel")


def make_srd(e, d, ptr, nbytes, off=0):
    if off:
        e(f"s_add_u32 s{d}, s{ptr}, 0x{off:x}")
        e(f"s_addc_u32 s{d + 1}, s{ptr + 1}, 0")
    else:
        e(f"s_mov_b32 s{d}, s{ptr}")
        e(f"s_mov_b32 s{d + 1}, s{ptr + 1}")
    e(f"s_mov_b32 s{d + 2}, 0x{nbytes:x}")
    e(f"s_mov_b32 s{d + 3}, 0x00020000")


def wave_sum(e, v, t):
    for off in (0x041F, 0x081F, 0x101F, 0x201F, 0x401F):
        e(f"ds_swizzle_b32 v{t}, v{v} offset:0x{off:04X}")
        e("s_waitcnt lgkmcnt(0)")
        e(f"v_add_f32 v{v}, v{v}, v{t}")
    e(f"v_mov_b32 v{t}, v{v}")
    e("s_nop 1")
    e(f"v_permlane32_swap_b32 v{t}, v{v}")
    e("s_nop 1")
    e(f"v_add_f32 v{v}, v{v}, v{t}")


def gen_ln(e):
    name = "ln_kernel"
    kernel_header(e, name)
    e("s_cmp_ge_u32 s2, 1024")
    e("s_cbranch_scc1 ln_end")
    e("s_cmp_ge_u32 s2, 512")
    e("s_cbranch_scc1 ln_pf")
    e(f"s_load_dwordx2 s[4:5], s[0:1], {KA['x']}")
    e(f"s_load_dwordx2 s[6:7], s[0:1], {KA['ws']}")
    e("v_lshrrev_b32 v1, 6, v0")
    e("v_and_b32 v2, 63, v0")
    e("s_lshl_b32 s3, s2, 2")
    e("v_add_u32 v1, s3, v1")
    e("s_movk_i32 s16, 1280")
    e("v_mul_lo_u32 v1, v1, s16")
    e("v_lshl_add_u32 v1, v2, 2, v1")
    e("s_waitcnt lgkmcnt(0)")
    make_srd(e, 8, 4, 2048 * 1280)
    make_srd(e, 12, 6, 2 * 2048 * 1280)
    for i in range(5):
        e(f"buffer_load_dword v{4 + i}, v1, s[8:11], 0 offen offset:{i * 256}")
    e("s_waitcnt vmcnt(0)")
    e("s_mov_b32 s17, 0x3acccccd")
    e("s_mov_b32 s18, 0x3727c5ac")
    e("s_mov_b32 s19, 0xffff0000")

    def ln_pass(dst_off):
        for i in range(5):
            e(f"v_lshlrev_b32 v{10 + 2 * i}, 16, v{4 + i}")
            e(f"v_and_b32 v{11 + 2 * i}, s19, v{4 + i}")
        e("v_add_f32 v20, v10, v11")
        for i in range(2, 10):
            e(f"v_add_f32 v20, v20, v{10 + i}")
        wave_sum(e, 20, 21)
        e("v_mul_f32 v20, s17, v20")
        for i in range(10):
            e(f"v_sub_f32 v{10 + i}, v{10 + i}, v20")
        e("v_mul_f32 v22, v10, v10")
        for i in range(1, 10):
            e(f"v_fmac_f32 v22, v{10 + i}, v{10 + i}")
        wave_sum(e, 22, 21)
        e("v_mov_b32 v23, s18")
        e("v_fmac_f32 v23, s17, v22")
        e("v_rsq_f32 v23, v23")
        e("s_nop 1")
        for i in range(10):
            e(f"v_mul_f32 v{10 + i}, v{10 + i}, v23")
        for i in range(5):
            e(f"v_cvt_pk_bf16_f32 v{4 + i}, v{10 + 2 * i}, v{11 + 2 * i}")
        e("s_mov_b32 s20, 0x%x" % dst_off)
        for i in range(5):
            e(f"buffer_store_dword v{4 + i}, v1, s[12:15], s20 offen offset:{i * 256}")

    ln_pass(WS_XN)
    e("s_nop 4")
    ln_pass(WS_H)
    e("s_endpgm")
    e.label("ln_pf")
    tens = [('ckv', 2048 * 1024), ('wq', 640 * 8192), ('wuk', 512 * 8192), ('wuv', 512 * 8192),
            ('w1', 2048 * 3456)]
    for i, (nm, sz) in enumerate(tens):
        e(f"s_load_dwordx2 s[{32 + 2 * i}:{33 + 2 * i}], s[0:1], {KA[nm]}")
    e("s_sub_u32 s3, s2, 512")
    e("s_lshl_b32 s3, s3, 12")
    e("v_lshlrev_b32 v1, 4, v0")
    e("v_add_u32 v1, s3, v1")
    e("s_waitcnt lgkmcnt(0)")
    nld = 0
    for i, (nm, sz) in enumerate(tens):
        make_srd(e, 8, 32 + 2 * i, sz)
        for r in range(-(-sz // (2 << 20))):
            e(f"s_mov_b32 s20, {r * (2 << 20)}")
            vd = 4 + 4 * (nld % 6)
            e(f"buffer_load_dwordx4 v[{vd}:{vd + 3}], v1, s[8:11], s20 offen")
            nld += 1
    e("s_waitcnt vmcnt(0)")
    e.label("ln_end")
    e("s_endpgm")
    return name, 32


class Op:
    def __init__(self, mode, srd, ld, base, perm=False):
        self.mode = mode
        self.srd = srd
        self.ld = ld
        self.base = base
        self.perm = perm


class Gemm:
    def __init__(self, e, tag, BA, BB, WA, WB, vbase=2, NS=2):
        self.e = e
        self.tag = tag
        self.BA, self.BB, self.WA, self.WB = BA, BB, WA, WB
        self.NW = WA * WB
        self.TA = BA // WA // 32
        self.TB = BB // WB // 32
        self.SA = BA * 128
        self.SB = BB * 128
        st = self.SA + self.SB
        self.NS = NS
        self.stage = st
        self.lds = st * NS
        self.nA = self.SA // 1024 // self.NW
        self.nB = self.SB // 1024 // self.NW
        assert self.nA * 1024 * self.NW == self.SA and self.nB * 1024 * self.NW == self.SB
        v = vbase
        self.v_lane = v; v += 1
        self.v_t0 = v; v += 1
        self.v_t1 = v; v += 1
        self.v_t2 = v; v += 1
        self.v_dmaA = v; v += self.nA
        self.v_dmaB = v; v += self.nB
        self.v_adrA = v; v += 4
        self.v_adrB = v; v += 4
        v = (v + 3) // 4 * 4
        self.v_fA = v; v += 2 * 4 * self.TA
        self.v_fB = v; v += 2 * 4 * self.TB
        self.v_acc = v; v += 16 * self.TA * self.TB
        self.v_end = v
        self.s_wave = 20
        self.s_cnt = 21
        self.s_offA = 22
        self.s_offB = 23
        self.s_t = 24
        self.s_wa = 28
        self.s_wb = 29
        self.s_stage = 30
        self.s_rd = 31

    def setup_common(self):
        e = self.e
        e(f"v_and_b32 v{self.v_lane}, 63, v0")
        e(f"v_lshrrev_b32 v{self.v_t0}, 6, v0")
        e("s_nop 0")
        e(f"v_readfirstlane_b32 s{self.s_wave}, v{self.v_t0}")
        e("s_nop 3")
        lw = int(math.log2(self.WA))
        e(f"s_and_b32 s{self.s_wa}, s{self.s_wave}, {self.WA - 1}")
        e(f"s_lshr_b32 s{self.s_wb}, s{self.s_wave}, {lw}")

    def setup_op(self, op, R, n, v_dma, v_adr, s_wcoord, T, lds_base):
        e = self.e
        L, t0, t1, t2 = self.v_lane, self.v_t0, self.v_t1, self.v_t2
        st = self.s_t
        if op.mode == 'k':
            for jj in range(n):
                e(f"s_mul_i32 s{st}, s{self.s_wave}, {n * 8}")
                e(f"s_add_u32 s{st}, s{st}, {jj * 8}")
                e(f"v_lshrrev_b32 v{t0}, 3, v{L}")
                e(f"v_add_u32 v{t0}, s{st}, v{t0}")
                e(f"v_bfe_u32 v{t1}, v{t0}, 1, 3")
                e(f"v_and_b32 v{t2}, 7, v{L}")
                e(f"v_xor_b32 v{t1}, v{t1}, v{t2}")
                e(f"s_mov_b32 s{st + 1}, {op.ld}")
                e(f"v_mul_lo_u32 v{t0}, v{t0}, s{st + 1}")
                e(f"v_lshl_add_u32 v{v_dma + jj}, v{t1}, 4, v{t0}")
            e(f"s_mul_i32 s{st}, s{s_wcoord}, {T * 32}")
            e(f"v_and_b32 v{t0}, 31, v{L}")
            e(f"v_add_u32 v{t0}, s{st}, v{t0}")
            e(f"v_bfe_u32 v{t1}, v{t0}, 1, 3")
            e(f"v_lshrrev_b32 v{t2}, 5, v{L}")
            e(f"v_lshlrev_b32 v{t0}, 7, v{t0}")
            for kk in range(4):
                e(f"v_add_u32 v{v_adr + kk}, {2 * kk}, v{t2}")
                e(f"v_xor_b32 v{v_adr + kk}, v{v_adr + kk}, v{t1}")
                e(f"v_lshl_add_u32 v{v_adr + kk}, v{v_adr + kk}, 4, v{t0}")
                if lds_base:
                    e(f"v_add_u32 v{v_adr + kk}, {lds_base}, v{v_adr + kk}")
        else:
            rb = 2 * R
            lrb = int(math.log2(rb))
            for jj in range(n):
                e(f"s_mul_i32 s{st}, s{self.s_wave}, {n * 1024}")
                e(f"s_add_u32 s{st}, s{st}, {jj * 1024}")
                e(f"v_lshlrev_b32 v{t0}, 4, v{L}")
                e(f"v_add_u32 v{t0}, s{st}, v{t0}")
                e(f"v_lshrrev_b32 v{t1}, {lrb}, v{t0}")
                e(f"v_and_b32 v{t0}, {rb - 1}, v{t0}")
                if rb >= 256:
                    e(f"v_and_b32 v{t2}, 3, v{t1}")
                else:
                    e(f"v_bfe_u32 v{t2}, v{t1}, 1, 1")
                e(f"v_lshlrev_b32 v{t2}, 6, v{t2}")
                e(f"v_xor_b32 v{t0}, v{t0}, v{t2}")
                e(f"s_mov_b32 s{st + 1}, {op.ld}")
                e(f"v_mul_lo_u32 v{t1}, v{t1}, s{st + 1}")
                e(f"v_add_u32 v{v_dma + jj}, v{t0}, v{t1}")
            e(f"v_lshrrev_b32 v{t0}, 5, v{L}")
            e(f"v_lshlrev_b32 v{t0}, {2 if op.perm else 3}, v{t0}")
            e(f"v_bfe_u32 v{t1}, v{L}, 2, 2")
            e(f"v_add_u32 v{t0}, v{t0}, v{t1}")
            e(f"v_lshlrev_b32 v{t0}, {lrb}, v{t0}")
            e(f"v_bfe_u32 v{t2}, v{L}, 4, 1")
            e(f"v_lshlrev_b32 v{t2}, 5, v{t2}")
            e(f"v_add_u32 v{t0}, v{t0}, v{t2}")
            e(f"v_and_b32 v{t2}, 3, v{L}")
            e(f"v_lshl_add_u32 v{t0}, v{t2}, 3, v{t0}")
            if rb < 256:
                e(f"v_bfe_u32 v{t1}, v{L}, 3, 1")
            for t in range(T):
                e(f"s_mul_i32 s{st}, s{s_wcoord}, {T}")
                e(f"s_add_u32 s{st}, s{st}, {t}")
                e(f"v_xor_b32 v{t2}, s{st}, v{t1}")
                e(f"v_lshl_add_u32 v{v_adr + t}, v{t2}, 6, v{t0}")
                if lds_base:
                    e(f"v_add_u32 v{v_adr + t}, {lds_base}, v{v_adr + t}")

    def n_adr(self, op, T):
        return 4 if op.mode == 'k' else T

    def issue_dma(self, op, n, v_dma, lds_base, s_off):
        e = self.e
        st = self.s_t
        for jj in range(n):
            e(f"s_mul_i32 s{st}, s{self.s_wave}, {n * 1024}")
            e(f"s_add_u32 s{st}, s{st}, s{self.s_stage}")
            e(f"s_add_u32 m0, s{st}, {lds_base + jj * 1024}")
            e("s_nop 0")
            e(f"buffer_load_dwordx4 v{v_dma + jj}, s[{op.srd}:{op.srd + 3}], s{s_off} offen lds")

    def read_frags(self, op, R, T, v_adr, v_f, kk):
        e = self.e
        cnt = 0
        if op.mode == 'k':
            for t in range(T):
                e(f"ds_read_b128 v[{v_f + 4 * t}:{v_f + 4 * t + 3}], v{v_adr + kk} offset:{t * 4096}")
                cnt += 1
        else:
            rb = 2 * R
            hstep = 8 if op.perm else 4
            for t in range(T):
                for half in range(2):
                    off = (kk * 16 + half * hstep) * rb
                    e(f"ds_read_b64_tr_b16 v[{v_f + 4 * t + 2 * half}:{v_f + 4 * t + 2 * half + 1}], v{v_adr + t} offset:{off}")
                    cnt += 1
        return cnt

    def zero_acc(self):
        for i in range(16 * self.TA * self.TB):
            self.e(f"v_mov_b32 v{self.v_acc + i}, 0")

    def run_seg(self, A, B, nk, first):
        e = self.e
        tag = self.tag
        NS = self.NS
        self.seg = getattr(self, "seg", 0) + 1
        lab = f"{tag}_s{self.seg}"
        self.setup_op(A, self.BA, self.nA, self.v_dmaA, self.v_adrA, self.s_wa, self.TA, 0)
        self.setup_op(B, self.BB, self.nB, self.v_dmaB, self.v_adrB, self.s_wb, self.TB, self.SA)
        stepA = 128 if A.mode == 'k' else 64 * A.ld
        stepB = 128 if B.mode == 'k' else 64 * B.ld
        nd = self.nA + self.nB
        assert nk >= NS
        e(f"s_mov_b32 s{self.s_offA}, s{A.base}")
        e(f"s_mov_b32 s{self.s_offB}, s{B.base}")
        e(f"s_mov_b32 s{self.s_stage}, 0")
        e(f"s_mov_b32 s{self.s_rd}, 0")
        if not first:
            e("s_barrier")

        st4 = self.s_t + 3

        def pieces():
            out = []

            def first():
                e(f"s_mul_i32 s{st4}, s{self.s_wave}, {self.nA * 1024}")
                e(f"s_add_u32 s{st4}, s{st4}, s{self.s_stage}")
            for jj in range(self.nA):
                def f(jj=jj):
                    if jj == 0:
                        first()
                    e(f"s_add_u32 m0, s{st4}, {jj * 1024}")
                    e("s_nop 0")
                    e(f"buffer_load_dwordx4 v{self.v_dmaA + jj}, s[{A.srd}:{A.srd + 3}], s{self.s_offA} offen lds")
                out.append(f)
            for jj in range(self.nB):
                def f(jj=jj):
                    if jj == 0:
                        e(f"s_mul_i32 s{st4}, s{self.s_wave}, {self.nB * 1024}")
                        e(f"s_add_u32 s{st4}, s{st4}, s{self.s_stage}")
                    e(f"s_add_u32 m0, s{st4}, {self.SA + jj * 1024}")
                    e("s_nop 0")
                    e(f"buffer_load_dwordx4 v{self.v_dmaB + jj}, s[{B.srd}:{B.srd + 3}], s{self.s_offB} offen lds")
                    if jj == self.nB - 1:
                        e(f"s_add_u32 s{self.s_offA}, s{self.s_offA}, {stepA}")
                        e(f"s_add_u32 s{self.s_offB}, s{self.s_offB}, {stepB}")
                        e(f"s_add_u32 s{self.s_stage}, s{self.s_stage}, {self.stage}")
                        e(f"s_cmp_eq_u32 s{self.s_stage}, {self.stage * NS}")
                        e(f"s_cselect_b32 s{self.s_stage}, 0, s{self.s_stage}")
                out.append(f)
            return out

        for i in range(NS - 1):
            for f in pieces():
                f()
        szA = 4 * self.TA
        szB = 4 * self.TB

        def reads(kk):
            buf = kk & 1
            c = self.read_frags(A, self.BA, self.TA, self.v_adrA, self.v_fA + buf * szA, kk)
            c += self.read_frags(B, self.BB, self.TB, self.v_adrB, self.v_fB + buf * szB, kk)
            return c

        early = NS >= 3

        def compute(pcs, last=False):
            pcs = list(pcs)
            nm = self.TA * self.TB
            per = -(-len(pcs) // 3) if pcs else 0
            gap = max(1, nm // max(per, 1))
            if not early:
                reads(0)
            for kk in range(4):
                nxt = reads(kk + 1) if kk < 3 else 0
                e(f"s_waitcnt lgkmcnt({nxt})")
                buf = kk & 1
                i = 0
                used = 0
                for ta in range(self.TA):
                    for tb in range(self.TB):
                        d = self.v_acc + 16 * (ta * self.TB + tb)
                        a = self.v_fA + buf * szA + 4 * ta
                        b = self.v_fB + buf * szB + 4 * tb
                        e(f"v_mfma_f32_32x32x16_bf16 v[{d}:{d + 15}], v[{a}:{a + 3}], v[{b}:{b + 3}], v[{d}:{d + 15}]")
                        i += 1
                        if pcs and used < per and (i % gap == 0):
                            pcs.pop(0)()
                            used += 1
                if kk == 2:
                    while pcs:
                        pcs.pop(0)()
            st = self.s_t
            e(f"s_add_u32 s{st}, s{self.s_rd}, {self.stage}")
            e(f"s_cmp_eq_u32 s{st}, {self.stage * NS}")
            e(f"s_cselect_b32 s{st}, 0, s{st}")
            e(f"s_sub_u32 s{st + 1}, s{st}, s{self.s_rd}")
            e(f"s_mov_b32 s{self.s_rd}, s{st}")
            for i in range(self.n_adr(A, self.TA)):
                e(f"v_add_u32 v{self.v_adrA + i}, s{st + 1}, v{self.v_adrA + i}")
            for i in range(self.n_adr(B, self.TB)):
                e(f"v_add_u32 v{self.v_adrB + i}, s{st + 1}, v{self.v_adrB + i}")
            if early and not last:
                reads(0)

        if early:
            e(f"s_waitcnt vmcnt({(NS - 2) * nd})")
            e("s_barrier")
            reads(0)
        lag = 1 if early else 0
        e(f"s_mov_b32 s{self.s_cnt}, {nk - (NS - 1)}")
        e.label(f"{lab}_loop")
        e(f"s_waitcnt vmcnt({(NS - 2 - lag) * nd})")
        e("s_barrier")
        compute(pieces())
        e(f"s_sub_u32 s{self.s_cnt}, s{self.s_cnt}, 1")
        e(f"s_cmp_lg_u32 s{self.s_cnt}, 0")
        e(f"s_cbranch_scc1 {lab}_loop")
        for i in range(NS - 1):
            e(f"s_waitcnt vmcnt({max(NS - 2 - i - lag, 0) * nd})")
            e("s_barrier")
            compute([], last=(i == NS - 2))

    def out_addr(self, v_dst, s_rowA0, s_colB0, ld_out):
        e = self.e
        L, t0, st = self.v_lane, self.v_t0, self.s_t
        e(f"s_mul_i32 s{st}, s{self.s_wb}, {self.TB * 32}")
        e(f"s_add_u32 s{st}, s{st}, s{s_colB0}")
        e(f"v_and_b32 v{t0}, 31, v{L}")
        e(f"v_add_u32 v{t0}, s{st}, v{t0}")
        e(f"s_mov_b32 s{st + 1}, {ld_out}")
        e(f"v_mul_lo_u32 v{t0}, v{t0}, s{st + 1}")
        e(f"s_mul_i32 s{st}, s{self.s_wa}, {self.TA * 32}")
        e(f"s_add_u32 s{st}, s{st}, s{s_rowA0}")
        e(f"s_lshl_b32 s{st}, s{st}, 1")
        e(f"v_add_u32 v{t0}, s{st}, v{t0}")
        e(f"v_lshrrev_b32 v{v_dst}, 5, v{L}")
        return t0

    def epi_tile(self, srd_out, s_base):
        e = self.e
        va, t0, L = self.v_t1, self.v_t0, self.v_lane
        e(f"v_and_b32 v{t0}, 31, v{L}")
        e(f"v_lshlrev_b32 v{t0}, 8, v{t0}")
        e(f"v_add_u32 v{t0}, s{s_base}, v{t0}")
        e(f"v_lshrrev_b32 v{va}, 5, v{L}")
        e(f"v_lshl_add_u32 v{va}, v{va}, 4, v{t0}")
        e("s_nop 15")
        e("s_nop 7")
        pk = self.v_fA
        nb = 0
        for tb in range(self.TB):
            e(f"s_mov_b32 s{self.s_t}, {tb * 8192}")
            for ta in range(self.TA):
                d = self.v_acc + 16 * (ta * self.TB + tb)
                p = pk + 8 * (nb & 1)
                nb += 1
                for i in range(8):
                    e(f"v_cvt_pk_bf16_f32 v{p + i}, v{d + 2 * i}, v{d + 2 * i + 1}")
                e(f"buffer_store_dwordx4 v[{p}:{p + 3}], v{va}, s[{srd_out}:{srd_out + 3}], s{self.s_t} offen offset:{ta * 64}")
                e(f"buffer_store_dwordx4 v[{p + 4}:{p + 7}], v{va}, s[{srd_out}:{srd_out + 3}], s{self.s_t} offen offset:{ta * 64 + 32}")
                e("s_nop 1")

    def epi_perm(self, srd_out, s_rowA0, s_colB0, ld_out):
        e = self.e
        va = self.v_t1
        t0 = self.out_addr(va, s_rowA0, s_colB0, ld_out)
        e(f"v_lshl_add_u32 v{va}, v{va}, 4, v{t0}")
        e("s_nop 15")
        e("s_nop 7")
        pk = self.v_fA
        nb = 0
        for ta in range(self.TA):
            for tb in range(self.TB):
                d = self.v_acc + 16 * (ta * self.TB + tb)
                p = pk + 8 * (nb & 1)
                nb += 1
                for i in range(8):
                    e(f"v_cvt_pk_bf16_f32 v{p + i}, v{d + 2 * i}, v{d + 2 * i + 1}")
                off = tb * 32 * ld_out + ta * 64
                assert off + 32 < 4096 or True
                if off + 32 < 4096:
                    e(f"buffer_store_dwordx4 v[{p}:{p + 3}], v{va}, s[{srd_out}:{srd_out + 3}], 0 offen offset:{off}")
                    e(f"buffer_store_dwordx4 v[{p + 4}:{p + 7}], v{va}, s[{srd_out}:{srd_out + 3}], 0 offen offset:{off + 32}")
                else:
                    e(f"s_mov_b32 s{self.s_t}, {tb * 32 * ld_out}")
                    e(f"buffer_store_dwordx4 v[{p}:{p + 3}], v{va}, s[{srd_out}:{srd_out + 3}], s{self.s_t} offen offset:{ta * 64}")
                    e(f"buffer_store_dwordx4 v[{p + 4}:{p + 7}], v{va}, s[{srd_out}:{srd_out + 3}], s{self.s_t} offen offset:{ta * 64 + 32}")
                e("s_nop 1")


P1_NU = 35
P1_NQ = 128


def gen_p1(e):
    name = "proj_kernel"
    kernel_header(e, name)
    ntot = P1_NU + 3 * P1_NQ
    NPF = 93
    e(f"s_cmp_ge_u32 s2, {ntot + NPF}")
    e("s_cbranch_scc1 p1_end")
    e(f"s_cmp_ge_u32 s2, {ntot}")
    e("s_cbranch_scc1 p1_pf")
    e(f"s_load_dwordx2 s[32:33], s[0:1], {KA['ckv']}")
    e(f"s_load_dwordx2 s[34:35], s[0:1], {KA['wq']}")
    e(f"s_load_dwordx2 s[36:37], s[0:1], {KA['wuk']}")
    e(f"s_load_dwordx2 s[38:39], s[0:1], {KA['wuv']}")
    e(f"s_load_dwordx2 s[40:41], s[0:1], {KA['w1']}")
    e(f"s_load_dwordx2 s[42:43], s[0:1], {KA['b1']}")
    e(f"s_load_dwordx2 s[44:45], s[0:1], {KA['ws']}")
    e("s_waitcnt lgkmcnt(0)")
    e(f"s_cmp_lt_u32 s2, {P1_NU}")
    e("s_cbranch_scc1 p1_u")
    e(f"s_cmp_lt_u32 s2, {P1_NU + P1_NQ}")
    e("s_cbranch_scc1 p1_q")
    e(f"s_cmp_lt_u32 s2, {P1_NU + 2 * P1_NQ}")
    e("s_cbranch_scc1 p1_k")
    e("s_branch p1_v")
    vmax = 0

    for tag, wptr, K, xsrc, xld, wsoff, id0 in (("p1_q", 34, 640, 'xn', 1280, WS_Q, P1_NU),
                                                 ("p1_k", 36, 512, 'ckv', 1024, WS_K, P1_NU + P1_NQ)):
        e.label(tag)
        g = Gemm(e, tag, 256, 256, 2, 4)
        vmax = max(vmax, g.v_end)
        make_srd(e, 4, wptr, K * 8192)
        if xsrc == 'xn':
            make_srd(e, 8, 44, 2048 * 1280, WS_XN)
        else:
            make_srd(e, 8, 32, 2048 * 1024)
        make_srd(e, 12, 44, 2048 * 8192, wsoff)
        e(f"s_sub_u32 s3, s2, {id0}")
        e("s_and_b32 s46, s3, 15")
        e("s_lshr_b32 s47, s3, 4")
        e("s_lshl_b32 s46, s46, 8")
        e("s_lshl_b32 s47, s47, 8")
        e("s_lshl_b32 s48, s46, 1")
        e(f"s_mul_i32 s49, s47, {xld}")
        g.setup_common()
        g.zero_acc()
        g.run_seg(Op('t', 4, 8192, 48), Op('k', 8, xld, 49), K // 64, True)
        e(f"s_lshr_b32 s50, s46, 7")
        e(f"s_add_u32 s50, s50, s{g.s_wa}")
        e("s_lshl_b32 s50, s50, 19")
        e(f"s_lshl_b32 s51, s{g.s_wb}, 6")
        e("s_add_u32 s51, s51, s47")
        e("s_lshl_b32 s51, s51, 8")
        e("s_add_u32 s50, s50, s51")
        g.epi_tile(12, 50)
        e("s_endpgm")

    e.label("p1_v")
    g = Gemm(e, "p1_v", 256, 256, 2, 4)
    vmax = max(vmax, g.v_end)
    make_srd(e, 4, 32, 2048 * 1024)
    make_srd(e, 8, 38, 512 * 8192)
    make_srd(e, 12, 44, 4096 * 4096, WS_VT)
    e(f"s_sub_u32 s3, s2, {P1_NU + 2 * P1_NQ}")
    e("s_and_b32 s46, s3, 7")
    e("s_lshr_b32 s47, s3, 3")
    e("s_lshl_b32 s46, s46, 8")
    e("s_lshl_b32 s47, s47, 8")
    e("s_mul_i32 s48, s46, 1024")
    e("s_lshl_b32 s49, s47, 1")
    g.setup_common()
    g.zero_acc()
    g.run_seg(Op('k', 4, 1024, 48), Op('t', 8, 8192, 49), 8, True)
    e("s_lshr_b32 s50, s47, 7")
    e(f"s_lshr_b32 s51, s{g.s_wb}, 1")
    e("s_add_u32 s50, s50, s51")
    e("s_lshl_b32 s50, s50, 19")
    e("s_lshr_b32 s51, s46, 7")
    e(f"s_add_u32 s51, s51, s{g.s_wa}")
    e("s_lshl_b32 s51, s51, 15")
    e("s_add_u32 s50, s50, s51")
    e(f"s_and_b32 s51, s{g.s_wb}, 1")
    e("s_lshl_b32 s51, s51, 14")
    e("s_add_u32 s50, s50, s51")
    g.epi_tile(12, 50)
    e("s_endpgm")

    e.label("p1_u")
    g = Gemm(e, "p1_u", 256, 128, 4, 2)
    vmax = max(vmax, g.v_end)
    make_srd(e, 4, 40, 2048 * 3456)
    make_srd(e, 8, 44, 2048 * 1280, WS_H)
    make_srd(e, 12, 44, 640 * 3456, WS_U)
    make_srd(e, 16, 42, 3456)
    e("s_mul_i32 s46, s2, 37")
    e("s_lshr_b32 s47, s46, 8")
    e("s_mul_i32 s46, s47, 7")
    e("s_sub_u32 s46, s2, s46")
    e("s_lshl_b32 s46, s46, 8")
    e("s_lshl_b32 s47, s47, 7")
    e("s_lshl_b32 s48, s46, 1")
    e("s_lshl_b32 s49, s47, 1")
    g.setup_common()
    g.zero_acc()
    g.run_seg(Op('t', 4, 3456, 48), Op('t', 8, 1280, 49), 32, True)
    va = g.v_t1
    t0 = g.out_addr(va, 46, 47, 3456)
    e(f"v_lshl_add_u32 v{va}, v{va}, 4, v{t0}")
    vb = g.v_t2
    e(f"s_mul_i32 s24, s{g.s_wa}, {g.TA * 32}")
    e("s_add_u32 s50, s24, s46")
    e("s_lshl_b32 s24, s50, 1")
    e(f"v_lshrrev_b32 v{vb}, 5, v{g.v_lane}")
    e(f"v_lshlrev_b32 v{vb}, 3, v{vb}")
    e(f"v_add_u32 v{vb}, s24, v{vb}")
    e("s_nop 15")
    e("s_nop 7")
    e("s_mov_b32 s51, 0xffff0000")
    e("s_mov_b32 s52, 0x3d372713")
    e("s_mov_b32 s53, 0xc0135761")
    bias = g.v_fA
    bf = g.v_fA + 8
    tmp = g.v_fA + 24
    for ta in range(g.TA):
        e(f"s_add_u32 s24, s50, {ta * 32}")
        e("s_cmp_ge_u32 s24, 1728")
        e(f"s_cbranch_scc1 p1_u_skip{ta}")
        for q in range(4):
            e(f"buffer_load_dwordx2 v[{bias + 2 * q}:{bias + 2 * q + 1}], v{vb}, s[16:19], 0 offen offset:{ta * 64 + q * 16}")
        e("s_waitcnt vmcnt(0)")
        for i in range(8):
            e(f"v_lshlrev_b32 v{bf + 2 * i}, 16, v{bias + i}")
            e(f"v_and_b32 v{bf + 2 * i + 1}, s51, v{bias + i}")
        for tb in range(g.TB):
            d = g.v_acc + 16 * (ta * g.TB + tb)
            for i in range(16):
                x = d + i
                e(f"v_add_f32 v{x}, v{x}, v{bf + i}")
                e(f"v_mul_f32 v{tmp}, v{x}, v{x}")
                e(f"v_fma_f32 v{tmp}, v{tmp}, s52, 1.0")
                e(f"v_mul_f32 v{tmp}, v{tmp}, v{x}")
                e(f"v_mul_f32 v{tmp}, s53, v{tmp}")
                e(f"v_exp_f32 v{tmp}, v{tmp}")
                e("s_nop 0")
                e(f"v_add_f32 v{tmp}, 1.0, v{tmp}")
                e(f"v_rcp_f32 v{tmp}, v{tmp}")
                e("s_nop 0")
                e(f"v_mul_f32 v{x}, v{x}, v{tmp}")
            p = bias
            for i in range(8):
                e(f"v_cvt_pk_bf16_f32 v{p + i}, v{d + 2 * i}, v{d + 2 * i + 1}")
            e(f"s_mov_b32 s24, {tb * 32 * 3456}")
            e(f"buffer_store_dwordx4 v[{p}:{p + 3}], v{va}, s[12:15], s24 offen offset:{ta * 64}")
            e(f"buffer_store_dwordx4 v[{p + 4}:{p + 7}], v{va}, s[12:15], s24 offen offset:{ta * 64 + 32}")
            e("s_nop 1")
        e.label(f"p1_u_skip{ta}")
    e("s_endpgm")
    e.label("p1_pf")
    e(f"s_load_dwordx2 s[32:33], s[0:1], {KA['wo']}")
    e(f"s_load_dwordx2 s[34:35], s[0:1], {KA['w2']}")
    e(f"s_sub_u32 s3, s2, {ntot}")
    e("s_lshl_b32 s3, s3, 13")
    e("v_lshlrev_b32 v1, 4, v0")
    e("v_add_u32 v1, s3, v1")
    e("s_waitcnt lgkmcnt(0)")
    nld = 0
    rnd = NPF * 8192
    for i, sz in enumerate((4096 * 1280, 1728 * 4096)):
        make_srd(e, 8, 32 + 2 * i, sz)
        for r in range(-(-sz // rnd)):
            e(f"s_mov_b32 s20, {r * rnd}")
            vd = 4 + 4 * (nld % 6)
            e(f"buffer_load_dwordx4 v[{vd}:{vd + 3}], v1, s[8:11], s20 offen")
            nld += 1
    e("s_waitcnt vmcnt(0)")
    e.label("p1_end")
    e("s_endpgm")
    return name, vmax, ntot + NPF, 131072


def gen_attn(e):
    name = "attn_kernel"
    kernel_header(e, name)
    e("s_cmp_ge_u32 s2, 256")
    e("s_cbranch_scc1 at_end")
    e(f"s_load_dwordx2 s[44:45], s[0:1], {KA['ws']}")
    e(f"s_load_dwordx2 s[60:61], s[0:1], {KA['dbg']}")
    nst = [0]
    if 'wgt' in XP:
        e("s_memrealtime s[90:91]")

    def stamp():
        if 'stamp' in XP and nst[0] < 12:
            e(f"s_memtime s[{64 + 2 * nst[0]}:{65 + 2 * nst[0]}]")
            nst[0] += 1
    vL, vt0, vt1, vt2 = 1, 2, 3, 4
    vdK, vdV = 6, 10
    vaK, vaV = 14, 22
    vm, vl, vmask, vst = 26, 27, 28, 29
    valpha, vmc, vx0, vx1 = 30, 31, 32, 33
    vcc2 = 34
    vQ = 36
    vS = 68
    vP = 100
    vF0 = 116
    vF1 = 148
    vO = 180
    VEND = 244
    sW, sG, sQS, sH, sJ, sQB, sIT, sKoff, sVoff, sStage, sT, sC, sPass, sQ0 = 20, 21, 22, 23, 24, 25, 26, 27, 28, 29, 30, 34, 35, 36
    sVst, sKrd, sVrd = 37, 38, 39
    e(f"v_and_b32 v{vL}, 63, v0")
    e(f"v_lshrrev_b32 v{vt0}, 6, v0")
    e("s_nop 0")
    e(f"v_readfirstlane_b32 s{sW}, v{vt0}")
    e("s_nop 3")
    e(f"s_lshr_b32 s{sG}, s{sW}, 2")
    e(f"s_and_b32 s{sQS}, s{sW}, 3")
    e("s_and_b32 s3, s2, 7")
    e(f"s_lshr_b32 s{sT}, s2, 3")
    e(f"s_lshr_b32 s{sH}, s{sT}, 3")
    e(f"s_lshl_b32 s3, s3, 2")
    e(f"s_add_u32 s{sH}, s{sH}, s3")
    e(f"s_and_b32 s{sJ}, s{sT}, 7")
    e("s_waitcnt lgkmcnt(0)")
    make_srd(e, 4, 44, 2048 * 8192, WS_Q)
    make_srd(e, 8, 44, 2048 * 8192, WS_K)
    make_srd(e, 12, 44, 4096 * 4096, WS_VT)
    make_srd(e, 16, 44, 2048 * 8192, WS_CTX)
    e(f"s_mov_b32 s{sC}, 0x3e0293ee")
    for jj in range(4):
        e(f"s_lshl_b32 s{sT}, s{sW}, 4")
        e(f"s_add_u32 s{sT}, s{sT}, {jj * 4}")
        e(f"v_lshrrev_b32 v{vt0}, 4, v{vL}")
        e(f"v_add_u32 v{vt0}, s{sT}, v{vt0}")
        e(f"v_xor_b32 v{vt1}, v{vt0}, v{vL}")
        e(f"v_and_b32 v{vt1}, 15, v{vt1}")
        e(f"v_lshlrev_b32 v{vt1}, 4, v{vt1}")
        e(f"v_lshl_add_u32 v{vdK + jj}, v{vt0}, 8, v{vt1}")
        if jj:
            e(f"v_subrev_u32 v{vdK + jj}, {jj * 1024}, v{vdK + jj}")
        e(f"v_mov_b32 v{vdV + jj}, v{vdK + jj}")
    e(f"v_and_b32 v{vt0}, 31, v{vL}")
    e(f"v_lshrrev_b32 v{vt1}, 5, v{vL}")
    e(f"v_and_b32 v{vt2}, 15, v{vL}")
    e(f"v_xor_b32 v{vt2}, v{vt2}, v{vt1}")
    e(f"v_lshlrev_b32 v{vt2}, 4, v{vt2}")
    e(f"s_lshl_b32 s{sT}, s{sG}, 6")
    e(f"v_add_u32 v{vx0}, s{sT}, v{vt0}")
    e(f"v_lshl_add_u32 v{vx0}, v{vx0}, 8, v{vt2}")
    for kk in range(8):
        e(f"v_xor_b32 v{vaK + kk}, {kk * 32}, v{vx0}")
    e(f"v_lshl_add_u32 v{vx0}, v{vt0}, 8, v{vt2}")
    e(f"v_add_u32 v{vx0}, 65536, v{vx0}")
    e(f"s_lshl_b32 s{sT}, s{sG}, 7")
    e(f"v_xor_b32 v{vx0}, s{sT}, v{vx0}")
    for kk in range(4):
        e(f"v_xor_b32 v{vaV + kk}, {kk * 32}, v{vx0}")
    e(f"s_lshl_b32 s{sT}, s{sQS}, 5")
    e(f"s_lshl_b32 s{sT + 1}, s{sG}, 6")
    e(f"s_sub_u32 s{sT}, s{sT}, s{sT + 1}")
    e(f"v_add_u32 v{vmask}, s{sT}, v{vt0}")
    e(f"v_lshlrev_b32 v{vt1}, 2, v{vt1}")
    e(f"v_sub_u32 v{vmask}, v{vmask}, v{vt1}")
    e(f"s_mov_b32 s{sPass}, 0")
    e(f"v_mov_b32 v{vcc2}, s{sC}")
    e(f"v_mov_b32 v{vcc2 + 1}, s{sC}")
    e(f"s_sub_u32 s{sQB}, 15, s{sJ}")
    e.label("at_qblock")
    e(f"s_lshl_b32 s{sQ0}, s{sQB}, 7")
    e(f"s_lshl_b32 s{sT}, s{sQS}, 5")
    e(f"s_add_u32 s{sT}, s{sT}, s{sQ0}")
    e(f"v_and_b32 v{vt0}, 31, v{vL}")
    e(f"v_add_u32 v{vt0}, s{sT}, v{vt0}")
    e(f"v_lshrrev_b32 v{vt1}, 5, v{vL}")
    e(f"v_lshlrev_b32 v{vt1}, 4, v{vt1}")
    e(f"v_lshl_add_u32 v{vt2}, v{vt0}, 8, v{vt1}")
    e(f"v_lshl_add_u32 v{vt0}, v{vt0}, 13, v{vt1}")
    e(f"s_lshl_b32 s{sT}, s{sH}, 8")
    e(f"v_add_u32 v{vst}, s{sT}, v{vt0}")
    e(f"s_lshl_b32 s{sT}, s{sH}, 19")
    for kk in range(8):
        e(f"buffer_load_dwordx4 v[{vQ + 4 * kk}:{vQ + 4 * kk + 3}], v{vt2}, s[4:7], s{sT} offen offset:{kk * 32}")
    e(f"v_mov_b32 v{vm}, 0xf149f2ca")
    e(f"v_mov_b32 v{vl}, 0")
    for i in range(64):
        e(f"v_mov_b32 v{vO + i}, 0")
    e(f"s_lshl_b32 s{sKoff}, s{sH}, 19")
    e(f"s_lshl_b32 s{sVoff}, s{sH}, 19")
    e(f"s_mov_b32 s{sStage}, 0")
    e(f"s_mov_b32 s{sVst}, 0")
    e(f"s_mov_b32 s{sKrd}, 0")
    e(f"s_mov_b32 s{sVrd}, 0")
    e(f"s_mov_b32 s{sIT}, 0")

    sDK, sDV, sD = 40, 41, 42

    def dma_setup():
        e(f"s_lshl_b32 s{sT}, s{sW}, 12")
        e(f"s_add_u32 s{sDK}, s{sT}, s{sStage}")
        e(f"s_add_u32 s{sDV}, s{sT}, s{sVst}")
        e(f"s_add_u32 s{sDV}, s{sDV}, 65536")

    def dma_piece(i):
        jj = i & 3
        if i == 0:
            e(f"s_mov_b32 m0, s{sDK}")
            e("s_nop 0")
        if i == 4:
            e(f"s_mov_b32 m0, s{sDV}")
            e("s_nop 0")
        if i < 4:
            e(f"buffer_load_dwordx4 v{vdK + jj}, s[8:11], s{sKoff} offen offset:{jj * 1024} lds")
        else:
            e(f"buffer_load_dwordx4 v{vdV + jj}, s[12:15], s{sVoff} offen offset:{jj * 1024} lds")

    def dma_advance():
        e(f"s_add_u32 s{sKoff}, s{sKoff}, 32768")
        e(f"s_add_u32 s{sVoff}, s{sVoff}, 32768")
        e(f"s_xor_b32 s{sStage}, s{sStage}, 32768")
        e(f"s_add_u32 s{sVst}, s{sVst}, 32768")
        e(f"s_cmp_eq_u32 s{sVst}, 98304")
        e(f"s_cselect_b32 s{sVst}, 0, s{sVst}")

    def dma():
        dma_setup()
        for i in range(8):
            dma_piece(i)
        dma_advance()

    pcnt = [0]

    def cond_piece(i):
        pcnt[0] += 1
        lab = f"at_np{pcnt[0]}"
        e(f"s_cmp_eq_u32 s{sD}, 0")
        e(f"s_cbranch_scc1 {lab}")
        dma_piece(i)
        if i == 7:
            dma_advance()
        e.label(lab)

    def top(tag):
        e("s_waitcnt vmcnt(0)")
        e("s_barrier")
        e(f"s_cmp_lg_u32 s{sIT}, s{sQB}")
        e(f"s_cselect_b32 s{sD}, 1, 0")
        dma_setup()

    def kreads(t):
        F = vF0 if t == 0 else vF1
        for kk in range(8):
            e(f"ds_read_b128 v[{F + 4 * kk}:{F + 4 * kk + 3}], v{vaK + kk} offset:{t * 8192}")

    def qk_mfma(t, pieces=()):
        F = vF0 if t == 0 else vF1
        d = vS + 16 * t
        pieces = list(pieces)
        for kk in range(8):
            c = "0" if kk == 0 else f"v[{d}:{d + 15}]"
            e(f"v_mfma_f32_32x32x16_bf16 v[{d}:{d + 15}], v[{F + 4 * kk}:{F + 4 * kk + 3}], v[{vQ + 4 * kk}:{vQ + 4 * kk + 3}], {c}")
            if pieces and kk & 1:
                cond_piece(pieces.pop(0))

    def k_adv():
        for i in range(8):
            e(f"v_xor_b32 v{vaK + i}, 0x8000, v{vaK + i}")
        e(f"s_xor_b32 s{sKrd}, s{sKrd}, 32768")

    def vreads():
        for dt in range(4):
            F = (vF0 if dt < 2 else vF1) + 16 * (dt & 1)
            for kk in range(4):
                e(f"ds_read_b128 v[{F + 4 * kk}:{F + 4 * kk + 3}], v{vaV + kk} offset:{dt * 8192}")
        e(f"s_add_u32 s{sT}, s{sVrd}, 32768")
        e(f"s_cmp_eq_u32 s{sT}, 98304")
        e(f"s_cselect_b32 s{sT}, 0, s{sT}")
        e(f"s_sub_u32 s{sT + 1}, s{sT}, s{sVrd}")
        e(f"s_mov_b32 s{sVrd}, s{sT}")
        for i in range(4):
            e(f"v_add_u32 v{vaV + i}, s{sT + 1}, v{vaV + i}")

    def pv_mfma(dts, pieces=()):
        pieces = list(pieces)
        for dt in dts:
            F = (vF0 if dt < 2 else vF1) + 16 * (dt & 1)
            d = vO + 16 * dt
            for kk in range(4):
                e(f"v_mfma_f32_32x32x16_bf16 v[{d}:{d + 15}], v[{F + 4 * kk}:{F + 4 * kk + 3}], v[{vP + 4 * kk}:{vP + 4 * kk + 3}], v[{d}:{d + 15}]")
                if pieces and kk & 1:
                    cond_piece(pieces.pop(0))

    def mask():
        e(f"v_mov_b32 v{vx0}, 0xf149f2ca")
        for t in range(2):
            for r in range(16):
                cst = t * 32 + (r & 3) + 8 * (r >> 2)
                e(f"v_cmp_gt_i32 vcc, {cst}, v{vmask}")
                e("s_nop 1")
                e(f"v_cndmask_b32 v{vS + 16 * t + r}, v{vS + 16 * t + r}, v{vx0}, vcc")

    def softmax(tag, with_dma=False):
        e("s_nop 0" if "noprio" in XP else ("s_setprio 0" if "invprio" in XP else "s_setprio 1"))
        e(f"v_max3_f32 v{vx0}, v{vS}, v{vS + 1}, v{vS + 2}")
        for i in range(3, 31, 2):
            e(f"v_max3_f32 v{vx0}, v{vx0}, v{vS + i}, v{vS + i + 1}")
        e(f"v_max_f32 v{vx0}, v{vx0}, v{vS + 31}")
        e(f"v_mov_b32 v{vx1}, v{vx0}")
        e("s_nop 1")
        e(f"v_permlane32_swap_b32 v{vx0}, v{vx1}")
        e("s_nop 1")
        e(f"v_max3_f32 v{vx0}, v{vx0}, v{vx1}, v{vm}")
        e(f"v_sub_f32 v{valpha}, v{vm}, v{vx0}")
        e(f"v_mul_f32 v{valpha}, s{sC}, v{valpha}")
        e(f"v_cmp_gt_f32 vcc, -8.0, v{valpha}")
        e("s_nop 4")
        e(f"s_cbranch_vccz {tag}_norescale")
        e(f"v_exp_f32 v{valpha}, v{valpha}")
        e(f"v_mov_b32 v{vm}, v{vx0}")
        e(f"v_mul_f32 v{vl}, v{vl}, v{valpha}")
        for i in range(64):
            e(f"v_mul_f32 v{vO + i}, v{vO + i}, v{valpha}")
        e.label(f"{tag}_norescale")
        e(f"v_mul_f32 v{vx0}, s{sC}, v{vm}")
        e(f"v_sub_f32 v{vx0}, 0, v{vx0}")
        e(f"v_mov_b32 v{vx1}, v{vx0}")
        for i in range(16):
            r = vS + 2 * i
            e(f"v_pk_fma_f32 v[{r}:{r + 1}], v[{r}:{r + 1}], v[{vcc2}:{vcc2 + 1}], v[{vx0}:{vx1}]")
            e(f"v_exp_f32 v{r}, v{r}")
            e(f"v_exp_f32 v{r + 1}, v{r + 1}")
        vreads()
        e(f"v_pk_add_f32 v[{vx0}:{vx1}], v[{vS}:{vS + 1}], v[{vS + 2}:{vS + 3}]")
        for i in range(2, 16):
            e(f"v_pk_add_f32 v[{vx0}:{vx1}], v[{vx0}:{vx1}], v[{vS + 2 * i}:{vS + 2 * i + 1}]")
        e(f"v_add_f32 v{vl}, v{vl}, v{vx0}")
        e(f"v_add_f32 v{vl}, v{vl}, v{vx1}")
        for i in range(16):
            e(f"v_cvt_pk_bf16_f32 v{vP + i}, v{vS + 2 * i}, v{vS + 2 * i + 1}")
        e("s_nop 0" if "noprio" in XP else ("s_setprio 1" if "invprio" in XP else "s_setprio 0"))

    def pv_qk(with_pv, with_dma):
        pc = list(range(8)) if with_dma else []
        if with_pv:
            e("s_waitcnt lgkmcnt(0)")
            e("s_nop 1")
            pv_mfma((0, 1), pc[0:4])
            kreads(0)
            pv_mfma((2, 3), pc[4:8])
            kreads(1)
            e("s_waitcnt lgkmcnt(8)")
            qk_mfma(0)
            e("s_waitcnt lgkmcnt(0)")
            qk_mfma(1)
        else:
            kreads(0)
            kreads(1)
            e("s_waitcnt lgkmcnt(8)")
            qk_mfma(0, pc[0:4])
            e("s_waitcnt lgkmcnt(0)")
            qk_mfma(1, pc[4:8])
        k_adv()

    def pv_only():
        e("s_waitcnt lgkmcnt(0)")
        e("s_nop 1")
        pv_mfma((0, 1, 2, 3))

    dma()
    e(f"s_cmp_eq_u32 s{sG}, 1")
    e("s_cbranch_scc1 at1_loop")
    e.label("at0_loop")
    stamp()
    top("at0")
    stamp()
    e(f"s_cmp_eq_u32 s{sIT}, 0")
    e("s_cbranch_scc1 at0_first")
    pv_qk(True, True)
    e("s_branch at0_sm")
    e.label("at0_first")
    pv_qk(False, True)
    e.label("at0_sm")
    stamp()
    e("s_nop 15")
    e(f"s_cmp_lg_u32 s{sIT}, s{sQB}")
    e("s_cbranch_scc1 at0_nomask")
    mask()
    e.label("at0_nomask")
    softmax("at0")
    stamp()
    if 'stamp' in XP:
        e("s_waitcnt lgkmcnt(0)")
        e(f"s_cmp_eq_u32 s{sIT}, 5")
        e("s_cbranch_scc0 at0_nost")
        e("s_cmp_eq_u32 s2, 0")
        e("s_cbranch_scc0 at0_nost")
        e(f"s_cmp_eq_u32 s{sW}, 0")
        e("s_cbranch_scc0 at0_nost")
        e(f"v_mov_b32 v{vx0}, 0")
        for i in range(6):
            e(f"v_mov_b32 v{vx1}, s{64 + 2 * i}")
            e(f"global_store_dword v{vx0}, v{vx1}, s[60:61] offset:{4 * i}")
            e("s_nop 1")
        e.label("at0_nost")
    e(f"s_add_u32 s{sIT}, s{sIT}, 1")
    e(f"s_cmp_le_u32 s{sIT}, s{sQB}")
    e("s_cbranch_scc1 at0_loop")
    pv_only()
    e("s_branch at_done")
    e.label("at1_loop")
    nst[0] = 0
    stamp()
    top("at1")
    stamp()
    e(f"s_cmp_eq_u32 s{sIT}, 0")
    e("s_cbranch_scc1 at1_first")
    softmax("at1", with_dma=False)
    stamp()
    e(f"s_cmp_lg_u32 s{sIT}, s{sQB}")
    e("s_cbranch_scc1 at1_doqk")
    e(f"s_cmp_lt_u32 s{sQS}, 2")
    e("s_cbranch_scc0 at1_doqk")
    pv_only()
    e("s_branch at_done")
    e.label("at1_doqk")
    pv_qk(True, True)
    e("s_branch at1_next")
    e.label("at1_first")
    for i in range(8):
        cond_piece(i)
    e(f"s_cmp_lg_u32 s{sIT}, s{sQB}")
    e("s_cbranch_scc1 at1_doqk0")
    e(f"s_cmp_lt_u32 s{sQS}, 2")
    e("s_cbranch_scc1 at_done")
    e.label("at1_doqk0")
    pv_qk(False, False)
    e.label("at1_next")
    stamp()
    if 'stamp' in XP:
        e("s_waitcnt lgkmcnt(0)")
        e(f"s_cmp_eq_u32 s{sIT}, 5")
        e("s_cbranch_scc0 at1_nost")
        e("s_cmp_eq_u32 s2, 0")
        e("s_cbranch_scc0 at1_nost")
        e(f"s_cmp_eq_u32 s{sW}, 4")
        e("s_cbranch_scc0 at1_nost")
        e(f"v_mov_b32 v{vx0}, 0")
        for i in range(6):
            e(f"v_mov_b32 v{vx1}, s{64 + 2 * i}")
            e(f"global_store_dword v{vx0}, v{vx1}, s[60:61] offset:{24 + 4 * i}")
            e("s_nop 1")
        e.label("at1_nost")
    e(f"s_add_u32 s{sIT}, s{sIT}, 1")
    e(f"s_cmp_le_u32 s{sIT}, s{sQB}")
    e("s_cbranch_scc1 at1_loop")
    e("s_nop 15")
    mask()
    softmax("at1b")
    pv_only()
    e.label("at_done")
    e(f"s_sub_u32 s{sT}, 0, s{sKrd}")
    for i in range(8):
        e(f"v_add_u32 v{vaK + i}, s{sT}, v{vaK + i}")
    e(f"s_sub_u32 s{sT}, 0, s{sVrd}")
    for i in range(4):
        e(f"v_add_u32 v{vaV + i}, s{sT}, v{vaV + i}")
    e("s_nop 15")
    e("s_nop 7")
    e(f"v_mov_b32 v{vx1}, v{vl}")
    e("s_nop 1")
    e(f"v_permlane32_swap_b32 v{vl}, v{vx1}")
    e("s_nop 1")
    e(f"v_add_f32 v{vl}, v{vl}, v{vx1}")
    e("s_barrier")
    e(f"s_lshl_b32 s{sT}, s{sQS}, 14")
    e(f"v_lshlrev_b32 v{vx0}, 4, v{vL}")
    e(f"v_add_u32 v{vx0}, s{sT}, v{vx0}")
    e(f"s_lshl_b32 s{sT}, s{sQS}, 9")
    e(f"v_lshlrev_b32 v{vx1}, 3, v{vL}")
    e(f"v_add_u32 v{vx1}, s{sT}, v{vx1}")
    e(f"v_add_u32 v{vx1}, 65536, v{vx1}")
    e(f"s_cmp_eq_u32 s{sG}, 0")
    e("s_cbranch_scc1 at_merge0")
    for i in range(16):
        e(f"ds_write_b128 v{vx0}, v[{vO + 4 * i}:{vO + 4 * i + 3}] offset:{i * 1024}")
    e(f"ds_write_b64 v{vx1}, v[{vm}:{vl}]")
    e("s_waitcnt lgkmcnt(0)")
    e("s_barrier")
    e("s_branch at_mergedone")
    e.label("at_merge0")
    e("s_barrier")
    e(f"ds_read_b64 v[{vS}:{vS + 1}], v{vx1}")
    for i in range(16):
        e(f"ds_read_b128 v[{vF0 + 4 * i}:{vF0 + 4 * i + 3}], v{vx0} offset:{i * 1024}")
    e("s_waitcnt lgkmcnt(0)")
    e(f"v_max_f32 v{vt0}, v{vm}, v{vS}")
    e(f"v_sub_f32 v{vt1}, v{vm}, v{vt0}")
    e(f"v_sub_f32 v{vt2}, v{vS}, v{vt0}")
    e(f"v_mul_f32 v{vt1}, s{sC}, v{vt1}")
    e(f"v_mul_f32 v{vt2}, s{sC}, v{vt2}")
    e(f"v_exp_f32 v{vt1}, v{vt1}")
    e(f"v_exp_f32 v{vt2}, v{vt2}")
    e("s_nop 0")
    e(f"v_mul_f32 v{vl}, v{vl}, v{vt1}")
    e(f"v_fmac_f32 v{vl}, v{vS + 1}, v{vt2}")
    e(f"v_rcp_f32 v{vl}, v{vl}")
    e("s_nop 0")
    e(f"v_mul_f32 v{vt1}, v{vt1}, v{vl}")
    e(f"v_mul_f32 v{vt2}, v{vt2}, v{vl}")
    for i in range(64):
        e(f"v_mul_f32 v{vO + i}, v{vO + i}, v{vt1}")
        e(f"v_fmac_f32 v{vO + i}, v{vF0 + i}, v{vt2}")
    for i in range(32):
        e(f"v_cvt_pk_bf16_f32 v{vS + i}, v{vO + 2 * i}, v{vO + 2 * i + 1}")
    for i in range(8):
        e(f"buffer_store_dwordx4 v[{vS + 4 * i}:{vS + 4 * i + 3}], v{vst}, s[16:19], 0 offen offset:{i * 32}")
    e.label("at_mergedone")
    e("s_barrier")
    e(f"s_add_u32 s{sPass}, s{sPass}, 1")
    e(f"s_mov_b32 s{sQB}, s{sJ}")
    e(f"s_cmp_eq_u32 s{sPass}, 1")
    e("s_cbranch_scc1 at_qblock")
    if 'wgt' in XP:
        e("s_memrealtime s[92:93]")
        e("s_waitcnt lgkmcnt(0)")
        e("s_lshl_b32 s3, s2, 3")
        e("s_add_u32 s3, s3, 0x6f00000")
        e("v_mov_b32 v2, s3")
        e("v_mov_b32 v4, s90")
        e("v_mov_b32 v5, s92")
        e("s_nop 1")
        e("global_store_dwordx2 v2, v[4:5], s[44:45]")
    e.label("at_end")
    e("s_endpgm")
    return name, VEND, 256, 163840


WS_PART = 0x6000000


def gen_final(e):
    name = "final_kernel"
    kernel_header(e, name)
    NT = 240
    e(f"s_cmp_ge_u32 s2, {NT}")
    e("s_cbranch_scc1 fi_end")
    e(f"s_load_dwordx2 s[34:35], s[0:1], {KA['wo']}")
    e(f"s_load_dwordx2 s[36:37], s[0:1], {KA['w2']}")
    e(f"s_load_dwordx2 s[44:45], s[0:1], {KA['ws']}")
    e("s_waitcnt lgkmcnt(0)")
    g = Gemm(e, "fi", 128, 128, 2, 4, NS=4)
    make_srd(e, 4, 34, 4096 * 1280)
    make_srd(e, 8, 44, 2048 * 8192, WS_CTX)
    make_srd(e, 12, 44, 3 * 2048 * 2560, WS_PART)
    make_srd(e, 56, 44, 640 * 3456, WS_U)
    make_srd(e, 60, 36, 1728 * 4096)
    e("s_and_b32 s47, s2, 7")
    e("s_lshr_b32 s52, s2, 3")
    e("s_lshl_b32 s47, s47, 1")
    e("s_and_b32 s46, s52, 1")
    e("s_add_u32 s47, s47, s46")
    e("s_lshr_b32 s52, s52, 1")
    e("s_mul_i32 s53, s52, 205")
    e("s_lshr_b32 s53, s53, 10")
    e("s_mul_i32 s46, s53, 5")
    e("s_sub_u32 s46, s52, s46")
    e("s_lshl_b32 s46, s46, 7")
    e("s_lshl_b32 s47, s47, 7")
    g.setup_common()
    g.zero_acc()
    e("s_cmp_eq_u32 s53, 2")
    e("s_cbranch_scc1 fi_seg2")
    e("s_mul_i32 s48, s53, %d" % (2048 * 1280))
    e("s_lshl_b32 s24, s46, 1")
    e("s_add_u32 s48, s48, s24")
    e("s_lshl_b32 s49, s47, 13")
    e("s_lshl_b32 s24, s53, 12")
    e("s_add_u32 s49, s49, s24")
    g.run_seg(Op('t', 4, 1280, 48, perm=True), Op('k', 8, 8192, 49), 32, True)
    e("s_branch fi_epi")
    e.label("fi_seg2")
    e("s_mul_i32 s50, s46, 3456")
    e("s_lshl_b32 s51, s47, 1")
    g.run_seg(Op('k', 56, 3456, 50), Op('t', 60, 4096, 51, perm=True), 27, True)
    e.label("fi_epi")
    va = g.v_t1
    L, t0, st = g.v_lane, g.v_t0, g.s_t
    e(f"s_mul_i32 s{st}, s{g.s_wb}, {g.TB * 32}")
    e(f"s_add_u32 s{st}, s{st}, s47")
    e(f"v_and_b32 v{t0}, 31, v{L}")
    e(f"v_add_u32 v{t0}, s{st}, v{t0}")
    e(f"s_movk_i32 s{st + 1}, 2560")
    e(f"v_mul_lo_u32 v{t0}, v{t0}, s{st + 1}")
    e(f"s_mul_i32 s{st}, s{g.s_wa}, {g.TA * 32}")
    e(f"s_add_u32 s{st}, s{st}, s46")
    e(f"s_lshl_b32 s{st}, s{st}, 2")
    e(f"s_mul_i32 s{st + 1}, s53, {2048 * 2560}")
    e(f"s_add_u32 s{st}, s{st}, s{st + 1}")
    e(f"v_add_u32 v{t0}, s{st}, v{t0}")
    e(f"v_lshrrev_b32 v{va}, 5, v{L}")
    e(f"v_lshl_add_u32 v{va}, v{va}, 4, v{t0}")
    e("s_nop 15")
    e("s_nop 7")
    for ta in range(g.TA):
        for tb in range(g.TB):
            d = g.v_acc + 16 * (ta * g.TB + tb)
            e(f"s_mov_b32 s24, {tb * 32 * 2560}")
            for q in range(4):
                e(f"buffer_store_dwordx4 v[{d + 4 * q}:{d + 4 * q + 3}], v{va}, s[12:15], s24 offen offset:{ta * 128 + q * 32}")
    e.label("fi_end")
    e("s_endpgm")
    return name, g.v_end, NT, g.lds


def gen_reduce(e):
    name = "reduce_kernel"
    kernel_header(e, name)
    NT = 640
    e(f"s_cmp_ge_u32 s2, {NT}")
    e("s_cbranch_scc1 rd_end")
    e(f"s_load_dwordx2 s[32:33], s[0:1], {KA['x']}")
    e(f"s_load_dwordx2 s[38:39], s[0:1], {KA['b2']}")
    e(f"s_load_dwordx2 s[40:41], s[0:1], {KA['out']}")
    e(f"s_load_dwordx2 s[44:45], s[0:1], {KA['ws']}")
    e("s_lshl_b32 s3, s2, 8")
    e("v_add_u32 v1, s3, v0")
    e("v_lshlrev_b32 v2, 4, v1")
    e("v_lshlrev_b32 v3, 5, v1")
    e("s_mov_b32 s4, 0x3333334")
    e("v_mul_hi_u32 v4, v1, s4")
    e("v_lshlrev_b32 v4, 1, v4")
    e("s_waitcnt lgkmcnt(0)")
    make_srd(e, 8, 32, 2048 * 1280)
    make_srd(e, 12, 40, 2048 * 1280)
    make_srd(e, 16, 44, 3 * 2048 * 2560, WS_PART)
    make_srd(e, 20, 38, 4096)
    e("buffer_load_dwordx4 v[8:11], v2, s[8:11], 0 offen")
    e("buffer_load_ushort v5, v4, s[20:23], 0 offen")
    for sp in range(3):
        e(f"s_mov_b32 s24, {sp * 2048 * 2560}")
        e(f"buffer_load_dwordx4 v[{12 + 8 * sp}:{15 + 8 * sp}], v3, s[16:19], s24 offen")
        e(f"buffer_load_dwordx4 v[{16 + 8 * sp}:{19 + 8 * sp}], v3, s[16:19], s24 offen offset:16")
    e("s_mov_b32 s25, 0xffff0000")
    e("s_waitcnt vmcnt(0)")
    e("v_lshlrev_b32 v5, 16, v5")
    for i in range(8):
        e(f"v_add_f32 v{12 + i}, v{12 + i}, v{20 + i}")
        e(f"v_add_f32 v{12 + i}, v{12 + i}, v{28 + i}")
        e(f"v_add_f32 v{12 + i}, v{12 + i}, v5")
    for i in range(4):
        e(f"v_lshlrev_b32 v6, 16, v{8 + i}")
        e(f"v_and_b32 v7, s25, v{8 + i}")
        e(f"v_add_f32 v6, v6, v{12 + 2 * i}")
        e(f"v_add_f32 v7, v7, v{13 + 2 * i}")
        e(f"v_cvt_pk_bf16_f32 v{8 + i}, v6, v7")
    e("buffer_store_dwordx4 v[8:11], v2, s[12:15], 0 offen")
    e.label("rd_end")
    e("s_endpgm")
    return name, 40, NT, 0


def main():
    e = E()
    launches = []
    body = E()
    descs = E()
    n, v = gen_ln(body)
    kernel_desc(descs, n, v)
    launches.append((n, 1024, 256, 0))
    n, v, g, lds = gen_p1(body)
    kernel_desc(descs, n, v)
    launches.append((n, g, 512, lds))
    n, v, g, lds = gen_attn(body)
    kernel_desc(descs, n, v)
    launches.append((n, g, 512, lds))
    n, v, g, lds = gen_final(body)
    kernel_desc(descs, n, v)
    launches.append((n, g, 512, lds))
    n, v, g, lds = gen_reduce(body)
    kernel_desc(descs, n, v)
    launches.append((n, g, 256, lds))
    for (n, g, b, lds) in launches:
        e.raw(f"; @launch kernel={n} grid=({g},1,1) block=({b},1,1) lds={lds}")
    e.raw('.amdgcn_target "amdgcn-amd-amdhsa--gfx950"')
    out = e.text() + body.text() + descs.text()
    path = sys.argv[1] if len(sys.argv) > 1 else f"cdna_kernels/{KN}.s"
    open(path, "w").write(out)
    print("wrote", path, len(out))


if __name__ == "__main__":
    main()
```

```python
import sys
import math
import os
XP = os.environ.get('XP', '')

KN = "parallel_sum__compressed_kv_cla__mixer_token_mlp__prompt"

WS_XN = 0x0000000
WS_H = 0x0280000
WS_Q = 0x1000000
WS_K = 0x2000000
WS_VT = 0x3000000
WS_U = 0x4000000
WS_CTX = 0x5000000

KA = dict(x=0, ckv=8, wq=16, wuk=24, wuv=32, wo=40, bx=48, w1=56, b1=64, w2=72, b2=80, out=88, dbg=96, ws=104)


class E:
    def __init__(self):
        self.lines = []

    def __call__(self, s):
        self.lines.append("    " + s)

    def label(self, l):
        self.lines.append(l + ":")

    def raw(self, s):
        self.lines.append(s)

    def text(self):
        return "\n".join(self.lines) + "\n"


def vr(a, n=1):
    return f"v{a}" if n == 1 else f"v[{a}:{a + n - 1}]"


def sr(a, n=1):
    return f"s{a}" if n == 1 else f"s[{a}:{a + n - 1}]"


def kernel_header(e, name):
    e.raw(".text")
    e.raw(f".globl {name}")
    e.raw(".p2align 8")
    e.raw(f".type {name},@function")
    e.label(name)


def kernel_desc(e, name, vgpr, sgpr=96):
    acc = (vgpr + 3) // 4 * 4
    e.raw('.section .rodata,"a"')
    e.raw(".p2align 6")
    e.raw(f".amdhsa_kernel {name}")
    e.raw(f"  .amdhsa_next_free_vgpr {vgpr}")
    e.raw(f"  .amdhsa_next_free_sgpr {sgpr}")
    e.raw(f"  .amdhsa_accum_offset {acc}")
    e.raw("  .amdhsa_group_segment_fixed_size 0")
    e.raw("  .amdhsa_kernarg_size 112")
    e.raw("  .amdhsa_user_sgpr_count 2")
    e.raw("  .amdhsa_user_sgpr_kernarg_segment_ptr 1")
    e.raw("  .amdhsa_system_sgpr_workgroup_id_x 1")
    e.raw(".end_amdhsa_kernel")


def make_srd(e, d, ptr, nbytes, off=0):
    if off:
        e(f"s_add_u32 s{d}, s{ptr}, 0x{off:x}")
        e(f"s_addc_u32 s{d + 1}, s{ptr + 1}, 0")
    else:
        e(f"s_mov_b32 s{d}, s{ptr}")
        e(f"s_mov_b32 s{d + 1}, s{ptr + 1}")
    e(f"s_mov_b32 s{d + 2}, 0x{nbytes:x}")
    e(f"s_mov_b32 s{d + 3}, 0x00020000")


def wave_sum(e, v, t):
    for off in (0x041F, 0x081F, 0x101F, 0x201F, 0x401F):
        e(f"ds_swizzle_b32 v{t}, v{v} offset:0x{off:04X}")
        e("s_waitcnt lgkmcnt(0)")
        e(f"v_add_f32 v{v}, v{v}, v{t}")
    e(f"v_mov_b32 v{t}, v{v}")
    e("s_nop 1")
    e(f"v_permlane32_swap_b32 v{t}, v{v}")
    e("s_nop 1")
    e(f"v_add_f32 v{v}, v{v}, v{t}")


def gen_ln(e):
    name = "ln_kernel"
    kernel_header(e, name)
    e("s_cmp_ge_u32 s2, 1024")
    e("s_cbranch_scc1 ln_end")
    e("s_cmp_ge_u32 s2, 512")
    e("s_cbranch_scc1 ln_pf")
    e(f"s_load_dwordx2 s[4:5], s[0:1], {KA['x']}")
    e(f"s_load_dwordx2 s[6:7], s[0:1], {KA['ws']}")
    e("v_lshrrev_b32 v1, 6, v0")
    e("v_and_b32 v2, 63, v0")
    e("s_lshl_b32 s3, s2, 2")
    e("v_add_u32 v1, s3, v1")
    e("s_movk_i32 s16, 1280")
    e("v_mul_lo_u32 v1, v1, s16")
    e("v_lshl_add_u32 v1, v2, 2, v1")
    e("s_waitcnt lgkmcnt(0)")
    make_srd(e, 8, 4, 2048 * 1280)
    make_srd(e, 12, 6, 2 * 2048 * 1280)
    for i in range(5):
        e(f"buffer_load_dword v{4 + i}, v1, s[8:11], 0 offen offset:{i * 256}")
    e("s_waitcnt vmcnt(0)")
    e("s_mov_b32 s17, 0x3acccccd")
    e("s_mov_b32 s18, 0x3727c5ac")
    e("s_mov_b32 s19, 0xffff0000")

    def ln_pass(dst_off):
        for i in range(5):
            e(f"v_lshlrev_b32 v{10 + 2 * i}, 16, v{4 + i}")
            e(f"v_and_b32 v{11 + 2 * i}, s19, v{4 + i}")
        e("v_add_f32 v20, v10, v11")
        for i in range(2, 10):
            e(f"v_add_f32 v20, v20, v{10 + i}")
        wave_sum(e, 20, 21)
        e("v_mul_f32 v20, s17, v20")
        for i in range(10):
            e(f"v_sub_f32 v{10 + i}, v{10 + i}, v20")
        e("v_mul_f32 v22, v10, v10")
        for i in range(1, 10):
            e(f"v_fmac_f32 v22, v{10 + i}, v{10 + i}")
        wave_sum(e, 22, 21)
        e("v_mov_b32 v23, s18")
        e("v_fmac_f32 v23, s17, v22")
        e("v_rsq_f32 v23, v23")
        e("s_nop 1")
        for i in range(10):
            e(f"v_mul_f32 v{10 + i}, v{10 + i}, v23")
        for i in range(5):
            e(f"v_cvt_pk_bf16_f32 v{4 + i}, v{10 + 2 * i}, v{11 + 2 * i}")
        e("s_mov_b32 s20, 0x%x" % dst_off)
        for i in range(5):
            e(f"buffer_store_dword v{4 + i}, v1, s[12:15], s20 offen offset:{i * 256}")

    ln_pass(WS_XN)
    e("s_nop 4")
    ln_pass(WS_H)
    e("s_endpgm")
    e.label("ln_pf")
    tens = [('ckv', 2048 * 1024), ('wq', 640 * 8192), ('wuk', 512 * 8192), ('wuv', 512 * 8192),
            ('w1', 2048 * 3456), ('wo', 4096 * 1280), ('w2', 1728 * 4096)]
    for i, (nm, sz) in enumerate(tens):
        e(f"s_load_dwordx2 s[{32 + 2 * i}:{33 + 2 * i}], s[0:1], {KA[nm]}")
    e("s_sub_u32 s3, s2, 512")
    e("s_lshl_b32 s3, s3, 12")
    e("v_lshlrev_b32 v1, 4, v0")
    e("v_add_u32 v1, s3, v1")
    e("s_waitcnt lgkmcnt(0)")
    nld = 0
    for i, (nm, sz) in enumerate(tens):
        make_srd(e, 8, 32 + 2 * i, sz)
        for r in range(-(-sz // (2 << 20))):
            e(f"s_mov_b32 s20, {r * (2 << 20)}")
            vd = 4 + 4 * (nld % 6)
            e(f"buffer_load_dwordx4 v[{vd}:{vd + 3}], v1, s[8:11], s20 offen")
            nld += 1
    e("s_waitcnt vmcnt(0)")
    e.label("ln_end")
    e("s_endpgm")
    return name, 32


class Op:
    def __init__(self, mode, srd, ld, base, perm=False):
        self.mode = mode
        self.srd = srd
        self.ld = ld
        self.base = base
        self.perm = perm


class Gemm:
    def __init__(self, e, tag, BA, BB, WA, WB, vbase=2, NS=2):
        self.e = e
        self.tag = tag
        self.BA, self.BB, self.WA, self.WB = BA, BB, WA, WB
        self.NW = WA * WB
        self.TA = BA // WA // 32
        self.TB = BB // WB // 32
        self.SA = BA * 128
        self.SB = BB * 128
        st = self.SA + self.SB
        self.NS = NS
        self.stage = st
        self.lds = st * NS
        self.nA = self.SA // 1024 // self.NW
        self.nB = self.SB // 1024 // self.NW
        assert self.nA * 1024 * self.NW == self.SA and self.nB * 1024 * self.NW == self.SB
        v = vbase
        self.v_lane = v; v += 1
        self.v_t0 = v; v += 1
        self.v_t1 = v; v += 1
        self.v_t2 = v; v += 1
        self.v_dmaA = v; v += self.nA
        self.v_dmaB = v; v += self.nB
        self.v_adrA = v; v += 4
        self.v_adrB = v; v += 4
        v = (v + 3) // 4 * 4
        self.v_fA = v; v += 2 * 4 * self.TA
        self.v_fB = v; v += 2 * 4 * self.TB
        self.v_acc = v; v += 16 * self.TA * self.TB
        self.v_end = v
        self.s_wave = 20
        self.s_cnt = 21
        self.s_offA = 22
        self.s_offB = 23
        self.s_t = 24
        self.s_wa = 28
        self.s_wb = 29
        self.s_stage = 30
        self.s_rd = 31

    def setup_common(self):
        e = self.e
        e(f"v_and_b32 v{self.v_lane}, 63, v0")
        e(f"v_lshrrev_b32 v{self.v_t0}, 6, v0")
        e("s_nop 0")
        e(f"v_readfirstlane_b32 s{self.s_wave}, v{self.v_t0}")
        e("s_nop 3")
        lw = int(math.log2(self.WA))
        e(f"s_and_b32 s{self.s_wa}, s{self.s_wave}, {self.WA - 1}")
        e(f"s_lshr_b32 s{self.s_wb}, s{self.s_wave}, {lw}")

    def setup_op(self, op, R, n, v_dma, v_adr, s_wcoord, T, lds_base):
        e = self.e
        L, t0, t1, t2 = self.v_lane, self.v_t0, self.v_t1, self.v_t2
        st = self.s_t
        if op.mode == 'k':
            for jj in range(n):
                e(f"s_mul_i32 s{st}, s{self.s_wave}, {n * 8}")
                e(f"s_add_u32 s{st}, s{st}, {jj * 8}")
                e(f"v_lshrrev_b32 v{t0}, 3, v{L}")
                e(f"v_add_u32 v{t0}, s{st}, v{t0}")
                e(f"v_bfe_u32 v{t1}, v{t0}, 1, 3")
                e(f"v_and_b32 v{t2}, 7, v{L}")
                e(f"v_xor_b32 v{t1}, v{t1}, v{t2}")
                e(f"s_mov_b32 s{st + 1}, {op.ld}")
                e(f"v_mul_lo_u32 v{t0}, v{t0}, s{st + 1}")
                e(f"v_lshl_add_u32 v{v_dma + jj}, v{t1}, 4, v{t0}")
            e(f"s_mul_i32 s{st}, s{s_wcoord}, {T * 32}")
            e(f"v_and_b32 v{t0}, 31, v{L}")
            e(f"v_add_u32 v{t0}, s{st}, v{t0}")
            e(f"v_bfe_u32 v{t1}, v{t0}, 1, 3")
            e(f"v_lshrrev_b32 v{t2}, 5, v{L}")
            e(f"v_lshlrev_b32 v{t0}, 7, v{t0}")
            for kk in range(4):
                e(f"v_add_u32 v{v_adr + kk}, {2 * kk}, v{t2}")
                e(f"v_xor_b32 v{v_adr + kk}, v{v_adr + kk}, v{t1}")
                e(f"v_lshl_add_u32 v{v_adr + kk}, v{v_adr + kk}, 4, v{t0}")
                if lds_base:
                    e(f"v_add_u32 v{v_adr + kk}, {lds_base}, v{v_adr + kk}")
        else:
            rb = 2 * R
            lrb = int(math.log2(rb))
            for jj in range(n):
                e(f"s_mul_i32 s{st}, s{self.s_wave}, {n * 1024}")
                e(f"s_add_u32 s{st}, s{st}, {jj * 1024}")
                e(f"v_lshlrev_b32 v{t0}, 4, v{L}")
                e(f"v_add_u32 v{t0}, s{st}, v{t0}")
                e(f"v_lshrrev_b32 v{t1}, {lrb}, v{t0}")
                e(f"v_and_b32 v{t0}, {rb - 1}, v{t0}")
                if rb >= 256:
                    e(f"v_and_b32 v{t2}, 3, v{t1}")
                else:
                    e(f"v_bfe_u32 v{t2}, v{t1}, 1, 1")
                e(f"v_lshlrev_b32 v{t2}, 6, v{t2}")
                e(f"v_xor_b32 v{t0}, v{t0}, v{t2}")
                e(f"s_mov_b32 s{st + 1}, {op.ld}")
                e(f"v_mul_lo_u32 v{t1}, v{t1}, s{st + 1}")
                e(f"v_add_u32 v{v_dma + jj}, v{t0}, v{t1}")
            e(f"v_lshrrev_b32 v{t0}, 5, v{L}")
            e(f"v_lshlrev_b32 v{t0}, {2 if op.perm else 3}, v{t0}")
            e(f"v_bfe_u32 v{t1}, v{L}, 2, 2")
            e(f"v_add_u32 v{t0}, v{t0}, v{t1}")
            e(f"v_lshlrev_b32 v{t0}, {lrb}, v{t0}")
            e(f"v_bfe_u32 v{t2}, v{L}, 4, 1")
            e(f"v_lshlrev_b32 v{t2}, 5, v{t2}")
            e(f"v_add_u32 v{t0}, v{t0}, v{t2}")
            e(f"v_and_b32 v{t2}, 3, v{L}")
            e(f"v_lshl_add_u32 v{t0}, v{t2}, 3, v{t0}")
            if rb < 256:
                e(f"v_bfe_u32 v{t1}, v{L}, 3, 1")
            for t in range(T):
                e(f"s_mul_i32 s{st}, s{s_wcoord}, {T}")
                e(f"s_add_u32 s{st}, s{st}, {t}")
                e(f"v_xor_b32 v{t2}, s{st}, v{t1}")
                e(f"v_lshl_add_u32 v{v_adr + t}, v{t2}, 6, v{t0}")
                if lds_base:
                    e(f"v_add_u32 v{v_adr + t}, {lds_base}, v{v_adr + t}")

    def n_adr(self, op, T):
        return 4 if op.mode == 'k' else T

    def issue_dma(self, op, n, v_dma, lds_base, s_off):
        e = self.e
        st = self.s_t
        for jj in range(n):
            e(f"s_mul_i32 s{st}, s{self.s_wave}, {n * 1024}")
            e(f"s_add_u32 s{st}, s{st}, s{self.s_stage}")
            e(f"s_add_u32 m0, s{st}, {lds_base + jj * 1024}")
            e("s_nop 0")
            e(f"buffer_load_dwordx4 v{v_dma + jj}, s[{op.srd}:{op.srd + 3}], s{s_off} offen lds")

    def read_frags(self, op, R, T, v_adr, v_f, kk):
        e = self.e
        cnt = 0
        if op.mode == 'k':
            for t in range(T):
                e(f"ds_read_b128 v[{v_f + 4 * t}:{v_f + 4 * t + 3}], v{v_adr + kk} offset:{t * 4096}")
                cnt += 1
        else:
            rb = 2 * R
            hstep = 8 if op.perm else 4
            for t in range(T):
                for half in range(2):
                    off = (kk * 16 + half * hstep) * rb
                    e(f"ds_read_b64_tr_b16 v[{v_f + 4 * t + 2 * half}:{v_f + 4 * t + 2 * half + 1}], v{v_adr + t} offset:{off}")
                    cnt += 1
        return cnt

    def zero_acc(self):
        for i in range(16 * self.TA * self.TB):
            self.e(f"v_mov_b32 v{self.v_acc + i}, 0")

    def run_seg(self, A, B, nk, first):
        e = self.e
        tag = self.tag
        NS = self.NS
        self.seg = getattr(self, "seg", 0) + 1
        lab = f"{tag}_s{self.seg}"
        self.setup_op(A, self.BA, self.nA, self.v_dmaA, self.v_adrA, self.s_wa, self.TA, 0)
        self.setup_op(B, self.BB, self.nB, self.v_dmaB, self.v_adrB, self.s_wb, self.TB, self.SA)
        stepA = 128 if A.mode == 'k' else 64 * A.ld
        stepB = 128 if B.mode == 'k' else 64 * B.ld
        nd = self.nA + self.nB
        assert nk >= NS
        e(f"s_mov_b32 s{self.s_offA}, s{A.base}")
        e(f"s_mov_b32 s{self.s_offB}, s{B.base}")
        e(f"s_mov_b32 s{self.s_stage}, 0")
        e(f"s_mov_b32 s{self.s_rd}, 0")
        if not first:
            e("s_barrier")

        st4 = self.s_t + 3

        def pieces():
            out = []

            def first():
                e(f"s_mul_i32 s{st4}, s{self.s_wave}, {self.nA * 1024}")
                e(f"s_add_u32 s{st4}, s{st4}, s{self.s_stage}")
            for jj in range(self.nA):
                def f(jj=jj):
                    if jj == 0:
                        first()
                    e(f"s_add_u32 m0, s{st4}, {jj * 1024}")
                    e("s_nop 0")
                    e(f"buffer_load_dwordx4 v{self.v_dmaA + jj}, s[{A.srd}:{A.srd + 3}], s{self.s_offA} offen lds")
                out.append(f)
            for jj in range(self.nB):
                def f(jj=jj):
                    if jj == 0:
                        e(f"s_mul_i32 s{st4}, s{self.s_wave}, {self.nB * 1024}")
                        e(f"s_add_u32 s{st4}, s{st4}, s{self.s_stage}")
                    e(f"s_add_u32 m0, s{st4}, {self.SA + jj * 1024}")
                    e("s_nop 0")
                    e(f"buffer_load_dwordx4 v{self.v_dmaB + jj}, s[{B.srd}:{B.srd + 3}], s{self.s_offB} offen lds")
                    if jj == self.nB - 1:
                        e(f"s_add_u32 s{self.s_offA}, s{self.s_offA}, {stepA}")
                        e(f"s_add_u32 s{self.s_offB}, s{self.s_offB}, {stepB}")
                        e(f"s_add_u32 s{self.s_stage}, s{self.s_stage}, {self.stage}")
                        e(f"s_cmp_eq_u32 s{self.s_stage}, {self.stage * NS}")
                        e(f"s_cselect_b32 s{self.s_stage}, 0, s{self.s_stage}")
                out.append(f)
            return out

        for i in range(NS - 1):
            for f in pieces():
                f()
        szA = 4 * self.TA
        szB = 4 * self.TB

        def reads(kk):
            buf = kk & 1
            c = self.read_frags(A, self.BA, self.TA, self.v_adrA, self.v_fA + buf * szA, kk)
            c += self.read_frags(B, self.BB, self.TB, self.v_adrB, self.v_fB + buf * szB, kk)
            return c

        early = NS >= 3

        def compute(pcs, last=False):
            pcs = list(pcs)
            nm = self.TA * self.TB
            per = -(-len(pcs) // 3) if pcs else 0
            gap = max(1, nm // max(per, 1))
            if not early:
                reads(0)
            for kk in range(4):
                nxt = reads(kk + 1) if kk < 3 else 0
                e(f"s_waitcnt lgkmcnt({nxt})")
                buf = kk & 1
                i = 0
                used = 0
                for ta in range(self.TA):
                    for tb in range(self.TB):
                        d = self.v_acc + 16 * (ta * self.TB + tb)
                        a = self.v_fA + buf * szA + 4 * ta
                        b = self.v_fB + buf * szB + 4 * tb
                        e(f"v_mfma_f32_32x32x16_bf16 v[{d}:{d + 15}], v[{a}:{a + 3}], v[{b}:{b + 3}], v[{d}:{d + 15}]")
                        i += 1
                        if pcs and used < per and (i % gap == 0):
                            pcs.pop(0)()
                            used += 1
                if kk == 2:
                    while pcs:
                        pcs.pop(0)()
            st = self.s_t
            e(f"s_add_u32 s{st}, s{self.s_rd}, {self.stage}")
            e(f"s_cmp_eq_u32 s{st}, {self.stage * NS}")
            e(f"s_cselect_b32 s{st}, 0, s{st}")
            e(f"s_sub_u32 s{st + 1}, s{st}, s{self.s_rd}")
            e(f"s_mov_b32 s{self.s_rd}, s{st}")
            for i in range(self.n_adr(A, self.TA)):
                e(f"v_add_u32 v{self.v_adrA + i}, s{st + 1}, v{self.v_adrA + i}")
            for i in range(self.n_adr(B, self.TB)):
                e(f"v_add_u32 v{self.v_adrB + i}, s{st + 1}, v{self.v_adrB + i}")
            if early and not last:
                reads(0)

        if early:
            e(f"s_waitcnt vmcnt({(NS - 2) * nd})")
            e("s_barrier")
            reads(0)
        lag = 1 if early else 0
        e(f"s_mov_b32 s{self.s_cnt}, {nk - (NS - 1)}")
        e.label(f"{lab}_loop")
        e(f"s_waitcnt vmcnt({(NS - 2 - lag) * nd})")
        e("s_barrier")
        compute(pieces())
        e(f"s_sub_u32 s{self.s_cnt}, s{self.s_cnt}, 1")
        e(f"s_cmp_lg_u32 s{self.s_cnt}, 0")
        e(f"s_cbranch_scc1 {lab}_loop")
        for i in range(NS - 1):
            e(f"s_waitcnt vmcnt({max(NS - 2 - i - lag, 0) * nd})")
            e("s_barrier")
            compute([], last=(i == NS - 2))

    def out_addr(self, v_dst, s_rowA0, s_colB0, ld_out):
        e = self.e
        L, t0, st = self.v_lane, self.v_t0, self.s_t
        e(f"s_mul_i32 s{st}, s{self.s_wb}, {self.TB * 32}")
        e(f"s_add_u32 s{st}, s{st}, s{s_colB0}")
        e(f"v_and_b32 v{t0}, 31, v{L}")
        e(f"v_add_u32 v{t0}, s{st}, v{t0}")
        e(f"s_mov_b32 s{st + 1}, {ld_out}")
        e(f"v_mul_lo_u32 v{t0}, v{t0}, s{st + 1}")
        e(f"s_mul_i32 s{st}, s{self.s_wa}, {self.TA * 32}")
        e(f"s_add_u32 s{st}, s{st}, s{s_rowA0}")
        e(f"s_lshl_b32 s{st}, s{st}, 1")
        e(f"v_add_u32 v{t0}, s{st}, v{t0}")
        e(f"v_lshrrev_b32 v{v_dst}, 5, v{L}")
        return t0

    def epi_tile(self, srd_out, s_base):
        e = self.e
        va, t0, L = self.v_t1, self.v_t0, self.v_lane
        e(f"v_and_b32 v{t0}, 31, v{L}")
        e(f"v_lshlrev_b32 v{t0}, 8, v{t0}")
        e(f"v_add_u32 v{t0}, s{s_base}, v{t0}")
        e(f"v_lshrrev_b32 v{va}, 5, v{L}")
        e(f"v_lshl_add_u32 v{va}, v{va}, 4, v{t0}")
        e("s_nop 15")
        e("s_nop 7")
        pk = self.v_fA
        nb = 0
        for tb in range(self.TB):
            e(f"s_mov_b32 s{self.s_t}, {tb * 8192}")
            for ta in range(self.TA):
                d = self.v_acc + 16 * (ta * self.TB + tb)
                p = pk + 8 * (nb & 1)
                nb += 1
                for i in range(8):
                    e(f"v_cvt_pk_bf16_f32 v{p + i}, v{d + 2 * i}, v{d + 2 * i + 1}")
                e(f"buffer_store_dwordx4 v[{p}:{p + 3}], v{va}, s[{srd_out}:{srd_out + 3}], s{self.s_t} offen offset:{ta * 64}")
                e(f"buffer_store_dwordx4 v[{p + 4}:{p + 7}], v{va}, s[{srd_out}:{srd_out + 3}], s{self.s_t} offen offset:{ta * 64 + 32}")
                e("s_nop 1")

    def epi_perm(self, srd_out, s_rowA0, s_colB0, ld_out):
        e = self.e
        va = self.v_t1
        t0 = self.out_addr(va, s_rowA0, s_colB0, ld_out)
        e(f"v_lshl_add_u32 v{va}, v{va}, 4, v{t0}")
        e("s_nop 15")
        e("s_nop 7")
        pk = self.v_fA
        nb = 0
        for ta in range(self.TA):
            for tb in range(self.TB):
                d = self.v_acc + 16 * (ta * self.TB + tb)
                p = pk + 8 * (nb & 1)
                nb += 1
                for i in range(8):
                    e(f"v_cvt_pk_bf16_f32 v{p + i}, v{d + 2 * i}, v{d + 2 * i + 1}")
                off = tb * 32 * ld_out + ta * 64
                assert off + 32 < 4096 or True
                if off + 32 < 4096:
                    e(f"buffer_store_dwordx4 v[{p}:{p + 3}], v{va}, s[{srd_out}:{srd_out + 3}], 0 offen offset:{off}")
                    e(f"buffer_store_dwordx4 v[{p + 4}:{p + 7}], v{va}, s[{srd_out}:{srd_out + 3}], 0 offen offset:{off + 32}")
                else:
                    e(f"s_mov_b32 s{self.s_t}, {tb * 32 * ld_out}")
                    e(f"buffer_store_dwordx4 v[{p}:{p + 3}], v{va}, s[{srd_out}:{srd_out + 3}], s{self.s_t} offen offset:{ta * 64}")
                    e(f"buffer_store_dwordx4 v[{p + 4}:{p + 7}], v{va}, s[{srd_out}:{srd_out + 3}], s{self.s_t} offen offset:{ta * 64 + 32}")
                e("s_nop 1")


P1_NU = 35
P1_NQ = 128


def gen_p1(e):
    name = "proj_kernel"
    kernel_header(e, name)
    ntot = P1_NU + 3 * P1_NQ
    e(f"s_cmp_ge_u32 s2, {ntot}")
    e("s_cbranch_scc1 p1_end")
    e(f"s_load_dwordx2 s[32:33], s[0:1], {KA['ckv']}")
    e(f"s_load_dwordx2 s[34:35], s[0:1], {KA['wq']}")
    e(f"s_load_dwordx2 s[36:37], s[0:1], {KA['wuk']}")
    e(f"s_load_dwordx2 s[38:39], s[0:1], {KA['wuv']}")
    e(f"s_load_dwordx2 s[40:41], s[0:1], {KA['w1']}")
    e(f"s_load_dwordx2 s[42:43], s[0:1], {KA['b1']}")
    e(f"s_load_dwordx2 s[44:45], s[0:1], {KA['ws']}")
    e("s_waitcnt lgkmcnt(0)")
    e(f"s_cmp_lt_u32 s2, {P1_NU}")
    e("s_cbranch_scc1 p1_u")
    e(f"s_cmp_lt_u32 s2, {P1_NU + P1_NQ}")
    e("s_cbranch_scc1 p1_q")
    e(f"s_cmp_lt_u32 s2, {P1_NU + 2 * P1_NQ}")
    e("s_cbranch_scc1 p1_k")
    e("s_branch p1_v")
    vmax = 0

    for tag, wptr, K, xsrc, xld, wsoff, id0 in (("p1_q", 34, 640, 'xn', 1280, WS_Q, P1_NU),
                                                 ("p1_k", 36, 512, 'ckv', 1024, WS_K, P1_NU + P1_NQ)):
        e.label(tag)
        g = Gemm(e, tag, 256, 256, 2, 4)
        vmax = max(vmax, g.v_end)
        make_srd(e, 4, wptr, K * 8192)
        if xsrc == 'xn':
            make_srd(e, 8, 44, 2048 * 1280, WS_XN)
        else:
            make_srd(e, 8, 32, 2048 * 1024)
        make_srd(e, 12, 44, 2048 * 8192, wsoff)
        e(f"s_sub_u32 s3, s2, {id0}")
        e("s_and_b32 s46, s3, 15")
        e("s_lshr_b32 s47, s3, 4")
        e("s_lshl_b32 s46, s46, 8")
        e("s_lshl_b32 s47, s47, 8")
        e("s_lshl_b32 s48, s46, 1")
        e(f"s_mul_i32 s49, s47, {xld}")
        g.setup_common()
        g.zero_acc()
        g.run_seg(Op('t', 4, 8192, 48), Op('k', 8, xld, 49), K // 64, True)
        e(f"s_lshr_b32 s50, s46, 7")
        e(f"s_add_u32 s50, s50, s{g.s_wa}")
        e("s_lshl_b32 s50, s50, 19")
        e(f"s_lshl_b32 s51, s{g.s_wb}, 6")
        e("s_add_u32 s51, s51, s47")
        e("s_lshl_b32 s51, s51, 8")
        e("s_add_u32 s50, s50, s51")
        g.epi_tile(12, 50)
        e("s_endpgm")

    e.label("p1_v")
    g = Gemm(e, "p1_v", 256, 256, 2, 4)
    vmax = max(vmax, g.v_end)
    make_srd(e, 4, 32, 2048 * 1024)
    make_srd(e, 8, 38, 512 * 8192)
    make_srd(e, 12, 44, 4096 * 4096, WS_VT)
    e(f"s_sub_u32 s3, s2, {P1_NU + 2 * P1_NQ}")
    e("s_and_b32 s46, s3, 7")
    e("s_lshr_b32 s47, s3, 3")
    e("s_lshl_b32 s46, s46, 8")
    e("s_lshl_b32 s47, s47, 8")
    e("s_mul_i32 s48, s46, 1024")
    e("s_lshl_b32 s49, s47, 1")
    g.setup_common()
    g.zero_acc()
    g.run_seg(Op('k', 4, 1024, 48), Op('t', 8, 8192, 49), 8, True)
    e("s_lshr_b32 s50, s47, 7")
    e(f"s_lshr_b32 s51, s{g.s_wb}, 1")
    e("s_add_u32 s50, s50, s51")
    e("s_lshl_b32 s50, s50, 19")
    e("s_lshr_b32 s51, s46, 7")
    e(f"s_add_u32 s51, s51, s{g.s_wa}")
    e("s_lshl_b32 s51, s51, 15")
    e("s_add_u32 s50, s50, s51")
    e(f"s_and_b32 s51, s{g.s_wb}, 1")
    e("s_lshl_b32 s51, s51, 14")
    e("s_add_u32 s50, s50, s51")
    g.epi_tile(12, 50)
    e("s_endpgm")

    e.label("p1_u")
    g = Gemm(e, "p1_u", 256, 128, 4, 2)
    vmax = max(vmax, g.v_end)
    make_srd(e, 4, 40, 2048 * 3456)
    make_srd(e, 8, 44, 2048 * 1280, WS_H)
    make_srd(e, 12, 44, 640 * 3456, WS_U)
    make_srd(e, 16, 42, 3456)
    e("s_mul_i32 s46, s2, 37")
    e("s_lshr_b32 s47, s46, 8")
    e("s_mul_i32 s46, s47, 7")
    e("s_sub_u32 s46, s2, s46")
    e("s_lshl_b32 s46, s46, 8")
    e("s_lshl_b32 s47, s47, 7")
    e("s_lshl_b32 s48, s46, 1")
    e("s_lshl_b32 s49, s47, 1")
    g.setup_common()
    g.zero_acc()
    g.run_seg(Op('t', 4, 3456, 48), Op('t', 8, 1280, 49), 32, True)
    va = g.v_t1
    t0 = g.out_addr(va, 46, 47, 3456)
    e(f"v_lshl_add_u32 v{va}, v{va}, 4, v{t0}")
    vb = g.v_t2
    e(f"s_mul_i32 s24, s{g.s_wa}, {g.TA * 32}")
    e("s_add_u32 s50, s24, s46")
    e("s_lshl_b32 s24, s50, 1")
    e(f"v_lshrrev_b32 v{vb}, 5, v{g.v_lane}")
    e(f"v_lshlrev_b32 v{vb}, 3, v{vb}")
    e(f"v_add_u32 v{vb}, s24, v{vb}")
    e("s_nop 15")
    e("s_nop 7")
    e("s_mov_b32 s51, 0xffff0000")
    e("s_mov_b32 s52, 0x3d372713")
    e("s_mov_b32 s53, 0xc0135761")
    bias = g.v_fA
    bf = g.v_fA + 8
    tmp = g.v_fA + 24
    for ta in range(g.TA):
        e(f"s_add_u32 s24, s50, {ta * 32}")
        e("s_cmp_ge_u32 s24, 1728")
        e(f"s_cbranch_scc1 p1_u_skip{ta}")
        for q in range(4):
            e(f"buffer_load_dwordx2 v[{bias + 2 * q}:{bias + 2 * q + 1}], v{vb}, s[16:19], 0 offen offset:{ta * 64 + q * 16}")
        e("s_waitcnt vmcnt(0)")
        for i in range(8):
            e(f"v_lshlrev_b32 v{bf + 2 * i}, 16, v{bias + i}")
            e(f"v_and_b32 v{bf + 2 * i + 1}, s51, v{bias + i}")
        for tb in range(g.TB):
            d = g.v_acc + 16 * (ta * g.TB + tb)
            for i in range(16):
                x = d + i
                e(f"v_add_f32 v{x}, v{x}, v{bf + i}")
                e(f"v_mul_f32 v{tmp}, v{x}, v{x}")
                e(f"v_fma_f32 v{tmp}, v{tmp}, s52, 1.0")
                e(f"v_mul_f32 v{tmp}, v{tmp}, v{x}")
                e(f"v_mul_f32 v{tmp}, s53, v{tmp}")
                e(f"v_exp_f32 v{tmp}, v{tmp}")
                e("s_nop 0")
                e(f"v_add_f32 v{tmp}, 1.0, v{tmp}")
                e(f"v_rcp_f32 v{tmp}, v{tmp}")
                e("s_nop 0")
                e(f"v_mul_f32 v{x}, v{x}, v{tmp}")
            p = bias
            for i in range(8):
                e(f"v_cvt_pk_bf16_f32 v{p + i}, v{d + 2 * i}, v{d + 2 * i + 1}")
            e(f"s_mov_b32 s24, {tb * 32 * 3456}")
            e(f"buffer_store_dwordx4 v[{p}:{p + 3}], v{va}, s[12:15], s24 offen offset:{ta * 64}")
            e(f"buffer_store_dwordx4 v[{p + 4}:{p + 7}], v{va}, s[12:15], s24 offen offset:{ta * 64 + 32}")
            e("s_nop 1")
        e.label(f"p1_u_skip{ta}")
    e.label("p1_end")
    e("s_endpgm")
    return name, vmax, ntot, 131072


def gen_attn(e):
    name = "attn_kernel"
    kernel_header(e, name)
    e("s_cmp_ge_u32 s2, 256")
    e("s_cbranch_scc1 at_end")
    e(f"s_load_dwordx2 s[44:45], s[0:1], {KA['ws']}")
    e(f"s_load_dwordx2 s[60:61], s[0:1], {KA['dbg']}")
    nst = [0]
    if 'wgt' in XP:
        e("s_memrealtime s[90:91]")

    def stamp():
        if 'stamp' in XP and nst[0] < 12:
            e(f"s_memtime s[{64 + 2 * nst[0]}:{65 + 2 * nst[0]}]")
            nst[0] += 1
    vL, vt0, vt1, vt2 = 1, 2, 3, 4
    vdK, vdV = 6, 10
    vaK, vaV = 14, 22
    vm, vl, vmask, vst = 26, 27, 28, 29
    valpha, vmc, vx0, vx1 = 30, 31, 32, 33
    vcc2 = 34
    vQ = 36
    vS = 68
    vP = 100
    vF0 = 116
    vF1 = 148
    vO = 180
    VEND = 244
    sW, sG, sQS, sH, sJ, sQB, sIT, sKoff, sVoff, sStage, sT, sC, sPass, sQ0 = 20, 21, 22, 23, 24, 25, 26, 27, 28, 29, 30, 34, 35, 36
    sVst, sKrd, sVrd = 37, 38, 39
    e(f"v_and_b32 v{vL}, 63, v0")
    e(f"v_lshrrev_b32 v{vt0}, 6, v0")
    e("s_nop 0")
    e(f"v_readfirstlane_b32 s{sW}, v{vt0}")
    e("s_nop 3")
    e(f"s_lshr_b32 s{sG}, s{sW}, 2")
    e(f"s_and_b32 s{sQS}, s{sW}, 3")
    e("s_and_b32 s3, s2, 7")
    e(f"s_lshr_b32 s{sT}, s2, 3")
    e(f"s_lshr_b32 s{sH}, s{sT}, 3")
    e(f"s_lshl_b32 s3, s3, 2")
    e(f"s_add_u32 s{sH}, s{sH}, s3")
    e(f"s_and_b32 s{sJ}, s{sT}, 7")
    e("s_waitcnt lgkmcnt(0)")
    make_srd(e, 4, 44, 2048 * 8192, WS_Q)
    make_srd(e, 8, 44, 2048 * 8192, WS_K)
    make_srd(e, 12, 44, 4096 * 4096, WS_VT)
    make_srd(e, 16, 44, 2048 * 8192, WS_CTX)
    e(f"s_mov_b32 s{sC}, 0x3e0293ee")
    for jj in range(4):
        e(f"s_lshl_b32 s{sT}, s{sW}, 4")
        e(f"s_add_u32 s{sT}, s{sT}, {jj * 4}")
        e(f"v_lshrrev_b32 v{vt0}, 4, v{vL}")
        e(f"v_add_u32 v{vt0}, s{sT}, v{vt0}")
        e(f"v_xor_b32 v{vt1}, v{vt0}, v{vL}")
        e(f"v_and_b32 v{vt1}, 15, v{vt1}")
        e(f"v_lshlrev_b32 v{vt1}, 4, v{vt1}")
        e(f"v_lshl_add_u32 v{vdK + jj}, v{vt0}, 8, v{vt1}")
        if jj:
            e(f"v_subrev_u32 v{vdK + jj}, {jj * 1024}, v{vdK + jj}")
        e(f"v_mov_b32 v{vdV + jj}, v{vdK + jj}")
    e(f"v_and_b32 v{vt0}, 31, v{vL}")
    e(f"v_lshrrev_b32 v{vt1}, 5, v{vL}")
    e(f"v_and_b32 v{vt2}, 15, v{vL}")
    e(f"v_xor_b32 v{vt2}, v{vt2}, v{vt1}")
    e(f"v_lshlrev_b32 v{vt2}, 4, v{vt2}")
    e(f"s_lshl_b32 s{sT}, s{sG}, 6")
    e(f"v_add_u32 v{vx0}, s{sT}, v{vt0}")
    e(f"v_lshl_add_u32 v{vx0}, v{vx0}, 8, v{vt2}")
    for kk in range(8):
        e(f"v_xor_b32 v{vaK + kk}, {kk * 32}, v{vx0}")
    e(f"v_lshl_add_u32 v{vx0}, v{vt0}, 8, v{vt2}")
    e(f"v_add_u32 v{vx0}, 65536, v{vx0}")
    e(f"s_lshl_b32 s{sT}, s{sG}, 7")
    e(f"v_xor_b32 v{vx0}, s{sT}, v{vx0}")
    for kk in range(4):
        e(f"v_xor_b32 v{vaV + kk}, {kk * 32}, v{vx0}")
    e(f"s_lshl_b32 s{sT}, s{sQS}, 5")
    e(f"s_lshl_b32 s{sT + 1}, s{sG}, 6")
    e(f"s_sub_u32 s{sT}, s{sT}, s{sT + 1}")
    e(f"v_add_u32 v{vmask}, s{sT}, v{vt0}")
    e(f"v_lshlrev_b32 v{vt1}, 2, v{vt1}")
    e(f"v_sub_u32 v{vmask}, v{vmask}, v{vt1}")
    e(f"s_mov_b32 s{sPass}, 0")
    e(f"v_mov_b32 v{vcc2}, s{sC}")
    e(f"v_mov_b32 v{vcc2 + 1}, s{sC}")
    e(f"s_sub_u32 s{sQB}, 15, s{sJ}")
    vsto = 5

    def block_pf():
        e(f"s_lshl_b32 s{sQ0}, s{sQB}, 7")
        e(f"s_lshl_b32 s{sT}, s{sQS}, 5")
        e(f"s_add_u32 s{sT}, s{sT}, s{sQ0}")
        e(f"v_and_b32 v{vt0}, 31, v{vL}")
        e(f"v_add_u32 v{vt0}, s{sT}, v{vt0}")
        e(f"v_lshrrev_b32 v{vt1}, 5, v{vL}")
        e(f"v_lshlrev_b32 v{vt1}, 4, v{vt1}")
        e(f"v_lshl_add_u32 v{vt2}, v{vt0}, 8, v{vt1}")
        e(f"v_lshl_add_u32 v{vt0}, v{vt0}, 13, v{vt1}")
        e(f"s_lshl_b32 s{sT}, s{sH}, 8")
        e(f"v_add_u32 v{vst}, s{sT}, v{vt0}")
        e(f"s_lshl_b32 s{sT}, s{sH}, 19")
        for kk in range(8):
            e(f"buffer_load_dwordx4 v[{vQ + 4 * kk}:{vQ + 4 * kk + 3}], v{vt2}, s[4:7], s{sT} offen offset:{kk * 32}")
        e(f"s_lshl_b32 s{sKoff}, s{sH}, 19")
        e(f"s_lshl_b32 s{sVoff}, s{sH}, 19")
        e(f"s_mov_b32 s{sStage}, 0")
        e(f"s_mov_b32 s{sVst}, 0")
        e(f"s_mov_b32 s{sKrd}, 0")
        e(f"s_mov_b32 s{sVrd}, 0")
        dma()

    sDK, sDV, sD = 40, 41, 42

    def dma_setup():
        e(f"s_lshl_b32 s{sT}, s{sW}, 12")
        e(f"s_add_u32 s{sDK}, s{sT}, s{sStage}")
        e(f"s_add_u32 s{sDV}, s{sT}, s{sVst}")
        e(f"s_add_u32 s{sDV}, s{sDV}, 65536")

    def dma_piece(i):
        jj = i & 3
        if i == 0:
            e(f"s_mov_b32 m0, s{sDK}")
            e("s_nop 0")
        if i == 4:
            e(f"s_mov_b32 m0, s{sDV}")
            e("s_nop 0")
        if i < 4:
            e(f"buffer_load_dwordx4 v{vdK + jj}, s[8:11], s{sKoff} offen offset:{jj * 1024} lds")
        else:
            e(f"buffer_load_dwordx4 v{vdV + jj}, s[12:15], s{sVoff} offen offset:{jj * 1024} lds")

    def dma_advance():
        e(f"s_add_u32 s{sKoff}, s{sKoff}, 32768")
        e(f"s_add_u32 s{sVoff}, s{sVoff}, 32768")
        e(f"s_xor_b32 s{sStage}, s{sStage}, 32768")
        e(f"s_add_u32 s{sVst}, s{sVst}, 32768")
        e(f"s_cmp_eq_u32 s{sVst}, 98304")
        e(f"s_cselect_b32 s{sVst}, 0, s{sVst}")

    def dma():
        dma_setup()
        for i in range(8):
            dma_piece(i)
        dma_advance()

    pcnt = [0]

    def cond_piece(i):
        pcnt[0] += 1
        lab = f"at_np{pcnt[0]}"
        e(f"s_cmp_eq_u32 s{sD}, 0")
        e(f"s_cbranch_scc1 {lab}")
        dma_piece(i)
        if i == 7:
            dma_advance()
        e.label(lab)

    def top(tag):
        e("s_waitcnt vmcnt(0)")
        e("s_barrier")
        e(f"s_cmp_lg_u32 s{sIT}, s{sQB}")
        e(f"s_cselect_b32 s{sD}, 1, 0")
        dma_setup()

    def kreads(t):
        F = vF0 if t == 0 else vF1
        for kk in range(8):
            e(f"ds_read_b128 v[{F + 4 * kk}:{F + 4 * kk + 3}], v{vaK + kk} offset:{t * 8192}")

    def qk_mfma(t, pieces=()):
        F = vF0 if t == 0 else vF1
        d = vS + 16 * t
        pieces = list(pieces)
        for kk in range(8):
            c = "0" if kk == 0 else f"v[{d}:{d + 15}]"
            e(f"v_mfma_f32_32x32x16_bf16 v[{d}:{d + 15}], v[{F + 4 * kk}:{F + 4 * kk + 3}], v[{vQ + 4 * kk}:{vQ + 4 * kk + 3}], {c}")
            if pieces and kk & 1:
                cond_piece(pieces.pop(0))

    def k_adv():
        for i in range(8):
            e(f"v_xor_b32 v{vaK + i}, 0x8000, v{vaK + i}")
        e(f"s_xor_b32 s{sKrd}, s{sKrd}, 32768")

    def vreads():
        for dt in range(4):
            F = (vF0 if dt < 2 else vF1) + 16 * (dt & 1)
            for kk in range(4):
                e(f"ds_read_b128 v[{F + 4 * kk}:{F + 4 * kk + 3}], v{vaV + kk} offset:{dt * 8192}")
        e(f"s_add_u32 s{sT}, s{sVrd}, 32768")
        e(f"s_cmp_eq_u32 s{sT}, 98304")
        e(f"s_cselect_b32 s{sT}, 0, s{sT}")
        e(f"s_sub_u32 s{sT + 1}, s{sT}, s{sVrd}")
        e(f"s_mov_b32 s{sVrd}, s{sT}")
        for i in range(4):
            e(f"v_add_u32 v{vaV + i}, s{sT + 1}, v{vaV + i}")

    def pv_mfma(dts, pieces=()):
        pieces = list(pieces)
        for dt in dts:
            F = (vF0 if dt < 2 else vF1) + 16 * (dt & 1)
            d = vO + 16 * dt
            for kk in range(4):
                e(f"v_mfma_f32_32x32x16_bf16 v[{d}:{d + 15}], v[{F + 4 * kk}:{F + 4 * kk + 3}], v[{vP + 4 * kk}:{vP + 4 * kk + 3}], v[{d}:{d + 15}]")
                if pieces and kk & 1:
                    cond_piece(pieces.pop(0))

    def mask():
        e(f"v_mov_b32 v{vx0}, 0xf149f2ca")
        for t in range(2):
            for r in range(16):
                cst = t * 32 + (r & 3) + 8 * (r >> 2)
                e(f"v_cmp_gt_i32 vcc, {cst}, v{vmask}")
                e("s_nop 1")
                e(f"v_cndmask_b32 v{vS + 16 * t + r}, v{vS + 16 * t + r}, v{vx0}, vcc")

    def softmax(tag, with_dma=False):
        e("s_nop 0" if "noprio" in XP else ("s_setprio 0" if "invprio" in XP else "s_setprio 1"))
        e(f"v_max3_f32 v{vx0}, v{vS}, v{vS + 1}, v{vS + 2}")
        for i in range(3, 31, 2):
            e(f"v_max3_f32 v{vx0}, v{vx0}, v{vS + i}, v{vS + i + 1}")
        e(f"v_max_f32 v{vx0}, v{vx0}, v{vS + 31}")
        e(f"v_mov_b32 v{vx1}, v{vx0}")
        e("s_nop 1")
        e(f"v_permlane32_swap_b32 v{vx0}, v{vx1}")
        e("s_nop 1")
        e(f"v_max3_f32 v{vx0}, v{vx0}, v{vx1}, v{vm}")
        e(f"v_sub_f32 v{valpha}, v{vm}, v{vx0}")
        e(f"v_mul_f32 v{valpha}, s{sC}, v{valpha}")
        e(f"v_cmp_gt_f32 vcc, -8.0, v{valpha}")
        e("s_nop 4")
        e(f"s_cbranch_vccz {tag}_norescale")
        e(f"v_exp_f32 v{valpha}, v{valpha}")
        e(f"v_mov_b32 v{vm}, v{vx0}")
        e(f"v_mul_f32 v{vl}, v{vl}, v{valpha}")
        for i in range(64):
            e(f"v_mul_f32 v{vO + i}, v{vO + i}, v{valpha}")
        e.label(f"{tag}_norescale")
        e(f"v_mul_f32 v{vx0}, s{sC}, v{vm}")
        e(f"v_sub_f32 v{vx0}, 0, v{vx0}")
        e(f"v_mov_b32 v{vx1}, v{vx0}")
        for i in range(16):
            r = vS + 2 * i
            e(f"v_pk_fma_f32 v[{r}:{r + 1}], v[{r}:{r + 1}], v[{vcc2}:{vcc2 + 1}], v[{vx0}:{vx1}]")
            e(f"v_exp_f32 v{r}, v{r}")
            e(f"v_exp_f32 v{r + 1}, v{r + 1}")
        vreads()
        e(f"v_pk_add_f32 v[{vx0}:{vx1}], v[{vS}:{vS + 1}], v[{vS + 2}:{vS + 3}]")
        for i in range(2, 16):
            e(f"v_pk_add_f32 v[{vx0}:{vx1}], v[{vx0}:{vx1}], v[{vS + 2 * i}:{vS + 2 * i + 1}]")
        e(f"v_add_f32 v{vl}, v{vl}, v{vx0}")
        e(f"v_add_f32 v{vl}, v{vl}, v{vx1}")
        for i in range(16):
            e(f"v_cvt_pk_bf16_f32 v{vP + i}, v{vS + 2 * i}, v{vS + 2 * i + 1}")
        e("s_nop 0" if "noprio" in XP else ("s_setprio 1" if "invprio" in XP else "s_setprio 0"))

    def pv_qk(with_pv, with_dma):
        pc = list(range(8)) if with_dma else []
        if with_pv:
            e("s_waitcnt lgkmcnt(0)")
            e("s_nop 1")
            pv_mfma((0, 1), pc[0:4])
            kreads(0)
            pv_mfma((2, 3), pc[4:8])
            kreads(1)
            e("s_waitcnt lgkmcnt(8)")
            qk_mfma(0)
            e("s_waitcnt lgkmcnt(0)")
            qk_mfma(1)
        else:
            kreads(0)
            kreads(1)
            e("s_waitcnt lgkmcnt(8)")
            qk_mfma(0, pc[0:4])
            e("s_waitcnt lgkmcnt(0)")
            qk_mfma(1, pc[4:8])
        k_adv()

    def pv_only():
        e("s_waitcnt lgkmcnt(0)")
        e("s_nop 1")
        pv_mfma((0, 1, 2, 3))

    block_pf()
    e.label("at_qblock")
    e(f"v_mov_b32 v{vm}, 0xf149f2ca")
    e(f"v_mov_b32 v{vl}, 0")
    for i in range(64):
        e(f"v_mov_b32 v{vO + i}, 0")
    e(f"s_mov_b32 s{sIT}, 0")
    e(f"s_cmp_eq_u32 s{sG}, 1")
    e("s_cbranch_scc1 at1_loop")
    e.label("at0_loop")
    stamp()
    top("at0")
    stamp()
    e(f"s_cmp_eq_u32 s{sIT}, 0")
    e("s_cbranch_scc1 at0_first")
    pv_qk(True, True)
    e("s_branch at0_sm")
    e.label("at0_first")
    pv_qk(False, True)
    e.label("at0_sm")
    stamp()
    e("s_nop 15")
    e(f"s_cmp_lg_u32 s{sIT}, s{sQB}")
    e("s_cbranch_scc1 at0_nomask")
    mask()
    e.label("at0_nomask")
    softmax("at0")
    stamp()
    if 'stamp' in XP:
        e("s_waitcnt lgkmcnt(0)")
        e(f"s_cmp_eq_u32 s{sIT}, 5")
        e("s_cbranch_scc0 at0_nost")
        e("s_cmp_eq_u32 s2, 0")
        e("s_cbranch_scc0 at0_nost")
        e(f"s_cmp_eq_u32 s{sW}, 0")
        e("s_cbranch_scc0 at0_nost")
        e(f"v_mov_b32 v{vx0}, 0")
        for i in range(6):
            e(f"v_mov_b32 v{vx1}, s{64 + 2 * i}")
            e(f"global_store_dword v{vx0}, v{vx1}, s[60:61] offset:{4 * i}")
            e("s_nop 1")
        e.label("at0_nost")
    e(f"s_add_u32 s{sIT}, s{sIT}, 1")
    e(f"s_cmp_le_u32 s{sIT}, s{sQB}")
    e("s_cbranch_scc1 at0_loop")
    pv_only()
    e("s_branch at_done")
    e.label("at1_loop")
    nst[0] = 0
    stamp()
    top("at1")
    stamp()
    e(f"s_cmp_eq_u32 s{sIT}, 0")
    e("s_cbranch_scc1 at1_first")
    softmax("at1", with_dma=False)
    stamp()
    e(f"s_cmp_lg_u32 s{sIT}, s{sQB}")
    e("s_cbranch_scc1 at1_doqk")
    e(f"s_cmp_lt_u32 s{sQS}, 2")
    e("s_cbranch_scc0 at1_doqk")
    pv_only()
    e("s_branch at_done")
    e.label("at1_doqk")
    pv_qk(True, True)
    e("s_branch at1_next")
    e.label("at1_first")
    for i in range(8):
        cond_piece(i)
    e(f"s_cmp_lg_u32 s{sIT}, s{sQB}")
    e("s_cbranch_scc1 at1_doqk0")
    e(f"s_cmp_lt_u32 s{sQS}, 2")
    e("s_cbranch_scc1 at_done")
    e.label("at1_doqk0")
    pv_qk(False, False)
    e.label("at1_next")
    stamp()
    if 'stamp' in XP:
        e("s_waitcnt lgkmcnt(0)")
        e(f"s_cmp_eq_u32 s{sIT}, 5")
        e("s_cbranch_scc0 at1_nost")
        e("s_cmp_eq_u32 s2, 0")
        e("s_cbranch_scc0 at1_nost")
        e(f"s_cmp_eq_u32 s{sW}, 4")
        e("s_cbranch_scc0 at1_nost")
        e(f"v_mov_b32 v{vx0}, 0")
        for i in range(6):
            e(f"v_mov_b32 v{vx1}, s{64 + 2 * i}")
            e(f"global_store_dword v{vx0}, v{vx1}, s[60:61] offset:{24 + 4 * i}")
            e("s_nop 1")
        e.label("at1_nost")
    e(f"s_add_u32 s{sIT}, s{sIT}, 1")
    e(f"s_cmp_le_u32 s{sIT}, s{sQB}")
    e("s_cbranch_scc1 at1_loop")
    e("s_nop 15")
    mask()
    softmax("at1b")
    pv_only()
    e.label("at_done")
    e(f"s_sub_u32 s{sT}, 0, s{sKrd}")
    for i in range(8):
        e(f"v_add_u32 v{vaK + i}, s{sT}, v{vaK + i}")
    e(f"s_sub_u32 s{sT}, 0, s{sVrd}")
    for i in range(4):
        e(f"v_add_u32 v{vaV + i}, s{sT}, v{vaV + i}")
    e("s_nop 15")
    e("s_nop 7")
    e(f"v_mov_b32 v{vx1}, v{vl}")
    e("s_nop 1")
    e(f"v_permlane32_swap_b32 v{vl}, v{vx1}")
    e("s_nop 1")
    e(f"v_add_f32 v{vl}, v{vl}, v{vx1}")
    e("s_barrier")
    e(f"v_mov_b32 v{vsto}, v{vst}")
    e(f"s_cmp_lg_u32 s{sPass}, 0")
    e("s_cbranch_scc1 at_nopf")
    e(f"s_mov_b32 s{sQB}, s{sJ}")
    block_pf()
    e.label("at_nopf")
    e(f"s_lshl_b32 s{sT}, s{sQS}, 14")
    e(f"v_lshlrev_b32 v{vx0}, 4, v{vL}")
    e(f"v_add_u32 v{vx0}, s{sT}, v{vx0}")
    e(f"v_add_u32 v{vx0}, 98304, v{vx0}")
    e(f"s_lshl_b32 s{sT}, s{sQS}, 9")
    e(f"v_lshlrev_b32 v{vx1}, 3, v{vL}")
    e(f"v_add_u32 v{vx1}, s{sT}, v{vx1}")
    e(f"v_add_u32 v{vx1}, 32768, v{vx1}")
    e(f"s_cmp_eq_u32 s{sG}, 0")
    e("s_cbranch_scc1 at_merge0")
    for i in range(16):
        e(f"ds_write_b128 v{vx0}, v[{vO + 4 * i}:{vO + 4 * i + 3}] offset:{i * 1024}")
    e(f"ds_write_b64 v{vx1}, v[{vm}:{vl}]")
    e("s_waitcnt lgkmcnt(0)")
    e("s_barrier")
    e("s_branch at_mergedone")
    e.label("at_merge0")
    e("s_barrier")
    e(f"ds_read_b64 v[{vS}:{vS + 1}], v{vx1}")
    for i in range(16):
        e(f"ds_read_b128 v[{vF0 + 4 * i}:{vF0 + 4 * i + 3}], v{vx0} offset:{i * 1024}")
    e("s_waitcnt lgkmcnt(0)")
    e(f"v_max_f32 v{vt0}, v{vm}, v{vS}")
    e(f"v_sub_f32 v{vt1}, v{vm}, v{vt0}")
    e(f"v_sub_f32 v{vt2}, v{vS}, v{vt0}")
    e(f"v_mul_f32 v{vt1}, s{sC}, v{vt1}")
    e(f"v_mul_f32 v{vt2}, s{sC}, v{vt2}")
    e(f"v_exp_f32 v{vt1}, v{vt1}")
    e(f"v_exp_f32 v{vt2}, v{vt2}")
    e("s_nop 0")
    e(f"v_mul_f32 v{vl}, v{vl}, v{vt1}")
    e(f"v_fmac_f32 v{vl}, v{vS + 1}, v{vt2}")
    e(f"v_rcp_f32 v{vl}, v{vl}")
    e("s_nop 0")
    e(f"v_mul_f32 v{vt1}, v{vt1}, v{vl}")
    e(f"v_mul_f32 v{vt2}, v{vt2}, v{vl}")
    for i in range(64):
        e(f"v_mul_f32 v{vO + i}, v{vO + i}, v{vt1}")
        e(f"v_fmac_f32 v{vO + i}, v{vF0 + i}, v{vt2}")
    for i in range(32):
        e(f"v_cvt_pk_bf16_f32 v{vS + i}, v{vO + 2 * i}, v{vO + 2 * i + 1}")
    for i in range(8):
        e(f"buffer_store_dwordx4 v[{vS + 4 * i}:{vS + 4 * i + 3}], v{vsto}, s[16:19], 0 offen offset:{i * 32}")
    e.label("at_mergedone")
    e("s_barrier")
    e(f"s_add_u32 s{sPass}, s{sPass}, 1")
    e(f"s_cmp_eq_u32 s{sPass}, 1")
    e("s_cbranch_scc1 at_qblock")
    if 'wgt' in XP:
        e("s_memrealtime s[92:93]")
        e("s_waitcnt lgkmcnt(0)")
        e("s_lshl_b32 s3, s2, 3")
        e("s_add_u32 s3, s3, 0x6f00000")
        e("v_mov_b32 v2, s3")
        e("v_mov_b32 v4, s90")
        e("v_mov_b32 v5, s92")
        e("s_nop 1")
        e("global_store_dwordx2 v2, v[4:5], s[44:45]")
    e.label("at_end")
    e("s_endpgm")
    return name, VEND, 256, 163840


WS_PART = 0x6000000


def gen_final(e):
    name = "final_kernel"
    kernel_header(e, name)
    NT = 240
    e(f"s_cmp_ge_u32 s2, {NT}")
    e("s_cbranch_scc1 fi_end")
    e(f"s_load_dwordx2 s[34:35], s[0:1], {KA['wo']}")
    e(f"s_load_dwordx2 s[36:37], s[0:1], {KA['w2']}")
    e(f"s_load_dwordx2 s[44:45], s[0:1], {KA['ws']}")
    e("s_waitcnt lgkmcnt(0)")
    g = Gemm(e, "fi", 128, 128, 2, 4, NS=4)
    make_srd(e, 4, 34, 4096 * 1280)
    make_srd(e, 8, 44, 2048 * 8192, WS_CTX)
    make_srd(e, 12, 44, 3 * 2048 * 2560, WS_PART)
    make_srd(e, 56, 44, 640 * 3456, WS_U)
    make_srd(e, 60, 36, 1728 * 4096)
    e("s_and_b32 s47, s2, 7")
    e("s_lshr_b32 s52, s2, 3")
    e("s_lshl_b32 s47, s47, 1")
    e("s_and_b32 s46, s52, 1")
    e("s_add_u32 s47, s47, s46")
    e("s_lshr_b32 s52, s52, 1")
    e("s_mul_i32 s53, s52, 205")
    e("s_lshr_b32 s53, s53, 10")
    e("s_mul_i32 s46, s53, 5")
    e("s_sub_u32 s46, s52, s46")
    e("s_lshl_b32 s46, s46, 7")
    e("s_lshl_b32 s47, s47, 7")
    g.setup_common()
    g.zero_acc()
    e("s_cmp_eq_u32 s53, 2")
    e("s_cbranch_scc1 fi_seg2")
    e("s_mul_i32 s48, s53, %d" % (2048 * 1280))
    e("s_lshl_b32 s24, s46, 1")
    e("s_add_u32 s48, s48, s24")
    e("s_lshl_b32 s49, s47, 13")
    e("s_lshl_b32 s24, s53, 12")
    e("s_add_u32 s49, s49, s24")
    g.run_seg(Op('t', 4, 1280, 48, perm=True), Op('k', 8, 8192, 49), 32, True)
    e("s_branch fi_epi")
    e.label("fi_seg2")
    e("s_mul_i32 s50, s46, 3456")
    e("s_lshl_b32 s51, s47, 1")
    g.run_seg(Op('k', 56, 3456, 50), Op('t', 60, 4096, 51, perm=True), 27, True)
    e.label("fi_epi")
    va = g.v_t1
    L, t0, st = g.v_lane, g.v_t0, g.s_t
    e(f"s_mul_i32 s{st}, s{g.s_wb}, {g.TB * 32}")
    e(f"s_add_u32 s{st}, s{st}, s47")
    e(f"v_and_b32 v{t0}, 31, v{L}")
    e(f"v_add_u32 v{t0}, s{st}, v{t0}")
    e(f"s_movk_i32 s{st + 1}, 2560")
    e(f"v_mul_lo_u32 v{t0}, v{t0}, s{st + 1}")
    e(f"s_mul_i32 s{st}, s{g.s_wa}, {g.TA * 32}")
    e(f"s_add_u32 s{st}, s{st}, s46")
    e(f"s_lshl_b32 s{st}, s{st}, 2")
    e(f"s_mul_i32 s{st + 1}, s53, {2048 * 2560}")
    e(f"s_add_u32 s{st}, s{st}, s{st + 1}")
    e(f"v_add_u32 v{t0}, s{st}, v{t0}")
    e(f"v_lshrrev_b32 v{va}, 5, v{L}")
    e(f"v_lshl_add_u32 v{va}, v{va}, 4, v{t0}")
    e("s_nop 15")
    e("s_nop 7")
    for ta in range(g.TA):
        for tb in range(g.TB):
            d = g.v_acc + 16 * (ta * g.TB + tb)
            e(f"s_mov_b32 s24, {tb * 32 * 2560}")
            for q in range(4):
                e(f"buffer_store_dwordx4 v[{d + 4 * q}:{d + 4 * q + 3}], v{va}, s[12:15], s24 offen offset:{ta * 128 + q * 32}")
    e.label("fi_end")
    e("s_endpgm")
    return name, g.v_end, NT, g.lds


def gen_reduce(e):
    name = "reduce_kernel"
    kernel_header(e, name)
    NT = 640
    e(f"s_cmp_ge_u32 s2, {NT}")
    e("s_cbranch_scc1 rd_end")
    e(f"s_load_dwordx2 s[32:33], s[0:1], {KA['x']}")
    e(f"s_load_dwordx2 s[38:39], s[0:1], {KA['b2']}")
    e(f"s_load_dwordx2 s[40:41], s[0:1], {KA['out']}")
    e(f"s_load_dwordx2 s[44:45], s[0:1], {KA['ws']}")
    e("s_lshl_b32 s3, s2, 8")
    e("v_add_u32 v1, s3, v0")
    e("v_lshlrev_b32 v2, 4, v1")
    e("v_lshlrev_b32 v3, 5, v1")
    e("s_mov_b32 s4, 0x3333334")
    e("v_mul_hi_u32 v4, v1, s4")
    e("v_lshlrev_b32 v4, 1, v4")
    e("s_waitcnt lgkmcnt(0)")
    make_srd(e, 8, 32, 2048 * 1280)
    make_srd(e, 12, 40, 2048 * 1280)
    make_srd(e, 16, 44, 3 * 2048 * 2560, WS_PART)
    make_srd(e, 20, 38, 4096)
    e("buffer_load_dwordx4 v[8:11], v2, s[8:11], 0 offen")
    e("buffer_load_ushort v5, v4, s[20:23], 0 offen")
    for sp in range(3):
        e(f"s_mov_b32 s24, {sp * 2048 * 2560}")
        e(f"buffer_load_dwordx4 v[{12 + 8 * sp}:{15 + 8 * sp}], v3, s[16:19], s24 offen")
        e(f"buffer_load_dwordx4 v[{16 + 8 * sp}:{19 + 8 * sp}], v3, s[16:19], s24 offen offset:16")
    e("s_mov_b32 s25, 0xffff0000")
    e("s_waitcnt vmcnt(0)")
    e("v_lshlrev_b32 v5, 16, v5")
    for i in range(8):
        e(f"v_add_f32 v{12 + i}, v{12 + i}, v{20 + i}")
        e(f"v_add_f32 v{12 + i}, v{12 + i}, v{28 + i}")
        e(f"v_add_f32 v{12 + i}, v{12 + i}, v5")
    for i in range(4):
        e(f"v_lshlrev_b32 v6, 16, v{8 + i}")
        e(f"v_and_b32 v7, s25, v{8 + i}")
        e(f"v_add_f32 v6, v6, v{12 + 2 * i}")
        e(f"v_add_f32 v7, v7, v{13 + 2 * i}")
        e(f"v_cvt_pk_bf16_f32 v{8 + i}, v6, v7")
    e("buffer_store_dwordx4 v[8:11], v2, s[12:15], 0 offen")
    e.label("rd_end")
    e("s_endpgm")
    return name, 40, NT, 0


def main():
    e = E()
    launches = []
    body = E()
    descs = E()
    n, v = gen_ln(body)
    kernel_desc(descs, n, v)
    launches.append((n, 1024, 256, 0))
    n, v, g, lds = gen_p1(body)
    kernel_desc(descs, n, v)
    launches.append((n, g, 512, lds))
    n, v, g, lds = gen_attn(body)
    kernel_desc(descs, n, v)
    launches.append((n, g, 512, lds))
    n, v, g, lds = gen_final(body)
    kernel_desc(descs, n, v)
    launches.append((n, g, 512, lds))
    n, v, g, lds = gen_reduce(body)
    kernel_desc(descs, n, v)
    launches.append((n, g, 256, lds))
    for (n, g, b, lds) in launches:
        e.raw(f"; @launch kernel={n} grid=({g},1,1) block=({b},1,1) lds={lds}")
    e.raw('.amdgcn_target "amdgcn-amd-amdhsa--gfx950"')
    out = e.text() + body.text() + descs.text()
    path = sys.argv[1] if len(sys.argv) > 1 else f"cdna_kernels/{KN}.s"
    open(path, "w").write(out)
    print("wrote", path, len(out))


if __name__ == "__main__":
    main()
```
